```python
import torch

def _softmax(x, axis=-1):
    return torch.softmax(x, dim=axis)

def _gelu(x):
    return torch.nn.functional.gelu(x, approximate='tanh')

def _silu(x):
    return torch.nn.functional.silu(x)

def _sigmoid(x):
    return torch.sigmoid(x)

def _layernorm(x, axis=-1, eps=1e-05):
    m = x.mean(dim=axis, keepdim=True)
    v = x.var(dim=axis, keepdim=True, unbiased=False)
    return (x - m) / torch.sqrt(v + eps)

def _scatter_add(tgt, idx, src, axis=0):
    return tgt.clone().index_add_(axis, idx, src)

def _segment_sum(src, seg, n):
    out = torch.zeros((n,) + src.shape[1:], dtype=src.dtype)
    return out.index_add_(0, seg, src)

def _pad(x, pw):
    flat = tuple((v for pair in reversed(pw) for v in pair))
    return torch.nn.functional.pad(x, flat)
kernel_name = 'gated_mix__memory_aug_recurrent_mem_tr__glu_gated_geglu__prompt'

def setup_inputs():

    _w = lambda a: (lambda t: t.to(torch.bfloat16) if t.is_floating_point() else t)(torch.as_tensor(a))

    def _A_setup():
        B, S, Dm = (1, 2048, 576)
        H, Dh = (32, 128)
        M, seg = (8, 32)
        seg = min(seg, S)
        S = S // seg * seg
        return {'x': _w((lambda *s: torch.randn(*s, dtype=torch.bfloat16) * 0.05)(B, S, Dm)), 'mem0': _w((lambda *s: torch.randn(*s, dtype=torch.bfloat16) * 0.4)(B, M, Dm)), 'Wq': _w((lambda *s: torch.randn(*s, dtype=torch.bfloat16) * 6.4)(Dm, H, Dh) * Dm ** (-0.5)), 'Wk': _w((lambda *s: torch.randn(*s, dtype=torch.bfloat16) * 6.4)(Dm, H, Dh) * Dm ** (-0.5)), 'Wv': _w((lambda *s: torch.randn(*s, dtype=torch.bfloat16) * 0.4)(Dm, H, Dh) * Dm ** (-0.5)), 'Wo': _w((lambda *s: torch.randn(*s, dtype=torch.bfloat16) * 0.4)(H, Dh, Dm) * (H * Dh) ** (-0.5)), 'seg_len': seg}
    _A_in = _A_setup()

    def _B_setup():
        B, S, Dm, Df = (1, 2048, 576, 4608)
        return {'x': _w((lambda *s: torch.randn(*s, dtype=torch.bfloat16) * 0.05)(B, S, Dm)), 'w_gate': _w((lambda *s: torch.randn(*s, dtype=torch.bfloat16) * 1.6)(Dm, Df) * Dm ** (-0.5)), 'w_up': _w((lambda *s: torch.randn(*s, dtype=torch.bfloat16) * 1.6)(Dm, Df) * Dm ** (-0.5)), 'w_down': _w((lambda *s: torch.randn(*s, dtype=torch.bfloat16) * 1.6)(Df, Dm) * Df ** (-0.5))}
    _B_in = _B_setup()
    return {'A_x': _A_in['x'], 'A_mem0': _A_in['mem0'], 'A_Wq': _A_in['Wq'], 'A_Wk': _A_in['Wk'], 'A_Wv': _A_in['Wv'], 'A_Wo': _A_in['Wo'], 'A_seg_len': _A_in['seg_len'], 'B_x': _B_in['x'], 'B_w_gate': _B_in['w_gate'], 'B_w_up': _B_in['w_up'], 'B_w_down': _B_in['w_down'], 'gate_w': _w((lambda *s: torch.randn(*s, dtype=torch.bfloat16) * 0.05)(576) * 16.0)}

def reference(A_x, A_mem0, A_Wq, A_Wk, A_Wv, A_Wo, A_seg_len, B_x, B_w_gate, B_w_up, B_w_down, gate_w):

    def _A_ref(x, mem0, Wq, Wk, Wv, Wo, seg_len):
        B, S, Dm = x.shape
        H, Dh = (Wq.shape[1], Wq.shape[2])
        M = mem0.shape[1]
        scale = Dh ** (-0.5)
        n_seg = S // seg_len
        L = M + seg_len
        idx = torch.arange(L)
        mask = (idx[:, None] < M) | (idx[:, None] >= idx[None, :])
        mem = mem0
        outs = []
        for s in range(n_seg):
            xs = x[:, s * seg_len:(s + 1) * seg_len, :].clone()
            h = torch.concatenate([mem, xs], axis=1)
            q = torch.einsum('btd,dhe->bhte', h, Wq)
            k = torch.einsum('btd,dhe->bhte', h, Wk)
            v = torch.einsum('btd,dhe->bhte', h, Wv)
            scores = torch.einsum('bhqe,bhke->bhqk', q, k) * scale
            scores = torch.where(mask[None, None], scores, -1000000000.0)
            p = _softmax(scores, axis=-1)
            o = torch.einsum('bhqk,bhke->bhqe', p, v)
            o = torch.einsum('bhte,hed->btd', o, Wo)
            mem = o[:, :M, :].clone()
            outs.append(o[:, M:, :])
        return torch.concatenate(outs, axis=1)

    def _B_ref(x, w_gate, w_up, w_down):
        g = torch.einsum('bsd,df->bsf', x, w_gate)
        u = torch.einsum('bsd,df->bsf', x, w_up)
        h = _gelu(g) * u
        return torch.einsum('bsf,fd->bsd', h, w_down)
    x = A_x
    g = _sigmoid((x * gate_w).sum(-1, keepdims=True))
    a = _A_ref(x, A_mem0, A_Wq, A_Wk, A_Wv, A_Wo, A_seg_len)
    b = _B_ref(x, B_w_gate, B_w_up, B_w_down)
    return g * a + (1 - g) * b
```

```python
class A:
    def __init__(self):
        self.L = []
        self.n = 0
    def __call__(self, s):
        for line in s.split("\n"):
            line = line.strip()
            if line:
                self.L.append(line)
    def lab(self, name):
        self.L.append(name + ":")
    def uniq(self, p="L"):
        self.n += 1
        return f"{p}_{self.n}"
    def text(self):
        out = []
        for l in self.L:
            out.append(l if l.endswith(":") else "  " + l)
        return "\n".join(out) + "\n"
    def nop(self, n):
        while n > 0:
            k = min(n, 16)
            self.L.append(f"s_nop {k-1}")
            n -= k

def vr(b, n=1, p="v"):
    return f"{p}{b}" if n == 1 else f"{p}[{b}:{b+n-1}]"
def ar(b, n=1):
    return vr(b, n, "a")
def sr(b, n=1):
    return vr(b, n, "s")

class Reg:
    @staticmethod
    def r(i, n=1):
        if i < 256:
            assert i + n <= 256, (i, n)
            return vr(i, n)
        return ar(i - 256, n)
R = Reg.r
```

```python
from common import *

SLOT = 16384
MEMB = 131072
XQ   = MEMB + 9216
XO   = XQ + 4096
KXB  = XO + 2048
SEL  = KXB + 16384
assert SEL + 1024 == 163840
sH=68; sMode=69; sStep=70; sT0=71; sT1=72; sT2=73; sT3=74; sRT=75
sPart=76; sMemRd=77; sMemWr=78; sKXcur=79; sHoff=80; sVal=81; sPst=82
sMask=84
sRearm=86
sC1=88
vL16=1; vIdx=2; vTrW=3
vTrX=7; vXQw=8; vXOw=9; vL4=10; vMstA=11; vMstB=0
vT=12
vFlag=15
VX=16
AS=24
LD=32
ACC=48
C1 = (128 ** -0.5) * 1.4426950408889634

RES = [('Q',0),('K',2),('Q',4),('K',6),('Q',8),('V',0),('V',4),('V',8)]
def build_wmap():
    ops = []
    for M in 'QKV':
        for c in range(9):
            if (M,c) in RES: continue
            for x in range(2): ops.append((M,c,x))
    for j in range(9):
        for c2 in range(2): ops.append(('O',j,c2))
    assert len(ops) == 56
    m = {}
    for i,o in enumerate(ops):
        m[o] = 64 + 8*i
    return m
WM = build_wmap()

def st_flag(a, Lslow_code, Lfast_code):
    pass

def dual_store(a, instr):
    L1 = a.uniq("L_ds"); L2 = a.uniq("L_de")
    a(f"s_cmp_lg_u32 s{sMode}, 0\ns_cbranch_scc1 {L1}")
    for i in instr: a(i)
    a(f"s_branch {L2}")
    a.lab(L1)
    for i in instr: a(i + " sc1" if i.startswith("buffer_store") else i)
    a.lab(L2)

def chain_init(a):
    a(f"""
    s_lshr_b32 s{sH}, s2, 3
    v_lshlrev_b32 v{vL16}, 4, v0
    v_lshlrev_b32 v{vL4}, 2, v0
    """)
    stamp(a, 0, 12, 13)
    a(f"""
    v_mov_b32 v12, 0
    v_mov_b32 v13, 0
    v_mov_b32 v14, 0
    v_mov_b32 v15, 0
    v_mov_b32 v16, -1
    v_mov_b32 v17, -1
    v_mov_b32 v18, -1
    v_mov_b32 v19, -1
    s_lshl_b32 s4, s3, 10
    v_add_u32 v20, s4, v{vL16}          ; tid*16 (0..4095)
    s_mul_i32 s5, s{sH}, 768
    v_cmp_gt_u32 vcc, 768, v20
    s_and_saveexec_b64 s[8:9], vcc
    s_cbranch_execz L_ci_nf
    buffer_store_dwordx4 v[12:15], v20, s[{SWS}:{SWS+3}], s5 offen sc1
    L_ci_nf:
    s_mov_b64 exec, s[8:9]
    s_mul_i32 s5, s{sH}, 18432
    s_add_u32 s5, s5, {CH_PART}
    """)
    for i in range(4):
        a(f"buffer_store_dwordx4 v[16:19], v20, s[{SWS}:{SWS+3}], s5 offen sc1\ns_add_u32 s5, s5, 4096")
    a(f"""
    v_cmp_gt_u32 vcc, 2048, v20
    s_and_saveexec_b64 s[8:9], vcc
    s_cbranch_execz L_ci_np
    buffer_store_dwordx4 v[16:19], v20, s[{SWS}:{SWS+3}], s5 offen sc1
    L_ci_np:
    s_mov_b64 exec, s[8:9]
    s_mul_i32 s5, s{sH}, 1152
    s_add_u32 s5, s5, {CH_MEM}
    v_cmp_gt_u32 vcc, 1152, v20
    s_and_saveexec_b64 s[8:9], vcc
    s_cbranch_execz L_ci_nm
    buffer_store_dwordx4 v[16:19], v20, s[{SWS}:{SWS+3}], s5 offen sc1
    L_ci_nm:
    s_mov_b64 exec, s[8:9]
    """)
    a(f"""
    v_lshrrev_b32 v12, 4, v0            ; l>>4
    v_and_b32 v13, 1, v12               ; d&1
    s_lshr_b32 s4, s3, 1
    s_lshl_b32 s4, s4, 2                ; (w>>1)<<2
    v_or_b32 v13, s4, v13
    v_lshlrev_b32 v14, 1, v13           ; swz
    v_and_b32 v21, 15, v0
    v_xor_b32 v22, v21, v14
    v_lshlrev_b32 v22, 4, v22
    v_lshlrev_b32 v12, 13, v12          ; row*8192
    v_add_u32 v24, v12, v22
    v_xor_b32 v14, 4, v14
    v_xor_b32 v22, v21, v14
    v_lshlrev_b32 v22, 4, v22
    v_add_u32 v25, v12, v22
    v_lshrrev_b32 v12, 3, v0
    s_movk_i32 s4, 1152
    v_mul_lo_u32 v12, v12, s4
    v_lshrrev_b32 v13, 5, v0
    s_and_b32 s4, s3, 1
    s_lshl_b32 s4, s4, 1
    v_or_b32 v13, s4, v13
    v_lshlrev_b32 v13, 1, v13
    v_and_b32 v21, 7, v0
    v_xor_b32 v21, v21, v13
    v_lshlrev_b32 v21, 4, v21
    v_add_u32 v26, v12, v21
    """)
    a(f"""
    v_lshrrev_b32 v12, 4, v0            ; gb
    v_bfe_u32 v13, v0, 2, 2             ; r
    v_lshrrev_b32 v14, 1, v13           ; r>>1
    v_lshlrev_b32 v14, 5, v14
    v_and_b32 v21, 1, v13
    v_lshlrev_b32 v21, 2, v21
    v_add3_u32 v14, v14, v21, v12
    v_lshlrev_b32 v14, 8, v14
    v_and_b32 v21, 1, v0
    v_lshlrev_b32 v21, 3, v21
    v_add_u32 v14, v14, v21             ; + (cq&1)*8
    v_and_b32 v21, 1, v12
    v_lshlrev_b32 v21, 1, v21
    v_lshlrev_b32 v22, 2, v13
    v_add_u32 v21, v21, v22
    v_bfe_u32 v22, v0, 1, 1             ; cq>>1
    s_lshl_b32 s4, s3, 2
    v_add_u32 v22, s4, v22              ; 4w + (cq>>1)
    v_xor_b32 v23, v22, v21
    v_lshlrev_b32 v23, 4, v23
    v_add_u32 v{vTrW}, v14, v23
    v_add_u32 v22, 2, v22
    v_xor_b32 v23, v22, v21
    v_lshlrev_b32 v23, 4, v23
    v_add_u32 v{vTrW+1}, v14, v23
    v_add_u32 v{vTrW+2}, 0x10000, v{vTrW}
    v_add_u32 v{vTrW+3}, 0x10000, v{vTrW+1}
    v_lshrrev_b32 v14, 1, v13
    v_lshlrev_b32 v21, 5, v14
    v_lshrrev_b32 v22, 1, v12
    v_lshlrev_b32 v22, 3, v22
    v_add_u32 v21, v21, v22
    v_and_b32 v22, 1, v12
    v_lshlrev_b32 v23, 2, v22
    v_add_u32 v21, v21, v23
    v_and_b32 v23, 1, v13
    v_add_u32 v21, v21, v23
    v_lshlrev_b32 v21, 7, v21           ; row*128
    v_lshlrev_b32 v14, 1, v14
    v_or_b32 v22, v22, v14              ; f2
    v_lshlrev_b32 v22, 1, v22
    v_bfe_u32 v23, v0, 1, 1
    s_lshl_b32 s4, s3, 1
    v_add_u32 v23, s4, v23
    v_xor_b32 v23, v23, v22
    v_lshlrev_b32 v23, 4, v23
    v_and_b32 v22, 1, v0
    v_lshlrev_b32 v22, 3, v22
    v_add3_u32 v27, v21, v23, v22
    """)
    srd(a, SA,  P['Wq'], 576*8192)
    srd(a, SB0, P['Wk'], 576*8192)
    srd(a, SB1, P['Wv'], 576*8192)
    srd(a, SOUT, P['Wo'], 4096*1152)
    SR = {'Q':SA, 'K':SB0, 'V':SB1, 'O':SOUT}
    units = [(M,c) for c in range(9) for M in 'QKV' if (M,c) not in RES]
    units = units[:10] + [('O',j) for j in range(9)] + units[10:] + RES
    assert len(units) == 36
    a(f"""
    s_lshl_b32 s{sHoff}, s{sH}, 8                 ; h*256
    s_mul_i32 s6, s3, {16*8192}
    s_add_u32 s6, s6, s{sHoff}
    s_mul_i32 s7, s{sH}, 147456
    s_mul_i32 s4, s3, {32*1152}
    s_add_u32 s7, s7, s4
    s_lshl_b32 s12, s3, 12
    """)
    NS = 10
    slot_of = lambda i: ((i + 2) % NS) * SLOT if True else 0
    def issue(i):
        M, c = units[i]
        for jj in range(4):
            a(f"s_add_u32 m0, s12, {slot_of(i) + jj*1024}")
            if M != 'O':
                a(f"s_add_u32 s4, s6, {(64*c + 4*jj)*8192}")
                a(f"buffer_load_dwordx4 v{24 + (jj&1)}, s[{SR[M]}:{SR[M]+3}], s4 offen lds")
            else:
                a(f"s_add_u32 s4, s7, {8*jj*1152 + c*128}")
                a(f"buffer_load_dwordx4 v26, s[{SR[M]}:{SR[M]+3}], s4 offen lds")
    NPRE = 6
    for i in range(NS): issue(i)
    a("s_waitcnt vmcnt(40)\ns_barrier")
    a(f"""
    s_cmp_lg_u32 s3, 0
    s_cbranch_scc1 L_ci_hs
    s_getreg_b32 s4, hwreg(HW_REG_XCC_ID)
    s_and_b32 s4, s4, 7
    s_mul_i32 s4, s4, 7
    s_mov_b64 s[10:11], 1
    s_lshl_b64 s[10:11], s[10:11], s4
    s_mov_b64 s[8:9], exec
    s_mov_b64 exec, 1
    v_mov_b32 v12, 0
    v_mov_b32 v14, s10
    v_mov_b32 v15, s11
    v_mov_b32 v13, 1
    global_atomic_add_x2 v12, v[14:15], s[{P['dbg']}:{P['dbg']+1}]
    global_atomic_add v12, v13, s[{P['dbg']}:{P['dbg']+1}] offset:16
    s_mov_b64 exec, s[8:9]
    L_ci_hs:
    """)
    for i in range(36):
        M, c = units[i]
        issued = min(max(i + NS - 2, NS - 1), 35)
        a(f"s_waitcnt vmcnt({min((issued - i)*4, 63)})")
        a("s_barrier")
        if i > 0 and i - 1 + NS <= 35: issue(i - 1 + NS)
        if (M, c) in RES and i >= 28: continue
        base = slot_of(i)
        if M != 'O':
            hi = base >= 65536
            for x in range(2):
                dst = WM[(M,c,x)]
                areg = vTrW + x + (2 if hi else 0)
                b2 = base - (65536 if hi else 0)
                if b2 + 3*2048 > 65535 or base >= 131072:
                    a(f"v_add_u32 v28, {base}, v{vTrW+x}")
                    areg, b2 = 28, 0
                for j in range(4):
                    a(f"ds_read_b64_tr_b16 {R(dst+2*j,2)}, v{areg} offset:{b2 + j*2048}")
        else:
            a(f"v_add_u32 v28, {base}, v27")
            for c2 in range(2):
                dst = WM[('O',c,c2)]
                for j in range(4):
                    a(f"ds_read_b64_tr_b16 {R(dst+2*j,2)}, v28 offset:{(64*c2 + 16*(j>>1) + 2*(j&1))*128}")
        a("s_waitcnt lgkmcnt(0)")
    a("s_barrier")
    stamp(a, 1, 12, 13)
    a(f"""
    v_and_b32 v12, 1, v0
    v_mov_b32 v{vIdx}, 0x4444
    v_mov_b32 v13, 0xeeee
    v_cmp_eq_u32 vcc, 1, v12
    s_nop 1
    v_cndmask_b32 v{vIdx}, v{vIdx}, v13, vcc
    v_lshrrev_b32 v12, 2, v0
    v_lshlrev_b32 v12, 5, v12
    v_and_b32 v13, 3, v0
    v_lshlrev_b32 v13, 3, v13
    v_add3_u32 v{vTrX}, v12, v13, 0
    v_add_u32 v{vTrX}, {XQ}, v{vTrX}
    v_and_b32 v12, 15, v0
    s_lshl_b32 s4, s3, 5
    v_add_u32 v12, s4, v12
    v_lshlrev_b32 v12, 5, v12
    v_lshrrev_b32 v13, 4, v0
    v_lshlrev_b32 v13, 3, v13
    v_add_u32 v12, v12, v13
    v_add_u32 v{vXQw}, {XQ}, v12
    v_bfe_u32 v12, v0, 2, 2
    v_lshlrev_b32 v12, 2, v12
    v_and_b32 v13, 1, v0
    v_lshlrev_b32 v13, 1, v13
    s_and_b32 s4, s3, 1
    v_add3_u32 v12, v12, v13, s4        ; i
    v_lshrrev_b32 v13, 5, v0            ; g>>1
    v_lshlrev_b32 v13, 4, v13
    v_add_u32 v12, v12, v13
    v_lshlrev_b32 v12, 4, v12
    v_bfe_u32 v13, v0, 4, 1
    v_lshlrev_b32 v13, 3, v13
    v_add_u32 v12, v12, v13
    s_lshr_b32 s4, s3, 1
    s_lshl_b32 s4, s4, 10
    s_add_u32 s4, s4, {XO}
    v_add_u32 v{vXOw}, s4, v12
    s_mov_b32 s{sMask}, 0xcccccccc
    s_mov_b32 s{sMask+1}, 0xcccccccc
    s_mov_b32 s{sRearm}, 0xff00ff00
    s_mov_b32 s{sRearm+1}, 0xff00ff00
    s_mov_b32 s{sC1}, {fb(C1)}
    """)
    a(f"""
    s_mov_b32 s{sRT}, -1
    s_cmp_eq_u32 s3, 0
    s_cselect_b32 s{sRT}, s{sH}, s{sRT}
    s_add_u32 s4, s{sH}, 32
    s_cmp_lt_u32 s{sH}, 4
    s_cselect_b32 s4, s4, -1
    s_cmp_eq_u32 s3, 1
    s_cselect_b32 s{sRT}, s4, s{sRT}
    s_lshr_b32 s4, s{sRT}, 2
    s_lshl_b32 s4, s4, 10
    s_and_b32 s5, s{sRT}, 1
    s_lshl_b32 s5, s5, 9                ; 2(t&1)*16*16
    s_add_u32 s4, s4, s5
    s_bfe_u32 s5, s{sRT}, 0x10001
    s_lshl_b32 s5, s5, 4
    s_add_u32 s4, s4, s5
    v_bfe_u32 v12, v0, 2, 1             ; q>>1
    v_lshlrev_b32 v12, 8, v12
    v_lshrrev_b32 v13, 4, v0
    v_lshlrev_b32 v13, 6, v13           ; 4g''*16
    v_add_u32 v12, v12, v13
    v_and_b32 v13, 1, v0
    v_lshlrev_b32 v13, 5, v13           ; 2(e'&1)*16
    v_add_u32 v12, v12, v13
    v_bfe_u32 v13, v0, 1, 1             ; eh
    v_lshlrev_b32 v13, 3, v13
    v_add_u32 v12, v12, v13
    v_add_u32 v12, s4, v12
    v_bfe_u32 v13, v0, 3, 1
    v_mul_u32_u24 v13, 18432, v13
    v_add_u32 v{vMstA}, v12, v13
    v_sub_u32 v14, v12, v13
    v_add_u32 v14, 18432, v14
    """)
    a(f"""
    v_and_b32 v12, 7, v0
    v_lshrrev_b32 v13, 1, v12
    v_and_b32 v16, 1, v12
    v_lshlrev_b32 v16, 4, v16
    v_mov_b32 v17, 0x3f80
    v_lshlrev_b32 v17, v16, v17         ; 0x3f80 << (16*(pos&1))
    """)
    for j in range(4):
        a(f"v_cmp_eq_u32 vcc, {j}, v13\ns_nop 1\nv_cndmask_b32 v{20+j}, 0, v17, vcc")
    a(f"v_add_u32 v16, {SEL}, v{vL16}\nds_write_b128 v16, v[20:23]")
    srd(a, SA, P['mem0'], 8*1152)
    a(f"""
    v_bfe_u32 v12, v0, 2, 2
    v_lshlrev_b32 v12, 1, v12
    v_bfe_u32 v13, v0, 1, 1
    v_add_u32 v12, v12, v13
    s_movk_i32 s4, 1152
    v_mul_lo_u32 v12, v12, s4
    v_and_b32 v13, 1, v0
    v_lshlrev_b32 v13, 6, v13
    v_add_u32 v12, v12, v13
    v_lshrrev_b32 v13, 5, v0
    v_lshlrev_b32 v13, 5, v13
    v_add_u32 v12, v12, v13
    v_bfe_u32 v13, v0, 4, 1
    v_lshlrev_b32 v13, 2, v13
    v_add_u32 v12, v12, v13
    """)
    for k, c_expr in enumerate(range(3)):
        L = a.uniq("L_m0")
        if k == 2: a(f"s_cmp_lg_u32 s3, 0\ns_cbranch_scc1 {L}")
        a(f"s_lshl_b32 s4, s3, 7\ns_add_u32 s4, s4, {k*4*128}")
        for ea in range(8):
            off = (4*(ea&3) + (ea>>2))*2
            a(f"buffer_load_ushort v{32 + ea}, v12, s[{SA}:{SA+3}], s4 offen offset:{off}")
        a("s_waitcnt vmcnt(0)")
        for j in range(4): a(f"v_lshl_or_b32 v{24+j}, v{33+2*j}, 16, v{32+2*j}")
        a(f"s_lshl_b32 s4, s3, 10\ns_add_u32 s4, s4, {MEMB + k*4096}\nv_add_u32 v13, s4, v{vL16}\nds_write_b128 v13, v[24:27]\ns_waitcnt lgkmcnt(0)")
        if k == 2: a.lab(L)
    a(f"v_mov_b32 v{vMstB}, v14")
    a(f"""
    v_mov_b32 v12, 0
    L_ci_w:
    global_load_dwordx2 v[14:15], v12, s[{P['dbg']}:{P['dbg']+1}] sc1
    s_waitcnt vmcnt(0)
    v_readfirstlane_b32 s4, v14
    v_readfirstlane_b32 s5, v15
    s_mov_b32 s6, 0
    s_mov_b32 s7, 0
    """)
    for k in range(8):
        a(f"s_and_b32 s10, s4, 127\ns_add_u32 s6, s6, s10\ns_max_u32 s7, s7, s10\ns_lshr_b64 s[4:5], s[4:5], 7")
    a(f"""
    s_cmp_ge_u32 s6, 32
    s_cbranch_scc1 L_ci_go
    s_sleep 2
    """)
    spin_check(a)
    a(f"""
    s_branch L_ci_w
    L_ci_go:
    s_cmp_ge_u32 s7, 32
    s_cselect_b32 s{sMode}, 0, 1
    """)
    if Cfg.FORCE_SLOW: a(f"s_mov_b32 s{sMode}, 1")

def kx_dma(a, sbuf, sstep_expr_sgpr):
    a(f"""
    s_lshl_b32 s4, s{sstep_expr_sgpr}, 5
    s_add_u32 s4, s4, s{sH}
    s_lshl_b32 s4, s4, 13
    s_lshl_b32 s5, s3, 11
    s_add_u32 s4, s4, s5
    s_add_u32 m0, s{sbuf}, s5
    s_add_u32 s4, s4, {WS_KX}
    buffer_load_dwordx4 v{vL16}, s[{SWS}:{SWS+3}], s4 offen sc1 lds
    buffer_load_dwordx4 v{vL16}, s[{SWS}:{SWS+3}], s4 offen offset:1024 sc1 lds
    """)

def zero(a, base, n):
    for i in range(0, n, 2): a(f"v_mov_b64 {vr(base+i,2)}, 0")

def smf(a, acc, A, B):
    a(f"v_smfmac_f32_16x16x64_bf16 {vr(acc,4)}, {vr(A,4)}, {R(B,8)}, v{vIdx}")

def res_reads(a, M, c):
    slot = RES.index((M,c)) * SLOT
    hi = slot >= 65536
    for x in range(2):
        for j in range(4):
            a(f"ds_read_b64_tr_b16 {vr(LD+8*x+2*j,2)}, v{vTrW+x+(2 if hi else 0)} offset:{slot - (65536 if hi else 0) + j*2048}")

def gemm_pass(a, mats, accs):
    def aread(c): a(f"ds_read_b128 {vr(AS+4*(c&1),4)}, v{vL16} offset:{MEMB - 0 + c*1024}" if MEMB + 8*1024 <= 65535 else f"ds_read_b128 {vr(AS+4*(c&1),4)}, v{vT+2} offset:{c*1024}")
    res_at = {c: M for (M,c) in RES if M in mats}
    pend = []
    def issue_a(c): aread(c); pend.append(('A',c))
    def issue_r(c):
        res_reads(a, res_at[c], c); pend.extend([('R',c)]*8)
    def wait_for(tags):
        idx = [i for i,t in enumerate(pend) if t in tags]
        if not idx: return
        last = max(idx)
        n = len(pend) - 1 - last
        a(f"s_waitcnt lgkmcnt({min(n,15)})")
        del pend[:last+1]
    issue_a(0)
    nxt_res = sorted(res_at)
    issue_a(1)
    if nxt_res and nxt_res[0] <= 1:
        issue_r(nxt_res[0]); issued_res = {nxt_res[0]}
    else:
        issued_res = set()
    landing_busy_until = -1
    for c in range(9):
        tags = [('A',c)]
        if c in res_at:
            if c not in issued_res:
                issue_r(c); issued_res.add(c)
            tags.append(('R',c))
        wait_for(tags)
        A = AS + 4*(c&1)
        order = [(M,x) for M in mats for x in range(2)]
        if c in res_at:
            order = [(res_at[c],0),(res_at[c],1)] + [o for o in order if o[0] != res_at[c]]
        for n_, (M,x) in enumerate(order):
            B = (LD + 8*x) if (c in res_at and M == res_at[c]) else WM[(M,c,x)]
            smf(a, accs[(M,x)], A, B)
            if n_ == 0 and c + 2 < 9:
                pass
            if n_ == 1:
                nx = [r for r in nxt_res if r > c and r not in issued_res]
                busy = [r for r in issued_res if r > c]
                if nx and not busy:
                    issue_r(nx[0]); issued_res.add(nx[0])
        if c + 2 < 9: issue_a(c + 2)

def chain_step(a):
    a(f"""
    s_mov_b32 s{sStep}, 0
    s_mov_b32 s{sKXcur}, {KXB}
    """)
    wave_wait_flag(a, str(F_KV), 32, vt=12)
    kx_dma(a, sKXcur, sStep)
    a(f"v_mov_b32 v{vFlag}, 32")
    zero(a, ACC, 16)
    a("s_waitcnt vmcnt(0) lgkmcnt(0)\ns_barrier")
    stamp(a, 2, 12, 13)
    if Cfg.STAMPS: a("\n".join(f"s_mov_b32 s{r}, 0" for r in [90,91,92,99,100,101,12,13,14,15]))
    a.lab("L_step")
    cyc(a)
    a(f"""
    v_readfirstlane_b32 s4, v{vFlag}
    s_add_u32 s{sT0}, s{sStep}, 1
    s_cmp_ge_u32 s4, 32
    s_cbranch_scc1 L_fl_ok
    s_lshr_b32 s5, s{sT0}, 1
    s_min_u32 s5, s5, 31
    s_lshl_b32 s5, s5, 7
    s_add_u32 s{sT1}, s5, {F_KV}
    """)
    wave_wait_flag(a, sT1, 32, vt=12)
    a.lab("L_fl_ok")
    a(f"""
    s_lshl_b32 s4, s{sStep}, 5
    s_add_u32 s4, s4, s{sH}
    s_lshl_b32 s4, s4, 13
    s_lshl_b32 s5, s3, 11
    s_add_u32 s4, s4, s5
    s_add_u32 s4, s4, {WS_VX}
    buffer_load_dwordx4 {vr(VX,4)}, v{vL16}, s[{SWS}:{SWS+3}], s4 offen sc1
    buffer_load_dwordx4 {vr(VX+4,4)}, v{vL16}, s[{SWS}:{SWS+3}], s4 offen offset:1024 sc1
    s_xor_b32 s{sT2}, s{sKXcur}, {KXB ^ (KXB + 8192)}
    s_min_u32 s{sT0}, s{sT0}, 63
    """)
    kx_dma(a, sT2, sT0)
    a(f"""
    s_add_u32 s5, s{sStep}, 2
    s_lshr_b32 s5, s5, 1
    s_min_u32 s5, s5, 31
    s_lshl_b32 s5, s5, 7
    s_add_u32 s5, s5, {F_KV}
    v_mov_b32 v{vT}, 0
    buffer_load_dword v{vFlag}, v{vT}, s[{SWS}:{SWS+3}], s5 offen sc1
    v_add_u32 v{vT+2}, {MEMB}, v{vL16}
    """)
    cyc(a, 90)
    q0,q1,k0,k1 = ACC, ACC+4, ACC+8, ACC+12
    gemm_pass(a, ['Q','K'], {('Q',0):q0,('Q',1):q1,('K',0):k0,('K',1):k1})
    cyc(a, 91)
    a.nop(8)
    for (qa, ka) in ((q0,k0),(q1,k1)):
        a(f"v_add_f32 v{qa}, v{qa}, v{qa+1}\nv_add_f32 v{qa+2}, v{qa+2}, v{qa+3}")
        a(f"v_add_f32 v{ka}, v{ka}, v{ka+1}\nv_add_f32 v{ka+2}, v{ka+2}, v{ka+3}")
        a(f"v_cvt_pk_bf16_f32 v{ka}, v{ka}, v{ka+2}\nv_cvt_pk_bf16_f32 v{ka+1}, v{qa}, v{qa+2}")
    a(f"ds_write_b64 v{vXQw}, {vr(k0,2)}\nds_write_b64 v{vXQw}, {vr(k1,2)} offset:512")
    zero(a, q0, 8)
    a("s_nop 1")
    gemm_pass(a, ['V'], {('V',0):q0,('V',1):q1})
    cyc(a, 92)
    a.nop(8)
    a(f"v_add_f32 v{q0}, v{q0}, v{q0+1}\nv_add_f32 v{q0+2}, v{q0+2}, v{q0+3}")
    a(f"v_add_f32 v{q1}, v{q1}, v{q1+1}\nv_add_f32 v{q1+2}, v{q1+2}, v{q1+3}")
    a(f"v_cvt_pk_bf16_f32 v{q0}, v{q0}, v{q0+2}\nv_cvt_pk_bf16_f32 v{q0+2}, v{q1}, v{q1+2}\nv_mov_b32 v{q0+1}, 0\nv_mov_b32 v{q0+3}, 0")
    vp0, vp1 = q0, q0+2
    a(f"""
    s_lshl_b32 s4, s{sStep}, 5
    s_add_u32 s4, s4, s{sH}
    s_lshl_b32 s{sT3}, s4, 12          ; (s*32+h)*4096 (KM)
    s_lshl_b32 s4, s4, 11
    s_lshl_b32 s5, s3, 9
    s_add_u32 s4, s4, s5
    s_add_u32 s4, s4, {WS_VM}
    buffer_store_dword v{vp0}, v{vL4}, s[{SWS}:{SWS+3}], s4 offen sc1
    buffer_store_dword v{vp1}, v{vL4}, s[{SWS}:{SWS+3}], s4 offen offset:256 sc1
    s_waitcnt lgkmcnt(0)
    s_barrier
    """)
    cyc(a, 99)
    for ks in range(4):
        for x2 in range(2):
            a(f"ds_read_b64_tr_b16 {vr(LD+4*ks+2*x2,2)}, v{vTrX} offset:{(32*ks+16*x2)*32}")
    a(f"v_add_u32 v{vT}, s{sKXcur}, v{vL16}")
    sm, s1, s2 = ACC+4, ACC+8, ACC+12
    def kxread(i): a(f"ds_read_b128 {vr(AS+4*(i&1),4)}, v{vT} offset:{i*1024}")
    kxread(0); kxread(1)
    a("s_waitcnt lgkmcnt(2)")
    Lk = [a.uniq("L_km") for _ in range(5)]
    a(f"s_lshl_b32 s5, s3, 10\ns_add_u32 s4, s{sT3}, s5\ns_add_u32 s4, s4, {WS_KM}")
    for w in range(4):
        a(f"s_cmp_lg_u32 s3, {w}\ns_cbranch_scc1 {Lk[w]}")
        a(f"buffer_store_dwordx4 {vr(LD+4*w,4)}, v{vL16}, s[{SWS}:{SWS+3}], s4 offen sc1")
        a.lab(Lk[w])
    a(f"s_cmp_eq_u32 s{sStep}, 63\ns_cbranch_scc1 L_chain_last")
    for ks in range(4):
        c = "0" if ks == 0 else vr(sm,4)
        a(f"v_mfma_f32_16x16x32_bf16 {vr(sm,4)}, {vr(LD+4*ks,4)}, {vr(LD+4*ks,4)}, {c}")
    for i in range(8):
        t, ks = i >> 2, i & 3
        d = s1 if t == 0 else s2
        a(f"s_waitcnt lgkmcnt({1 if i < 7 else 0})")
        c = "0" if ks == 0 else vr(d,4)
        a(f"v_mfma_f32_16x16x32_bf16 {vr(d,4)}, {vr(AS+4*(i&1),4)}, {vr(LD+4*ks,4)}, {c}")
        if i + 2 < 8: kxread(i + 2)
    a.nop(8)
    cyc(a, 100)
    vals = [sm, sm+1, s1, s1+1, s1+2, s1+3, s2, s2+1, s2+2, s2+3]
    mx, t2 = vT, vT+1
    a(f"v_max3_f32 v{mx}, v{vals[0]}, v{vals[1]}, v{vals[2]}")
    a(f"v_max3_f32 v{t2}, v{vals[3]}, v{vals[4]}, v{vals[5]}")
    a(f"v_max3_f32 v{mx}, v{mx}, v{vals[6]}, v{vals[7]}")
    a(f"v_max3_f32 v{t2}, v{t2}, v{vals[8]}, v{vals[9]}")
    a(f"v_max_f32 v{mx}, v{mx}, v{t2}")
    for sw in ("v_permlane16_swap_b32", "v_permlane32_swap_b32"):
        a(f"v_mov_b32 v{t2}, v{mx}\ns_nop 1\n{sw} v{mx}, v{t2}\ns_nop 1\nv_max_f32 v{mx}, v{mx}, v{t2}")
    a(f"v_mul_f32 v{mx}, s{sC1}, v{mx}")
    for v in vals: a(f"v_fma_f32 v{v}, v{v}, s{sC1}, -v{mx}")
    for v in vals: a(f"v_exp_f32 v{v}, v{v}")
    pm, px, ones, lr = LD, LD+4, LD+8, LD+12
    a(f"v_mov_b32 v{pm+1}, 0")
    for j in range(4): a(f"v_mov_b32 v{ones+j}, 0x3f803f80")
    a(f"v_cvt_pk_bf16_f32 v{pm}, v{sm}, v{sm+1}")
    a(f"v_cvt_pk_bf16_f32 v{px}, v{s1}, v{s1+1}\nv_cvt_pk_bf16_f32 v{px+1}, v{s1+2}, v{s1+3}")
    a(f"v_cvt_pk_bf16_f32 v{px+2}, v{s2}, v{s2+1}\nv_cvt_pk_bf16_f32 v{px+3}, v{s2+2}, v{s2+3}")
    o0, o1 = AS, AS+4
    a("s_waitcnt vmcnt(6)\ns_nop 0")
    a(f"v_mfma_f32_16x16x32_bf16 {vr(lr,4)}, {vr(ones,4)}, {vr(px,4)}, 0")
    a(f"v_mfma_f32_16x16x32_bf16 {vr(o0,4)}, {vr(VX,4)}, {vr(px,4)}, 0")
    a(f"v_mfma_f32_16x16x32_bf16 {vr(o1,4)}, {vr(VX+4,4)}, {vr(px,4)}, 0")
    a("s_nop 3")
    a(f"v_mfma_f32_16x16x16_bf16 {vr(lr,4)}, {vr(ones,2)}, {vr(pm,2)}, {vr(lr,4)}")
    a(f"v_mfma_f32_16x16x16_bf16 {vr(o0,4)}, {vr(vp0,2)}, {vr(pm,2)}, {vr(o0,4)}")
    a(f"v_mfma_f32_16x16x16_bf16 {vr(o1,4)}, {vr(vp1,2)}, {vr(pm,2)}, {vr(o1,4)}")
    zero(a, ACC+4, 12)
    a.nop(2)
    a(f"v_rcp_f32 v{mx}, v{lr}\ns_nop 0")
    for j in range(8): a(f"v_mul_f32 v{o0+j}, v{o0+j}, v{mx}")
    a(f"v_cvt_pk_bf16_f32 v{o0}, v{o0}, v{o0+1}\nv_cvt_pk_bf16_f32 v{o0+1}, v{o0+2}, v{o0+3}")
    a(f"v_cvt_pk_bf16_f32 v{o1}, v{o1}, v{o1+1}\nv_cvt_pk_bf16_f32 v{o1+1}, v{o1+2}, v{o1+3}")
    a(f"s_mov_b64 exec, s[{sMask}:{sMask+1}]")
    a(f"ds_write_b64 v{vXOw}, {vr(o0,2)}\nds_write_b64 v{vXOw}, {vr(o1,2)} offset:512")
    a("s_mov_b64 exec, -1")
    WA = [52,56,60,40,44,48,16,20,28]
    zero(a, 40, 12); zero(a, 16, 8); zero(a, 28, 4)
    a("s_waitcnt lgkmcnt(0)\ns_barrier")
    a(f"v_add_u32 v{vT+2}, {XO}, v{vL16}")
    a(f"ds_read_b128 {vr(LD,4)}, v{vT+2}\nds_read_b128 {vr(LD+4,4)}, v{vT+2} offset:1024")
    a(f"""
    s_and_b32 s4, s{sStep}, 1
    s_mul_i32 s{sPart}, s4, {PART_SZ}
    s_add_u32 s{sPart}, s{sPart}, {CH_PART}
    s_lshl_b32 s4, s3, 13
    s_add_u32 s{sPst}, s{sPart}, s4
    s_add_u32 s{sPst}, s{sPst}, s{sHoff}        ; + w*8192 + h*256
    s_waitcnt lgkmcnt(0)
    """)
    cyc(a, 101)
    def tail(slow):
        sfx = " sc1" if slow else ""
        tg = "s" if slow else "f"
        def post(j):
            d = WA[j]
            a(f"v_add_f32 v{d}, v{d}, v{d+1}\nv_add_f32 v{d+2}, v{d+2}, v{d+3}\ns_add_u32 s4, s{sPst}, {j*4*8192}\nv_cvt_pk_bf16_f32 v{d}, v{d}, v{d+2}\nv_min_u32 v{d}, 0xfffffffe, v{d}")
            a(f"buffer_store_dword v{d}, v{vL4}, s[{SWS}:{SWS+3}], s4 offen{sfx}")
        for j in range(9):
            smf(a, WA[j], LD, WM[('O',j,0)])
            smf(a, WA[j], LD+4, WM[('O',j,1)])
            if j >= 2: post(j - 2)
        post(7)
        a.nop(3)
        post(8)
        cyc(a, 12)
        a(f"s_cmp_eq_u32 s{sRT}, -1\ns_cbranch_scc1 L_nored")
        a(f"""
        s_lshl_b32 s4, s{sRT}, 13
        s_add_u32 s{sT0}, s{sPart}, s4
        s_add_u32 s{sT1}, s{sT0}, 4096
        v_add_u32 v{vT}, {SEL}, v{vL16}
        ds_read_b128 v[60:63], v{vT}
        """)
        a.lab(f"L_poll1{tg}")
        RL = 16
        for j in range(8):
            a(f"buffer_load_dwordx4 {vr(RL+4*j,4)}, v{vL16}, s[{SWS}:{SWS+3}], s{sT0 if j < 4 else sT1} offen offset:{(j&3)*1024} sc1")
        a("s_waitcnt lgkmcnt(0)")
        for j in range(8):
            b = RL + 4*j
            a(f"s_waitcnt vmcnt({7-j})")
            if j == 0: a(f"v_max3_u32 v{vT}, v{b}, v{b+1}, v{b+2}\nv_mov_b32 v{vT+1}, v{b+3}")
            else: a(f"v_max3_u32 v{vT}, v{b}, v{b+1}, v{vT}\nv_max3_u32 v{vT+1}, v{b+2}, v{b+3}, v{vT+1}")
            a(f"v_mfma_f32_16x16x32_bf16 v[48:51], {vr(b,4)}, v[60:63], " + ("0" if j == 0 else "v[48:51]"))
        a(f"v_max_u32 v{vT}, v{vT}, v{vT+1}\nv_cmp_eq_u32 vcc, -1, v{vT}")
        Lok = a.uniq("L_p1ok")
        a(f"s_cbranch_vccz {Lok}")
        spin_check(a)
        a(f"s_branch L_poll1{tg}")
        a.lab(Lok)
        LA = a.uniq("L_msA"); LB = a.uniq("L_msB")
        a(f"""
        s_add_u32 s4, s{sStep}, 1
        s_and_b32 s4, s4, 3
        s_mul_i32 s{sMemWr}, s4, 9216
        s_add_u32 s{sMemWr}, s{sMemWr}, {CH_MEM}
        s_cmp_lt_u32 s4, 2
        s_cbranch_scc1 {LA}
        s_sub_u32 s{sMemWr}, s{sMemWr}, 18432
        v_mov_b32 v{vT+2}, v{vMstB}
        s_branch {LB}
        {LA}:
        v_mov_b32 v{vT+2}, v{vMstA}
        {LB}:
        s_nop 1
        v_cvt_pk_bf16_f32 v52, v48, v49
        v_cvt_pk_bf16_f32 v53, v50, v51
        v_min_u32 v52, 0xfffffffe, v52
        v_min_u32 v53, 0xfffffffe, v53
        v_cndmask_b32 v52, v52, -1, s[{sRearm}:{sRearm+1}]
        v_cndmask_b32 v53, v53, -1, s[{sRearm}:{sRearm+1}]
        buffer_store_dwordx2 v[52:53], v{vT+2}, s[{SWS}:{SWS+3}], s{sMemWr} offen{sfx}
        v_mov_b32 v56, -1
        v_mov_b32 v57, -1
        v_mov_b32 v58, -1
        v_mov_b32 v59, -1
        """)
        for j in range(8):
            a(f"buffer_store_dwordx4 v[56:59], v{vL16}, s[{SWS}:{SWS+3}], s{sT0 if j < 4 else sT1} offen offset:{(j&3)*1024}{sfx}")
    a(f"s_cmp_lg_u32 s{sMode}, 0\ns_cbranch_scc1 L_tail_slow")
    tail(False)
    a("s_branch L_nored")
    a.lab("L_tail_slow")
    tail(True)
    a.lab("L_nored")
    cyc(a, 13)
    a(f"""
    s_add_u32 s4, s{sStep}, 1
    s_and_b32 s4, s4, 3
    s_mul_i32 s{sMemRd}, s4, 9216
    s_lshl_b32 s5, s3, 10
    s_add_u32 s{sMemRd}, s{sMemRd}, s5
    s_add_u32 s{sMemRd}, s{sMemRd}, {CH_MEM}
    s_add_u32 s{sT0}, s{sMemRd}, 4096
    s_add_u32 s{sT1}, s{sMemRd}, 8192
    s_add_u32 s5, s5, {MEMB}
    v_add_u32 v{vT+2}, s5, v{vL16}
    """)
    a.lab("L_poll2")
    a(f"buffer_load_dwordx4 v[16:19], v{vL16}, s[{SWS}:{SWS+3}], s{sMemRd} offen sc1")
    a(f"buffer_load_dwordx4 v[20:23], v{vL16}, s[{SWS}:{SWS+3}], s{sT0} offen sc1")
    a(f"v_mov_b32 v24, 0\nv_mov_b32 v25, 0\nv_mov_b32 v26, 0\nv_mov_b32 v27, 0")
    a(f"s_cmp_lg_u32 s3, 0\ns_cbranch_scc1 L_p2a")
    a(f"s_nop 1\nbuffer_load_dwordx4 v[24:27], v{vL16}, s[{SWS}:{SWS+3}], s{sT1} offen sc1")
    a.lab("L_p2a")
    a("s_waitcnt vmcnt(0)")
    a(f"""
    v_max3_u32 v{vT}, v16, v17, v18
    v_max3_u32 v{vT+1}, v19, v20, v21
    v_max3_u32 v{vT}, v22, v23, v{vT}
    v_max3_u32 v{vT+1}, v24, v25, v{vT+1}
    v_max3_u32 v{vT}, v26, v27, v{vT}
    v_max_u32 v{vT}, v{vT}, v{vT+1}
    v_cmp_eq_u32 vcc, -1, v{vT}
    """)
    Lok2 = a.uniq("L_p2ok")
    a(f"s_cbranch_vccz {Lok2}")
    spin_check(a)
    a("s_branch L_poll2")
    a.lab(Lok2)
    cyc(a, 14)
    a(f"ds_write_b128 v{vT+2}, v[16:19]\nds_write_b128 v{vT+2}, v[20:23] offset:4096")
    a(f"s_cmp_lg_u32 s3, 0\ns_cbranch_scc1 L_p2b\nds_write_b128 v{vT+2}, v[24:27] offset:8192")
    a.lab("L_p2b")
    zero(a, ACC, 16)
    a("s_waitcnt lgkmcnt(0)\ns_barrier")
    a(f"""
    s_add_u32 s{sStep}, s{sStep}, 1
    s_xor_b32 s{sKXcur}, s{sKXcur}, {KXB ^ (KXB + 8192)}
    s_cmp_lg_u32 s3, 0
    s_cbranch_scc1 L_noprog
    s_lshl_b32 s4, s{sH}, 2
    s_add_u32 s4, s4, {F_PROG}
    v_mov_b32 v{vT}, 0
    v_mov_b32 v{vT+1}, s{sStep}
    s_mov_b64 exec, 1
    buffer_store_dword v{vT+1}, v{vT}, s[{SWS}:{SWS+3}], s4 offen sc1
    s_mov_b64 exec, -1
    L_noprog:
    """)
    cyc(a, 15)
    a("s_branch L_step")
    a.lab("L_chain_last")
    a(f"""
    s_waitcnt vmcnt(0)
    s_barrier
    s_cmp_lg_u32 s3, 0
    s_cbranch_scc1 L_chain_end
    s_lshl_b32 s4, s{sH}, 2
    s_add_u32 s4, s4, {F_PROG}
    v_mov_b32 v{vT}, 0
    v_mov_b32 v{vT+1}, 64
    s_mov_b64 exec, 1
    buffer_store_dword v{vT+1}, v{vT}, s[{SWS}:{SWS+3}], s4 offen sc1
    s_mov_b64 exec, -1
    L_chain_end:
    """)
    stamp(a, 3, 12, 13)
    cyc_out(a, 16, [90,91,92,99,100,101,12,13,14,15]+[S_SPIN], 12, 13)
    a("s_waitcnt vmcnt(0)")

def chain(a):
    chain_init(a)
    chain_step(a)
```

```python
from asmlib import *
from layout import *
import struct
def fb(f): return "0x%08x" % struct.unpack("<I", struct.pack("<f", f))[0]

P = dict(x=16, mem0=18, Wq=20, Wk=22, Wv=24, Wo=26, seg=28, xb=30, Wg=32, Wu=34, Wd=36, gw=38, out=40, dbg=42, ws=44)
SWS=48; SA=52; SB0=56; SB1=60; SOUT=64
S_SPIN=47
class Cfg:
    STAMPS = False
    FORCE_SLOW = False
WS_STAMP = 0x7000000

def srd(a, dst, ptr, size, add=None):
    if add is None:
        a(f"s_mov_b32 s{dst}, s{ptr}\ns_mov_b32 s{dst+1}, s{ptr+1}")
    else:
        a(f"s_add_u32 s{dst}, s{ptr}, {add}\ns_addc_u32 s{dst+1}, s{ptr+1}, 0")
    a(f"s_mov_b32 s{dst+2}, {size}\ns_mov_b32 s{dst+3}, 0x20000")

def stamp(a, i, vd=1, vz=30):
    if not Cfg.STAMPS: return
    L = a.uniq("L_st")
    a(f"""
    s_cmp_lg_u32 s3, 0
    s_cbranch_scc1 {L}
    s_memrealtime s[96:97]
    s_lshl_b32 s98, s2, 8
    s_add_u32 s98, s98, {WS_STAMP + 4*i}
    s_waitcnt lgkmcnt(0)
    v_mov_b32 v{vd}, s96
    v_mov_b32 v{vz}, 0
    s_mov_b64 s[96:97], exec
    s_mov_b64 exec, 1
    buffer_store_dword v{vd}, v{vz}, s[{SWS}:{SWS+3}], s98 offen
    s_mov_b64 exec, s[96:97]
    """)
    a.lab(L)
def cyc(a, acc=None):
    if not Cfg.STAMPS: return
    a("s_memtime s[94:95]\ns_waitcnt lgkmcnt(0)")
    if acc is not None:
        a(f"s_sub_u32 s93, s94, s89\ns_add_u32 s{acc}, s{acc}, s93")
    a("s_mov_b32 s89, s94")
def cyc_out(a, idx, regs, vd=1, vz=30):
    if not Cfg.STAMPS: return
    L = a.uniq("L_co")
    a(f"s_cmp_lg_u32 s3, 0\ns_cbranch_scc1 {L}\ns_lshl_b32 s98, s2, 8\ns_add_u32 s98, s98, {WS_STAMP + 4*idx}\nv_mov_b32 v{vz}, 0\ns_mov_b64 s[96:97], exec\ns_mov_b64 exec, 1")
    for i, r in enumerate(regs):
        a(f"v_mov_b32 v{vd}, s{r}\nbuffer_store_dword v{vd}, v{vz}, s[{SWS}:{SWS+3}], s98 offen offset:{4*i}\ns_nop 1")
    a("s_mov_b64 exec, s[96:97]")
    a.lab(L)

def prologue(a):
    a("""
    s_cmp_ge_u32 s2, 256
    s_cbranch_scc1 L_exit
    s_load_dwordx16 s[16:31], s[0:1], 0
    s_load_dwordx8 s[32:39], s[0:1], 64
    s_load_dwordx4 s[40:43], s[0:1], 96
    s_load_dwordx2 s[44:45], s[0:1], 112
    v_lshrrev_b32 v1, 6, v0
    v_and_b32 v0, 63, v0
    s_mov_b32 s47, 0
    v_readfirstlane_b32 s3, v1
    s_waitcnt lgkmcnt(0)
    """)
    srd(a, SWS, P['ws'], 0x10000000)

SPIN_MAX = 0x20000
def spin_check(a):
    a(f"s_add_u32 s{S_SPIN}, s{S_SPIN}, 1\ns_cmp_gt_u32 s{S_SPIN}, {SPIN_MAX}\ns_cbranch_scc1 L_exit")

def wave_wait_flag(a, soff, target, vt=28, sleep=True, cmp="ge"):
    L = a.uniq("L_wf")
    if isinstance(soff, int): so = f"s{soff}"
    else:
        a(f"s_mov_b32 s46, {soff}"); so = "s46"
    a(f"v_mov_b32 v{vt}, 0")
    a.lab(L)
    a(f"buffer_load_dword v{vt+1}, v{vt}, s[{SWS}:{SWS+3}], {so} offen sc1")
    a("s_waitcnt vmcnt(0)")
    a(f"v_readfirstlane_b32 s4, v{vt+1}\ns_nop 1")
    Ld = a.uniq("L_wfd")
    a(f"s_cmp_ge_u32 s4, {target}\ns_cbranch_scc1 {Ld}")
    if sleep: a("s_sleep 8")
    spin_check(a)
    a(f"s_branch {L}")
    a.lab(Ld)

def wg_wait_flag(a, soff, target, vt=28):
    L = a.uniq("L_wg")
    a(f"s_cmp_lg_u32 s3, 0\ns_cbranch_scc1 {L}")
    wave_wait_flag(a, soff, target, vt)
    a.lab(L)
    a("s_barrier")

def wave_signal(a, soff, tmp=28):
    if isinstance(soff, int): so = f"s{soff}"
    else:
        a(f"s_mov_b32 s46, {soff}"); so = "s46"
    a(f"""
    s_mov_b64 s[8:9], exec
    s_mov_b64 exec, 1
    v_mov_b32 v{tmp}, 0
    v_mov_b32 v{tmp+1}, 1
    buffer_atomic_add v{tmp+1}, v{tmp}, s[{SWS}:{SWS+3}], {so} offen
    s_mov_b64 exec, s[8:9]
    """)
def signal_flag(a, soff, tmp=28):
    L = a.uniq("L_sig")
    a(f"s_cmp_lg_u32 s3, 0\ns_cbranch_scc1 {L}")
    wave_signal(a, soff, tmp)
    a.lab(L)

def init_wait(a, vt=28):
    L = a.uniq("L_iw"); Ld = a.uniq("L_iwd")
    a(f"s_cmp_lg_u32 s3, 0\ns_cbranch_scc1 {Ld}\nv_mov_b32 v{vt}, 0")
    a.lab(L)
    a(f"global_load_dword v{vt+1}, v{vt}, s[{P['dbg']}:{P['dbg']+1}] offset:16 sc1\ns_waitcnt vmcnt(0)\nv_readfirstlane_b32 s4, v{vt+1}\ns_nop 1\ns_cmp_ge_u32 s4, 32\ns_cbranch_scc1 {Ld}\ns_sleep 4")
    spin_check(a)
    a(f"s_branch {L}")
    a.lab(Ld)
```

```python
F_KV   = 0x0000
F_Q    = 0x1000
F_H    = 0x2000
F_O    = 0x3000
F_PROG = 0x5000
F_G    = 0x6000
F_END  = 0x6400
CH_PART = 0x10000
PART_SZ = 36*32*256
CH_MEM  = 0xA0000
WS_KX = 0x0100000
WS_VX = 0x1100000
WS_QX = 0x2100000
WS_KM = 0x3100000
WS_VM = 0x3900000
WS_OX = 0x4100000
WS_H  = 0x5100000
WS_BB = 0x6300000
WS_G  = 0x6800000
WS_END = 0x6900000
KA = dict(x=0, mem0=8, Wq=16, Wk=24, Wv=32, Wo=40, seg=48, xb=56, Wg=64, Wu=72, Wd=80, gw=88, out=96, dbg=104, ws=112)
```

```python
from common import *

sTB=68; sTBend=69; sXBcur=70; sXBnxt=71; sTokOff=72; sT0=73; sT1=74; sDelta=75; sEbase=76; sPrevTB=77; sFlag=78; sRowStride=79; sColOff0=80; sColOff1=81; sEtt=82; sFlagBase=83; sWSbase=84; sJobSlice=85; sJob2Slice=86; sJob2TB=87; sJob2End=88
XB0=0; XB1=73728
vTr0=2; vTr1=3; vXo0=4; vXo1=5; vAq=6
vE=10; vT=12
ACC=32; AF=96; ET=120
def Breg(kk, nt):
    i = (kk*2+nt)*4
    return 256+i if i < 256 else 224 + (i-256)

def w1_bload(a, kind, rowstride):
    a(f"""
    v_lshrrev_b32 v12, 4, v0
    v_and_b32 v13, 15, v0
    v_lshlrev_b32 v14, 2, v12
    v_xor_b32 v13, v13, v14
    v_lshlrev_b32 v13, 4, v13
    s_mov_b32 s4, {rowstride}
    v_mul_lo_u32 v12, v12, s4
    v_add_u32 v11, v12, v13
    """)
    a(f"""
    v_lshrrev_b32 v12, 5, v0         ; hi
    v_lshlrev_b32 v12, 3, v12        ; 8*hi
    v_bfe_u32 v13, v0, 2, 2          ; r
    v_add_u32 v12, v12, v13
    v_lshlrev_b32 v12, 8, v12        ; (8hi+r)*256
    v_bfe_u32 v14, v0, 4, 1          ; colhalf
    v_lshlrev_b32 v14, 1, v14
    v_bfe_u32 v15, v0, 1, 1          ; cq>>1
    v_add_u32 v14, v14, v15
    v_lshlrev_b32 v13, 2, v13        ; 4r
    v_and_b32 v15, 1, v0
    v_lshlrev_b32 v15, 3, v15        ; (cq&1)*8
    v_add_u32 v12, v12, v15
    """)
    if kind in ('KQ', 'V'):
        a(f"""
        s_and_b32 s4, s3, 1
        s_lshl_b32 s4, s4, 3
        s_lshr_b32 s5, s3, 1
        s_lshl_b32 s5, s5, 14        ; sub*16384
        v_add_u32 v16, s4, v14
        v_xor_b32 v17, v16, v13
        v_lshlrev_b32 v17, 4, v17
        v_add3_u32 v{vTr0}, v17, v12, s5
        v_add_u32 v16, 4, v16
        v_xor_b32 v17, v16, v13
        v_lshlrev_b32 v17, 4, v17
        v_add3_u32 v{vTr1}, v17, v12, s5
        """)
    else:
        a(f"""
        s_lshl_b32 s4, s3, 2
        v_add_u32 v16, s4, v14
        v_xor_b32 v17, v16, v13
        v_lshlrev_b32 v17, 4, v17
        v_add_u32 v{vTr0}, v17, v12
        v_add_u32 v{vTr1}, 16384, v{vTr0}
        """)
    NS = 5
    def issue(u):
        slot = (u % NS) * 32768
        for sub in range(2):
            for jj in range(4):
                a(f"s_lshl_b32 s5, s3, 12")
                a(f"s_add_u32 m0, s5, {slot + sub*16384 + jj*1024}")
                a(f"s_mul_i32 s4, s3, {16*rowstride}")
                a(f"s_add_u32 s4, s4, {(64*u+4*jj)*rowstride}")
                a(f"buffer_load_dwordx4 v11, s[{SB0 if sub==0 else SB1}:{(SB0 if sub==0 else SB1)+3}], s4 offen lds")
    for u in range(NS): issue(u)
    for u in range(9):
        issued = min(max(u + NS - 2, NS - 1), 8)
        n_after = (issued - u) * 8
        a(f"s_waitcnt vmcnt({n_after})")
        a("s_barrier")
        if u > 0 and u - 1 + NS <= 8:
            issue(u - 1 + NS)
        slot = (u % NS) * 32768
        a(f"v_add_u32 v18, {slot}, v{vTr0}\nv_add_u32 v19, {slot}, v{vTr1}")
        for k4 in range(4):
            kk = 4*u + k4
            for nt in range(2):
                b = Breg(kk, nt)
                for x in range(2):
                    a(f"ds_read_b64_tr_b16 {R(b+2*x,2)}, v{18+nt} offset:{(16*k4+4*x)*256}")
        a("s_waitcnt lgkmcnt(0)")
    a("s_barrier")

def w1_setup_x(a):
    a(f"""
    v_lshrrev_b32 v12, 3, v0
    s_movk_i32 s4, 1152
    v_mul_lo_u32 v12, v12, s4
    v_and_b32 v13, 7, v0              ; slot
    v_lshrrev_b32 v14, 4, v0
    v_xor_b32 v15, v13, v14
    v_lshlrev_b32 v15, 4, v15
    v_add_u32 v{vXo0}, v12, v15
    v_add_u32 v14, 4, v14
    v_xor_b32 v15, v13, v14
    v_lshlrev_b32 v15, 4, v15
    v_add_u32 v{vXo1}, v12, v15
    """)
    a(f"""
    v_and_b32 v12, 31, v0             ; i
    v_lshrrev_b32 v13, 5, v0          ; hi
    v_bfe_u32 v14, v0, 1, 3           ; f=(i>>1)&7
    v_lshlrev_b32 v12, 7, v12
    """)
    for q in range(4):
        a(f"""
        v_add_u32 v15, {2*q}, v13
        v_xor_b32 v15, v15, v14
        v_lshlrev_b32 v15, 4, v15
        v_add_u32 v{vAq+q}, v12, v15
        """)

def x_dma(a, idx):
    kc, o = idx >> 1, idx & 1
    a(f"s_add_u32 m0, s{sXBnxt}, {kc*8192 + o*1024}")
    a(f"s_add_u32 s{sT0}, s{sTokOff}, {kc*128 + o*8*1152}")
    a(f"buffer_load_dwordx4 v{vXo0+o}, s[{SA}:{SA+3}], s{sT0} offen lds")

def w1_epilogue(a, kind):
    a.nop(12)
    def store(regs4, off_s, x):
        a(f"buffer_store_dwordx4 {vr(regs4,4)}, v{vE}, s[{SWS}:{SWS+3}], s{off_s} offen offset:{x*512} sc1")
    if kind in ('KQ','V'):
        fstep = 1024 if kind == 'KQ' else 2048
        t = 0
        for tt in range(2):
            for nt in range(2):
                base = ACC + (tt*2+nt)*16
                a(f"s_add_u32 s{sT1}, s{sEbase}, {nt*fstep}")
                if tt: a(f"s_add_u32 s{sT1}, s{sT1}, s{sEtt}")
                for x in range(2):
                    d = ET + (t % 4)*4; t += 1
                    for j,rr in enumerate([base+4*x, base+4*x+2, base+8+4*x, base+8+4*x+2]):
                        a(f"v_cvt_pk_bf16_f32 v{d+j}, v{rr}, v{rr+1}")
                    store(d, sT1, x)
    else:
        t = 0
        c1 = -2.0*0.7978845608028654*1.4426950408889634
        c2 = c1*0.044715
        a(f"s_mov_b32 s6, {fb(c2)}\ns_mov_b32 s7, {fb(c1)}\nv_mov_b32 v{ET+16}, s7")
        for tt in range(2):
            g = ACC + (tt*2+0)*16; u = ACC + (tt*2+1)*16
            a(f"s_mov_b32 s{sT1}, s{sEbase}")
            if tt: a(f"s_add_u32 s{sT1}, s{sT1}, s{sEtt}")
            for grp in range(4):
                rs = [4*grp+j for j in range(4)]
                tm = [ET+20+j for j in range(4)]
                for j,rr in enumerate(rs): a(f"v_mul_f32 v{tm[j]}, v{g+rr}, v{g+rr}")
                for j,rr in enumerate(rs): a(f"v_fma_f32 v{tm[j]}, v{tm[j]}, s6, v{ET+16}")
                for j,rr in enumerate(rs): a(f"v_mul_f32 v{tm[j]}, v{tm[j]}, v{g+rr}")
                for j,rr in enumerate(rs): a(f"v_exp_f32 v{tm[j]}, v{tm[j]}")
                for j,rr in enumerate(rs): a(f"v_mul_f32 v{g+rr}, v{g+rr}, v{u+rr}")
                for j,rr in enumerate(rs): a(f"v_add_f32 v{tm[j]}, 1.0, v{tm[j]}")
                for j,rr in enumerate(rs): a(f"v_rcp_f32 v{tm[j]}, v{tm[j]}")
                a("s_nop 0")
                for j,rr in enumerate(rs): a(f"v_mul_f32 v{g+rr}, v{g+rr}, v{tm[j]}")
            for x in range(2):
                d = ET + (t % 4)*4; t += 1
                for j,rr in enumerate([g+4*x, g+4*x+2, g+8+4*x, g+8+4*x+2]):
                    a(f"v_cvt_pk_bf16_f32 v{d+j}, v{rr}, v{rr+1}")
                store(d, sT1, x)
    return 8 if kind != 'H' else 4

def w1_main(a, kind, ebase_code):
    nst = 8 if kind != 'H' else 4
    fragmul = 4096 if kind == 'KQ' else 1024
    a(f"""
    v_lshrrev_b32 v12, 5, v0
    v_lshlrev_b32 v12, 8, v12          ; hi*256
    v_and_b32 v13, 15, v0
    v_lshlrev_b32 v13, 4, v13
    v_add_u32 v12, v12, v13
    v_bfe_u32 v13, v0, 4, 1
    v_mul_u32_u24 v13, {fragmul}, v13
    v_add_u32 v{vE}, v12, v13
    """)
    w1_setup_x(a)
    init_wait(a)
    a(f"""
    s_mov_b32 s{sXBnxt}, {XB0}
    s_lshl_b32 s4, s3, 11
    s_add_u32 s{sXBnxt}, s{sXBnxt}, s4
    s_mul_i32 s{sTokOff}, s{sTB}, {64*1152}
    s_mul_i32 s5, s3, {16*1152}
    s_add_u32 s{sTokOff}, s{sTokOff}, s5
    """)
    for i in range(18): x_dma(a, i)
    a(f"""
    s_mov_b32 s{sXBcur}, {XB0}
    s_mov_b32 s{sPrevTB}, -1
    s_waitcnt vmcnt(0)
    s_barrier
    """)
    Lloop = a.uniq("L_w1loop"); Lnodma = a.uniq("L_w1x"); Ldone = a.uniq("L_w1done")
    if Cfg.STAMPS: a("s_mov_b32 s90, 0\ns_mov_b32 s91, 0\ns_mov_b32 s92, 0")
    a.lab(Lloop)
    cyc(a)
    a(f"""
    s_add_u32 s10, s{sTB}, 1
    s_xor_b32 s{sXBnxt}, s{sXBcur}, {XB0 ^ XB1}
    s_lshl_b32 s4, s3, 11
    s_mul_i32 s{sTokOff}, s10, {64*1152}
    s_mul_i32 s5, s3, {16*1152}
    s_add_u32 s{sTokOff}, s{sTokOff}, s5
    s_mov_b32 s11, s{sXBnxt}
    s_add_u32 s{sXBnxt}, s{sXBnxt}, s4
    """)
    for q in range(4): a(f"v_add_u32 v{ET+q}, s{sXBcur}, v{vAq+q}")
    def aread(kk):
        kc, q = kk >> 2, kk & 3
        buf = AF + (kk % 3)*8
        for tt in range(2):
            off = kc*8192 + tt*4096
            if kc >= 4: off -= 32768
            a(f"ds_read_b128 {vr(buf+4*tt,4)}, v{ET+q} offset:{off}")
    aread(0); aread(1)
    dma_i = 0
    for kk in range(36):
        if kk + 2 < 36:
            if (kk + 2) == 16:
                for q in range(4): a(f"v_add_u32 v{ET+q}, 0x8000, v{ET+q}")
            aread(kk + 2)
            a("s_waitcnt lgkmcnt(4)")
        elif kk + 1 < 36:
            a("s_waitcnt lgkmcnt(2)")
        else:
            a("s_waitcnt lgkmcnt(0)")
        buf = AF + (kk % 3)*8
        for tt in range(2):
            for nt in range(2):
                acc = ACC + (tt*2+nt)*16
                c = "0" if kk == 0 else vr(acc,16)
                if kind == 'V':
                    a(f"v_mfma_f32_32x32x16_bf16 {vr(acc,16)}, {vr(buf+4*tt,4)}, {R(Breg(kk,nt),4)}, {c}")
                else:
                    a(f"v_mfma_f32_32x32x16_bf16 {vr(acc,16)}, {R(Breg(kk,nt),4)}, {vr(buf+4*tt,4)}, {c}")
            if kk % 2 == 0 and tt == 0 and dma_i < 18:
                x_dma(a, dma_i); dma_i += 1
    assert dma_i == 18
    cyc(a, 90)
    ebase_code(a)
    w1_epilogue(a, kind)
    cyc(a, 91)
    a(f"s_waitcnt vmcnt({nst})")
    a("s_barrier")
    cyc(a, 92)
    Lns = a.uniq("L_ns")
    a(f"s_cmp_eq_u32 s{sPrevTB}, -1\ns_cbranch_scc1 {Lns}")
    a(f"s_lshl_b32 s{sFlag}, s{sPrevTB}, 7\ns_add_u32 s{sFlag}, s{sFlag}, s{sFlagBase}")
    signal_flag(a, sFlag)
    a.lab(Lns)
    a(f"""
    s_mov_b32 s{sPrevTB}, s{sTB}
    s_mov_b32 s{sTB}, s10
    s_mov_b32 s{sXBcur}, s11
    s_cmp_lt_u32 s{sTB}, s{sTBend}
    s_cbranch_scc1 {Lloop}
    s_waitcnt vmcnt(0)
    s_barrier
    s_lshl_b32 s{sFlag}, s{sPrevTB}, 7
    s_add_u32 s{sFlag}, s{sFlag}, s{sFlagBase}
    """)
    signal_flag(a, sFlag)
    a("s_waitcnt vmcnt(0)")
    cyc_out(a, 16, [90,91,92])


def w1_variant(a, kind):
    if kind in ('KQ','V'):
        a(f"s_lshl_b32 s13, s12, 9")
        srd(a, SB0, 10, 576*8192, add="s13")
        a(f"s_add_u32 s13, s13, 256")
        srd(a, SB1, 10, 576*8192, add="s13")
        srd(a, SA, P['x'], 2048*1152)
        w1_bload(a, kind, 8192)
        stamp(a, 1)
        def eb(a):
            sh = 1 if kind == 'KQ' else 2
            a(f"""
            s_lshl_b32 s4, s{sTB}, 6
            s_lshl_b32 s5, s12, 1
            s_add_u32 s4, s4, s5
            s_lshr_b32 s5, s3, 1
            s_add_u32 s4, s4, s5
            s_lshl_b32 s4, s4, 3
            s_and_b32 s5, s3, 1
            s_lshl_b32 s5, s5, {sh}
            s_add_u32 s4, s4, s5
            s_lshl_b32 s4, s4, 10
            s_add_u32 s{sEbase}, s4, s{sWSbase}
            s_mov_b32 s{sEtt}, {32*8*1024}
            """)
        w1_main(a, kind, eb)
    else:
        a(f"s_lshl_b32 s13, s12, 8")
        srd(a, SB0, P['Wg'], 576*9216, add="s13")
        srd(a, SB1, P['Wu'], 576*9216, add="s13")
        srd(a, SA, P['x'], 2048*1152)
        w1_bload(a, 'H', 9216)
        stamp(a, 1)
        def eb(a):
            a(f"""
            s_mul_i32 s4, s{sTB}, {2*144}
            s_lshl_b32 s5, s12, 2
            s_add_u32 s4, s4, s5
            s_add_u32 s4, s4, s3
            s_lshl_b32 s4, s4, 11
            s_add_u32 s{sEbase}, s4, {WS_H}
            s_mov_b32 s{sEtt}, {144*2*1024}
            """)
        w1_main(a, 'H', eb)

def w1_phase(a):
    a(f"""
    s_lshr_b32 s4, s14, 3            ; octet
    s_and_b32 s5, s14, 7             ; j
    s_mul_i32 s4, s4, 3
    s_mul_i32 s5, s5, 12
    s_lshr_b32 s6, s5, 5
    s_and_b32 s7, s5, 31
    s_add_u32 s8, s4, s6             ; slice A
    s_add_u32 s9, s7, 12
    s_cmp_gt_u32 s9, 32
    s_cbranch_scc1 L_w1_spill
    s_mov_b32 s{sJobSlice}, s8
    s_mov_b32 s{sTB}, s7
    s_mov_b32 s{sTBend}, s9
    s_mov_b32 s{sJob2Slice}, -1
    s_branch L_w1_disp
    L_w1_spill:
    s_add_u32 s{sJobSlice}, s8, 1
    s_mov_b32 s{sTB}, 0
    s_sub_u32 s{sTBend}, s9, 32
    s_mov_b32 s{sJob2Slice}, s8
    s_mov_b32 s{sJob2TB}, s7
    s_mov_b32 s{sJob2End}, 32
    L_w1_disp:
    s_cmp_ge_u32 s{sJobSlice}, 68
    s_cbranch_scc1 L_w1_q
    s_cmp_ge_u32 s{sJobSlice}, 32
    s_cbranch_scc1 L_w1_h
    s_lshr_b32 s12, s{sJobSlice}, 1
    s_mov_b32 s{sFlagBase}, {F_KV}
    s_and_b32 s4, s{sJobSlice}, 1
    s_cmp_eq_u32 s4, 1
    s_cbranch_scc1 L_w1_v
    s_mov_b32 s10, s{P['Wk']}
    s_mov_b32 s11, s{P['Wk']+1}
    s_mov_b32 s{sWSbase}, {WS_KX}
    s_branch L_w1_kq
    L_w1_q:
    s_sub_u32 s12, s{sJobSlice}, 68
    s_mov_b32 s10, s{P['Wq']}
    s_mov_b32 s11, s{P['Wq']+1}
    s_mov_b32 s{sWSbase}, {WS_QX}
    s_mov_b32 s{sFlagBase}, {F_Q}
    L_w1_kq:
    """)
    w1_variant(a, 'KQ')
    a("s_branch L_w1_next")
    a.lab("L_w1_v")
    a(f"s_mov_b32 s10, s{P['Wv']}\ns_mov_b32 s11, s{P['Wv']+1}\ns_mov_b32 s{sWSbase}, {WS_VX}")
    w1_variant(a, 'V')
    a("s_branch L_w1_next")
    a.lab("L_w1_h")
    a(f"s_sub_u32 s12, s{sJobSlice}, 32\ns_mov_b32 s{sFlagBase}, {F_H}")
    w1_variant(a, 'H')
    a.lab("L_w1_next")
    a(f"""
    s_barrier
    s_cmp_eq_u32 s{sJob2Slice}, -1
    s_cbranch_scc1 L_w1_done
    s_mov_b32 s{sJobSlice}, s{sJob2Slice}
    s_mov_b32 s{sTB}, s{sJob2TB}
    s_mov_b32 s{sTBend}, s{sJob2End}
    s_mov_b32 s{sJob2Slice}, -1
    s_branch L_w1_disp
    L_w1_done:
    """)
```

```python
from common import *

sGrp=68; sSl=69; sSeg=70; sAoff=71; sT0=72; sT1=73; sT2=74
vL16=2; vTrA=3
vDm=6; vRed=7; vOutOff=8; vGoff=9
ACC2=12
LAND=36
TMP=76
def B2(ks, nt, KS):
    i = (ks*3+nt)*4
    return 256+i if i < 256 else (512 - KS*12) + (i-256)

def w2_consts(a):
    a(f"""
    v_lshlrev_b32 v{vL16}, 4, v0
    v_lshrrev_b32 v12, 3, v0
    v_and_b32 v13, 7, v0
    v_bfe_u32 v14, v0, 4, 2
    v_lshlrev_b32 v14, 1, v14
    v_xor_b32 v13, v13, v14
    v_lshlrev_b32 v13, 4, v13
    s_movk_i32 s4, 1152
    v_mul_lo_u32 v12, v12, s4
    v_add_u32 v{vDm}, v12, v13
    v_lshrrev_b32 v12, 2, v0          ; 4g + r  (= l>>2)
    v_bfe_u32 v13, v12, 1, 2
    v_lshlrev_b32 v13, 1, v13         ; swz
    v_lshlrev_b32 v12, 7, v12
    v_and_b32 v14, 1, v0
    v_lshlrev_b32 v14, 3, v14
    v_add_u32 v12, v12, v14
    s_mul_i32 s4, s3, 40960
    v_add_u32 v12, s4, v12
    v_bfe_u32 v14, v0, 1, 1
    """)
    for nt in range(3):
        a(f"""
        v_add_u32 v15, {2*nt}, v14
        v_xor_b32 v15, v15, v13
        v_lshlrev_b32 v15, 4, v15
        v_add_u32 v{vTrA+nt}, v12, v15
        """)

def w2_bload(a, KS, wptr, nrows):
    a(f"s_mul_i32 s13, s{sSl}, 96")
    srd(a, SB0, P[wptr], nrows*1152, add="s13")
    a(f"s_sub_u32 s{SB0+2}, s{SB0+2}, s13")
    NU = KS // 2
    NS = 5
    a(f"s_mul_i32 s12, s3, {KS*32*1152}")
    a(f"s_mul_i32 s11, s3, 40960")
    def issue(u):
        for jj in range(8):
            a(f"s_add_u32 m0, s11, {(u % NS)*8192 + jj*1024}")
            a(f"s_add_u32 s4, s12, {(64*u + 8*jj)*1152}")
            a(f"buffer_load_dwordx4 v{vDm}, s[{SB0}:{SB0+3}], s4 offen lds")
    for u in range(min(NS, NU)): issue(u)
    for u in range(NU):
        issued = min(u + NS - 1, NU - 1)
        a(f"s_waitcnt vmcnt({(issued - u)*8})")
        for k2 in range(2):
            ks = 2*u + k2
            for nt in range(3):
                b = B2(ks, nt, KS)
                for x in range(2):
                    a(f"ds_read_b64_tr_b16 {R(b+2*x,2)}, v{vTrA+nt} offset:{(u % NS)*8192 + (32*k2+16*x)*128}")
        a("s_waitcnt lgkmcnt(0)")
        if u + NS < NU: issue(u + NS)

RED = 0
def w2_gemm(a, KS, abase, segstride):
    a(f"""
    s_mul_i32 s{sAoff}, s{sSeg}, {segstride}
    s_mul_i32 s4, s3, {KS*2048}
    s_add_u32 s{sAoff}, s{sAoff}, s4
    s_add_u32 s{sAoff}, s{sAoff}, {abase}
    """)
    D = 5
    def aload(ks):
        buf = LAND + (ks % D)*8
        a(f"s_add_u32 s{sT0}, s{sAoff}, {ks*2048}")
        a(f"buffer_load_dwordx4 {vr(buf,4)}, v{vL16}, s[{SWS}:{SWS+3}], s{sT0} offen sc1")
        a(f"buffer_load_dwordx4 {vr(buf+4,4)}, v{vL16}, s[{SWS}:{SWS+3}], s{sT0} offen offset:1024 sc1")
    for ks in range(D - 1): aload(ks)
    for ks in range(KS):
        if ks + D - 1 < KS:
            aload(ks + D - 1)
            a(f"s_waitcnt vmcnt({2*(D-1)})")
        else:
            a(f"s_waitcnt vmcnt({2*(KS-1-ks)})")
        buf = LAND + (ks % D)*8
        for tt in range(2):
            for nt in range(3):
                acc = ACC2 + (tt*3+nt)*4
                c = "0" if ks == 0 else vr(acc,4)
                a(f"v_mfma_f32_16x16x32_bf16 {vr(acc,4)}, {R(B2(ks,nt,KS),4)}, {vr(buf+4*tt,4)}, {c}")
    a(f"s_mul_i32 s4, s3, 6144\nv_add_u32 v{vRed}, s4, v{vL16}")
    a.nop(8)
    for t in range(6):
        a(f"ds_write_b128 v{vRed}, {vr(ACC2+4*t,4)} offset:{RED + t*1024}")
    a("s_waitcnt lgkmcnt(0)\ns_barrier")
    a(f"s_lshl_b32 s4, s3, 10\nv_add_u32 v{vRed}, s4, v{vL16}")
    for p in range(4):
        a(f"ds_read_b128 {vr(LAND+4*p,4)}, v{vRed} offset:{RED + p*6144}")
    for p in range(4):
        a(f"ds_read_b128 {vr(LAND+16+4*p,4)}, v{vRed} offset:{RED + p*6144 + 4096}")
    a("s_waitcnt lgkmcnt(0)")
    for half in range(2):
        b = LAND + 16*half
        for r in range(4):
            a(f"v_add_f32 v{b+r}, v{b+r}, v{b+4+r}")
            a(f"v_add_f32 v{b+8+r}, v{b+8+r}, v{b+12+r}")
        for r in range(4):
            a(f"v_add_f32 v{ACC2+4*half+r}, v{b+r}, v{b+8+r}")
    a("s_barrier")

def ffn2_phase(a):
    w2_consts(a)
    w2_bload(a, 36, 'Wd', 4608)
    stamp(a, 3)
    a(f"s_mov_b32 s{sSeg}, s{sGrp}")
    a.lab("L_ffn2_loop")
    a(f"s_lshr_b32 s5, s{sSeg}, 1\ns_lshl_b32 s5, s5, 7\ns_add_u32 s{sT1}, s5, {F_H}")
    wg_wait_flag(a, sT1, 36)
    w2_gemm(a, 36, WS_H, 144*2048)
    a(f"""
    s_mul_i32 s4, s{sSeg}, 12
    s_add_u32 s4, s4, s{sSl}
    s_mul_i32 s4, s4, 6144
    s_lshl_b32 s5, s3, 10
    s_add_u32 s4, s4, s5
    s_add_u32 s{sT1}, s4, {WS_BB}
    buffer_store_dwordx4 {vr(ACC2,4)}, v{vL16}, s[{SWS}:{SWS+3}], s{sT1} offen
    s_cmp_ge_u32 s3, 2
    s_cbranch_scc1 L_ffn2_ns
    s_add_u32 s{sT1}, s{sT1}, 4096
    buffer_store_dwordx4 {vr(ACC2+4,4)}, v{vL16}, s[{SWS}:{SWS+3}], s{sT1} offen
    L_ffn2_ns:
    s_add_u32 s{sSeg}, s{sSeg}, 18
    s_cmp_lt_u32 s{sSeg}, 64
    s_cbranch_scc1 L_ffn2_loop
    s_waitcnt vmcnt(0)
    s_barrier
    """)

tQ=12
tK=44
tS=76
tKM=100
tVM=116
tT=124
C1 = (128 ** -0.5) * 1.4426950408889634
def t4_task(a, Ldone):
    sF=sT1
    a(f"""
    s_lshr_b32 s5, s{sSeg}, 1
    s_lshl_b32 s5, s5, 7
    s_add_u32 s{sF}, s5, {F_KV}
    """)
    wave_wait_flag(a, sF, 32, vt=tT)
    a(f"s_add_u32 s{sF}, s5, {F_Q}")
    wave_wait_flag(a, sF, 16, vt=tT)
    a(f"""
    s_lshl_b32 s4, s{sSeg}, 5
    s_add_u32 s4, s4, s15             ; s*32+h
    s_lshl_b32 s{sT0}, s4, 13         ; *8192
    s_add_u32 s{sT2}, s{sT0}, {WS_QX}
    """)
    for i in range(8):
        if i == 4: a(f"s_add_u32 s{sT2}, s{sT2}, 4096")
        a(f"buffer_load_dwordx4 {vr(tQ+4*i,4)}, v{vL16}, s[{SWS}:{SWS+3}], s{sT2} offen offset:{(i%4)*1024} sc1")
    a(f"s_add_u32 s{sT2}, s{sT0}, {WS_KX}")
    for i in range(8):
        if i == 4: a(f"s_add_u32 s{sT2}, s{sT2}, 4096")
        a(f"buffer_load_dwordx4 {vr(tK+4*i,4)}, v{vL16}, s[{SWS}:{SWS+3}], s{sT2} offen offset:{(i%4)*1024} sc1")
    a("s_waitcnt vmcnt(0)")
    for t in range(2):
        for tt in range(2):
            if t > tt: continue
            d = tS + ((1+t)*2+tt)*4
            for ks in range(4):
                c = "0" if ks == 0 else vr(d,4)
                a(f"v_mfma_f32_16x16x32_bf16 {vr(d,4)}, {vr(tK+(t*4+ks)*4,4)}, {vr(tQ+(tt*4+ks)*4,4)}, {c}")
    a(f"s_nop 7\ns_add_u32 s{sT2}, s{sT0}, {WS_VX}")
    for i in range(8):
        if i == 4: a(f"s_add_u32 s{sT2}, s{sT2}, 4096")
        a(f"buffer_load_dwordx4 {vr(tK+4*i,4)}, v{vL16}, s[{SWS}:{SWS+3}], s{sT2} offen offset:{(i%4)*1024} sc1")
    a(f"s_lshl_b32 s5, s15, 2\ns_add_u32 s{sF}, s5, {F_PROG}\ns_add_u32 s7, s{sSeg}, 1")
    wave_wait_flag(a, sF, "s7", vt=tT)
    a(f"""
    s_lshl_b32 s{sT2}, s4, 0
    """)
    a.L.pop()
    a(f"""
    s_lshl_b32 s4, s{sSeg}, 5
    s_add_u32 s4, s4, s15
    s_lshl_b32 s5, s4, 12
    s_add_u32 s{sT2}, s5, {WS_KM}
    """)
    for ks in range(4):
        a(f"buffer_load_dwordx4 {vr(tKM+4*ks,4)}, v{vL16}, s[{SWS}:{SWS+3}], s{sT2} offen offset:{ks*1024} sc1")
    a(f"s_lshl_b32 s5, s4, 11\ns_add_u32 s{sT2}, s5, {WS_VM}\nv_lshlrev_b32 v{tT}, 2, v0")
    for et in range(8):
        a(f"buffer_load_dword v{tVM+et}, v{tT}, s[{SWS}:{SWS+3}], s{sT2} offen offset:{et*256} sc1")
    a("s_waitcnt vmcnt(8)")
    for tt in range(2):
        d = tS + tt*4
        for ks in range(4):
            c = "0" if ks == 0 else vr(d,4)
            a(f"v_mfma_f32_16x16x32_bf16 {vr(d,4)}, {vr(tKM+ks*4,4)}, {vr(tQ+(tt*4+ks)*4,4)}, {c}")
    a.nop(8)
    a(f"""
    v_lshrrev_b32 v{tT}, 4, v0
    v_lshlrev_b32 v{tT}, 2, v{tT}
    v_and_b32 v{tT+1}, 15, v0
    v_sub_u32 v{tT}, v{tT}, v{tT+1}
    v_mov_b32 v{tT+1}, 0xff800000
    """)
    for tt in range(2):
        d = tS + ((1+tt)*2+tt)*4
        for r in range(4):
            a(f"v_cmp_lt_i32 vcc, {-r}, v{tT}\ns_nop 1\nv_cndmask_b32 v{d+r}, v{d+r}, v{tT+1}, vcc")
    a(f"s_mov_b32 s6, {fb(C1)}")
    for tt in range(2):
        sm = tS + tt*4; s1 = tS + (2+tt)*4; s2 = tS + (4+tt)*4
        vals = [sm, sm+1, s1, s1+1, s1+2, s1+3] + ([s2, s2+1, s2+2, s2+3] if tt == 1 else [])
        mx = tT; t2 = tT+1
        a(f"v_max3_f32 v{mx}, v{vals[0]}, v{vals[1]}, v{vals[2]}")
        rest = vals[3:]
        while len(rest) >= 2:
            a(f"v_max3_f32 v{mx}, v{mx}, v{rest[0]}, v{rest[1]}"); rest = rest[2:]
        if rest: a(f"v_max_f32 v{mx}, v{mx}, v{rest[0]}")
        for sw in ("v_permlane16_swap_b32", "v_permlane32_swap_b32"):
            a(f"v_mov_b32 v{t2}, v{mx}\ns_nop 1\n{sw} v{mx}, v{t2}\ns_nop 1\nv_max_f32 v{mx}, v{mx}, v{t2}")
        a(f"v_mul_f32 v{mx}, s6, v{mx}")
        for v in vals: a(f"v_fma_f32 v{v}, v{v}, s6, -v{mx}")
        for v in vals: a(f"v_exp_f32 v{v}, v{v}")
        a("s_nop 0")
        p = tQ + tt*8
        a(f"v_cvt_pk_bf16_f32 v{p}, v{sm}, v{sm+1}\nv_mov_b32 v{p+1}, 0")
        a(f"v_cvt_pk_bf16_f32 v{p+4}, v{s1}, v{s1+1}\nv_cvt_pk_bf16_f32 v{p+5}, v{s1+2}, v{s1+3}")
        if tt == 1:
            a(f"v_cvt_pk_bf16_f32 v{p+6}, v{s2}, v{s2+1}\nv_cvt_pk_bf16_f32 v{p+7}, v{s2+2}, v{s2+3}")
        else:
            a(f"v_mov_b32 v{p+6}, 0\nv_mov_b32 v{p+7}, 0")
    for j in range(4): a(f"v_mov_b32 v{tKM+j}, 0x3f803f80")
    a("s_waitcnt vmcnt(0)")
    for et in range(8):
        a(f"v_mov_b32 v{tQ+16+2*et}, v{tVM+et}\nv_mov_b32 v{tQ+17+2*et}, 0")
    a("s_nop 1")
    a(f"""
    s_lshl_b32 s4, s{sSeg}, 7          ; s*128
    s_lshl_b32 s5, s15, 2              ; h*4
    s_add_u32 s4, s4, s5
    s_lshl_b32 s4, s4, 11              ; *2048
    s_add_u32 s{sT2}, s4, {WS_OX}
    """)
    for tt in range(2):
        p = tQ + tt*8
        lreg = tKM + 4
        a(f"v_mfma_f32_16x16x32_bf16 {vr(lreg,4)}, {vr(tKM,4)}, {vr(p+4,4)}, 0")
        for half in range(2):
            for e4 in range(4):
                et = 4*half + e4
                d = tS + 4*e4
                a(f"v_mfma_f32_16x16x32_bf16 {vr(d,4)}, {vr(tK+4*et,4)}, {vr(p+4,4)}, 0")
            if half == 0:
                a(f"v_mfma_f32_16x16x16_bf16 {vr(lreg,4)}, {vr(tKM,2)}, {vr(p,2)}, {vr(lreg,4)}")
            for e4 in range(4):
                et = 4*half + e4
                d = tS + 4*e4
                a(f"v_mfma_f32_16x16x16_bf16 {vr(d,4)}, {vr(tQ+16+2*et,2)}, {vr(p,2)}, {vr(d,4)}")
            a.nop(8)
            if half == 0:
                a(f"v_rcp_f32 v{tT}, v{lreg}\ns_nop 0")
            for j in range(16): a(f"v_mul_f32 v{tS+j}, v{tS+j}, v{tT}")
            for k2 in range(2):
                d = tS + 16 + 4*k2
                s = tS + 8*k2
                for j in range(4): a(f"v_cvt_pk_bf16_f32 v{d+j}, v{s+2*j}, v{s+2*j+1}")
                ksp = 2*half + k2
                off = ksp*2048 + tt*1024
                if off >= 4096:
                    a(f"s_add_u32 s{sT1}, s{sT2}, {off & ~4095}")
                    a(f"buffer_store_dwordx4 {vr(d,4)}, v{vL16}, s[{SWS}:{SWS+3}], s{sT1} offen offset:{off & 4095} sc1")
                else:
                    a(f"buffer_store_dwordx4 {vr(d,4)}, v{vL16}, s[{SWS}:{SWS+3}], s{sT2} offen offset:{off} sc1")
            a("s_nop 1")
    a("s_waitcnt vmcnt(0)")
    a(f"s_lshl_b32 s5, s{sSeg}, 7\ns_add_u32 s{sT1}, s5, {F_O}")
    wave_signal(a, sT1, tmp=tT)

def t5_phase(a):
    w2_consts(a)
    w2_bload(a, 32, 'Wo', 4096)
    stamp(a, 5)
    srd(a, SOUT, P['out'], 2048*1152)
    a("s_barrier")
    wg_wait_flag(a, str(F_G), 8)
    a(f"s_mov_b32 s{sSeg}, s{sGrp}")
    a.lab("L_t5_loop")
    a(f"""
    s_lshl_b32 s15, s{sSl}, 2
    s_add_u32 s15, s15, s3
    s_cmp_ge_u32 s15, 32
    s_cbranch_scc1 L_t4_skip
    """)
    t4_task(a, None)
    a.lab("L_t4_skip")
    a(f"s_lshl_b32 s5, s{sSeg}, 7\ns_add_u32 s{sT1}, s5, {F_O}")
    wg_wait_flag(a, sT1, 32)
    w2_gemm(a, 32, WS_OX, 128*2048)
    for which in range(2):
        Lsk = a.uniq("L_t5sk")
        if which == 1: a(f"s_cmp_ge_u32 s3, 2\ns_cbranch_scc1 {Lsk}")
        a(f"""
        s_add_u32 s5, s3, {4*which}        ; tile
        s_cmp_ge_u32 s5, 3
        s_cselect_b32 s6, 1, 0             ; tt
        s_mul_i32 s7, s6, 3
        s_sub_u32 s7, s5, s7               ; nt
        s_mul_i32 s4, s{sSeg}, 12
        s_add_u32 s4, s4, s{sSl}
        s_mul_i32 s4, s4, 6144
        s_lshl_b32 s9, s5, 10
        s_add_u32 s4, s4, s9
        s_add_u32 s{sT1}, s4, {WS_BB}
        buffer_load_dwordx4 {vr(LAND,4)}, v{vL16}, s[{SWS}:{SWS+3}], s{sT1} offen
        s_lshl_b32 s4, s{sSeg}, 5
        s_lshl_b32 s9, s6, 4
        s_add_u32 s4, s4, s9
        s_lshl_b32 s9, s4, 2
        s_add_u32 s{sT2}, s9, {WS_G}
        v_and_b32 v{TMP}, 15, v0
        v_lshlrev_b32 v{TMP+1}, 2, v{TMP}
        buffer_load_dword v{TMP+2}, v{TMP+1}, s[{SWS}:{SWS+3}], s{sT2} offen sc1
        s_movk_i32 s9, 1152
        v_mul_lo_u32 v{TMP}, v{TMP}, s9
        v_lshrrev_b32 v{TMP+1}, 4, v0
        v_lshlrev_b32 v{TMP+1}, 3, v{TMP+1}   ; 4g*2 bytes
        v_add_u32 v{TMP}, v{TMP}, v{TMP+1}
        s_mul_i32 s4, s4, 1152
        s_mul_i32 s9, s{sSl}, 96
        s_add_u32 s4, s4, s9
        s_lshl_b32 s9, s7, 5
        s_add_u32 s{sT1}, s4, s9
        s_waitcnt vmcnt(0)
        """)
        ac = ACC2 + 4*which
        for r in range(4):
            a(f"v_sub_f32 v{ac+r}, v{ac+r}, v{LAND+r}\nv_fma_f32 v{ac+r}, v{ac+r}, v{TMP+2}, v{LAND+r}")
        a(f"v_cvt_pk_bf16_f32 v{ac}, v{ac}, v{ac+1}\nv_cvt_pk_bf16_f32 v{ac+1}, v{ac+2}, v{ac+3}")
        a(f"buffer_store_dwordx2 {vr(ac,2)}, v{TMP}, s[{SOUT}:{SOUT+3}], s{sT1} offen")
        if which == 1: a.lab(Lsk)
    a(f"""
    s_add_u32 s{sSeg}, s{sSeg}, 18
    s_cmp_lt_u32 s{sSeg}, 64
    s_cbranch_scc1 L_t5_loop
    """)

def gate_task(a):
    srd(a, SA, P['x'], 2048*1152)
    a(f"""
    s_lshl_b32 s4, s15, 8
    s_lshl_b32 s5, s3, 6
    s_add_u32 s12, s4, s5
    v_add_u32 v2, s12, v0
    s_movk_i32 s4, 1152
    v_mul_lo_u32 v3, v2, s4
    v_mov_b32 v4, 0
    v_mov_b32 v7, 0
    """)
    for grp in range(9):
        a(f"s_load_dwordx16 s[68:83], s[{P['gw']}:{P['gw']+1}], {grp*128}\ns_load_dwordx16 s[84:99], s[{P['gw']}:{P['gw']+1}], {grp*128+64}")
        for c in range(8):
            a(f"buffer_load_dwordx4 {vr(8+4*c,4)}, v3, s[{SA}:{SA+3}], 0 offen offset:{grp*128 + c*16}")
        a("s_waitcnt vmcnt(0) lgkmcnt(0)")
        for c in range(8):
            for j in range(4):
                sg = 68+4*c+j; vx = 8+4*c+j
                a(f"s_lshl_b32 s4, s{sg}, 16\ns_and_b32 s5, s{sg}, 0xffff0000")
                a(f"v_lshlrev_b32 v5, 16, v{vx}\nv_and_b32 v6, 0xffff0000, v{vx}")
                a(f"v_fma_f32 v4, v5, s4, v4\nv_fma_f32 v7, v6, s5, v7")
    a("v_add_f32 v4, v4, v7")
    a(f"""
    v_mul_f32 v4, {fb(-1.4426950408889634)}, v4
    v_exp_f32 v4, v4
    s_nop 0
    v_add_f32 v4, 1.0, v4
    v_rcp_f32 v4, v4
    v_lshlrev_b32 v2, 2, v2
    s_mov_b32 s4, {WS_G}
    s_nop 0
    buffer_store_dword v4, v2, s[{SWS}:{SWS+3}], s4 offen sc1
    s_waitcnt vmcnt(0)
    s_barrier
    """)
    signal_flag(a, str(F_G))
```

```python
import sys
from asmlib import *
from layout import *
from common import *
import w1, w2, chain
from w1 import *

NAME = "gated_mix__memory_aug_recurrent_mem_tr__glu_gated_geglu__prompt"
HDR = open("cdna_kernels/%s.s.ref" % NAME).read().split("; @launch")[0].split("; Override launch")[0]

def workers(a):
    a("""
    s_lshr_b32 s15, s2, 3            ; b>>3
    s_and_b32 s4, s2, 7
    s_sub_u32 s4, s4, 1
    s_lshl_b32 s14, s4, 5
    s_add_u32 s14, s14, s15
    """)
    stamp(a, 0)
    w1_phase(a)
    stamp(a, 2)
    a(f"""
    s_cmp_ge_u32 s14, 216
    s_cbranch_scc1 L_gate
    s_mul_hi_u32 s{w2.sGrp}, s14, 0x15555556      ; wid/12
    s_mul_i32 s4, s{w2.sGrp}, 12
    s_sub_u32 s{w2.sSl}, s14, s4
    """)
    w2.ffn2_phase(a)
    stamp(a, 4)
    w2.t5_phase(a)
    stamp(a, 6)
    a("s_branch L_exit")
    a.lab("L_gate")
    a("s_sub_u32 s15, s14, 216")
    w2.gate_task(a)

def build(parts):
    a = A()
    prologue(a)
    a("s_and_b32 s4, s2, 7\ns_cmp_eq_u32 s4, 0\ns_cbranch_scc1 L_chain")
    workers(a)
    a("s_branch L_exit")
    a.lab("L_chain")
    chain.chain(a)
    a.lab("L_exit")
    body = a.text()
    txt = HDR + f"""; @launch grid=(256,1,1) block=(256,1,1) lds=163840
.amdgcn_target "amdgcn-amd-amdhsa--gfx950"
.text
.globl {NAME}_kernel
.p2align 8
.type {NAME}_kernel,@function
{NAME}_kernel:
{body}  s_endpgm
.section .rodata,"a"
.p2align 6
.amdhsa_kernel {NAME}_kernel
  .amdhsa_next_free_vgpr 512
  .amdhsa_next_free_sgpr 102
  .amdhsa_accum_offset 256
  .amdhsa_group_segment_fixed_size 0
  .amdhsa_kernarg_size 120
  .amdhsa_user_sgpr_count 2
  .amdhsa_user_sgpr_kernarg_segment_ptr 1
  .amdhsa_system_sgpr_workgroup_id_x 1
.end_amdhsa_kernel
"""
    return txt

if __name__ == "__main__":
    if "stamps" in sys.argv: Cfg.STAMPS = True
    if "slow" in sys.argv: Cfg.FORCE_SLOW = True
    out = sys.argv[1] if len(sys.argv) > 1 else "out.s"
    open(out, "w").write(build(None))
    print("wrote", out)
```

```python
from common import *

SLOT = 16384
RESO = 98304
MEMB = 139264
XQ   = MEMB + 9216
XO   = XQ + 4096
KXB  = XO + 2048
SEL  = KXB + 8192
assert SEL + 1024 == 163840
MEMSTRIDE = 65536
CS = 9472
OOB = 0x10000000
sH=68; sMode=69; sStep=70; sT0=71; sT1=72; sT2=73; sFirst=74; sRT=75; sHoff=76
sMask=84
sLo8=86
sC1=78
sRd=16; sRdX=17; sPst=18; sPstX=19; sMemOff=20; sM0=21; sM1=22; sM2=23; sKXo=24; sVXo=25; sPFo=26; sPub=27; sFlo=28; sProg=29; sW1k=30; sRa=41; sRb=42; sRm0=43; sRm1=31; sMB=77; sRaX=86; sRbX=87
vFlag=0; vL16=1; vIdx=2; vResA=3; vResB=4; vResO=5; vTrX=6; vXQw=7; vXOw=8; vL4=9; vMst=10; vHi=11
vT=12
PB=16
AS=24
LD=32
ACC=48
HB=131072
WBASE=72
C1 = (128 ** -0.5) * 1.4426950408889634

RESQ_L = [('Q',0),('K',2),('V',3),('Q',5),('K',6),('V',8)]
RESO_L = [(1,1),(3,1),(5,1),(7,1),(8,1)]
def build_wmap():
    ops = []
    for c in range(9):
        for M in 'QKV':
            if (M,c) in RESQ_L: continue
            for x in range(2): ops.append((M,c,x))
    for j in range(9):
        for c2 in range(2):
            if (j,c2) in RESO_L: continue
            ops.append(('O',j,c2))
    assert len(ops) == 55, len(ops)
    return {o: WBASE + 8*i for i,o in enumerate(ops)}
WM = build_wmap()

def chain_init(a):
    a(f"""
    s_lshr_b32 s{sH}, s2, 3
    v_lshlrev_b32 v{vL16}, 4, v0
    v_lshlrev_b32 v{vL4}, 2, v0
    """)
    stamp(a, 0, 12, 13)
    a(f"""
    v_mov_b32 v12, 0
    v_mov_b32 v13, 0
    v_mov_b32 v14, 0
    v_mov_b32 v15, 0
    v_mov_b32 v16, -1
    v_mov_b32 v17, -1
    v_mov_b32 v18, -1
    v_mov_b32 v19, -1
    s_lshl_b32 s4, s3, 10
    v_add_u32 v20, s4, v{vL16}
    s_mul_i32 s5, s{sH}, 768
    v_cmp_gt_u32 vcc, 768, v20
    s_and_saveexec_b64 s[8:9], vcc
    s_cbranch_execz L_ci_nf
    buffer_store_dwordx4 v[12:15], v20, s[{SWS}:{SWS+3}], s5 offen sc1
    L_ci_nf:
    s_mov_b64 exec, s[8:9]
    s_mul_i32 s5, s{sH}, 18432
    s_add_u32 s5, s5, {CH_PART}
    """)
    for i in range(4):
        a(f"buffer_store_dwordx4 v[16:19], v20, s[{SWS}:{SWS+3}], s5 offen sc1\ns_add_u32 s5, s5, 4096")
    a(f"""
    v_cmp_gt_u32 vcc, 2048, v20
    s_and_saveexec_b64 s[8:9], vcc
    s_cbranch_execz L_ci_np
    buffer_store_dwordx4 v[16:19], v20, s[{SWS}:{SWS+3}], s5 offen sc1
    L_ci_np:
    s_mov_b64 exec, s[8:9]
    s_lshl_b32 s5, s{sH}, 2
    s_add_u32 s5, s5, s3                 ; wi = h*4+w
    s_cmp_ge_u32 s5, 108
    s_cbranch_scc1 L_ci_nm2
    s_mul_hi_u32 s6, s5, 0x1c71c71d      ; wi/9
    s_mul_i32 s7, s6, 9
    s_sub_u32 s7, s5, s7                 ; chunk
    s_lshr_b32 s5, s6, 2
    s_add_u32 s5, s5, 1                  ; idx
    s_lshl_b32 s5, s5, 16
    s_and_b32 s6, s6, 3
    s_mul_i32 s6, s6, {CS}
    s_add_u32 s5, s5, s6
    s_lshl_b32 s7, s7, 10
    s_add_u32 s5, s5, s7
    s_add_u32 s5, s5, {CH_MEM}
    buffer_store_dwordx4 v[16:19], v{vL16}, s[{SWS}:{SWS+3}], s5 offen sc1
    L_ci_nm2:
    """)
    srd(a, SA, P['mem0'], 8*1152)
    a(f"""
    s_cmp_ge_u32 s{sH}, 9
    s_cbranch_scc1 L_ci_m0e
    v_bfe_u32 v12, v0, 2, 2
    v_lshlrev_b32 v12, 1, v12
    v_and_b32 v13, 1, v0
    v_add_u32 v12, v12, v13
    s_movk_i32 s4, 1152
    v_mul_lo_u32 v12, v12, s4
    v_bfe_u32 v13, v0, 1, 1
    v_lshlrev_b32 v13, 6, v13
    v_add_u32 v12, v12, v13
    v_lshrrev_b32 v13, 5, v0
    v_lshlrev_b32 v13, 5, v13
    v_add_u32 v12, v12, v13
    v_bfe_u32 v13, v0, 4, 1
    v_lshlrev_b32 v13, 2, v13
    v_add_u32 v12, v12, v13
    s_lshl_b32 s4, s{sH}, 7
    """)
    for ea in range(8):
        off = (4*(ea&3) + (ea>>2))*2
        a(f"buffer_load_ushort v{32 + ea}, v12, s[{SA}:{SA+3}], s4 offen offset:{off}")
    a("s_waitcnt vmcnt(0)")
    for j in range(4): a(f"v_lshl_or_b32 v{24+j}, v{33+2*j}, 16, v{32+2*j}")
    a(f"""
    s_lshl_b32 s4, s{sH}, 10
    s_mul_i32 s5, s3, {CS}
    s_add_u32 s4, s4, s5
    s_add_u32 s4, s4, {CH_MEM}
    buffer_store_dwordx4 v[24:27], v{vL16}, s[{SWS}:{SWS+3}], s4 offen sc1
    s_nop 1
    L_ci_m0e:
    """)
    a(f"""
    v_lshrrev_b32 v12, 4, v0
    v_and_b32 v13, 1, v12
    s_lshr_b32 s4, s3, 1
    s_lshl_b32 s4, s4, 2
    v_or_b32 v13, s4, v13
    v_lshlrev_b32 v14, 1, v13
    v_and_b32 v21, 15, v0
    v_xor_b32 v22, v21, v14
    v_lshlrev_b32 v22, 4, v22
    v_lshlrev_b32 v12, 13, v12
    v_add_u32 v24, v12, v22
    v_xor_b32 v14, 4, v14
    v_xor_b32 v22, v21, v14
    v_lshlrev_b32 v22, 4, v22
    v_add_u32 v25, v12, v22
    v_lshrrev_b32 v12, 3, v0
    s_movk_i32 s4, 1152
    v_mul_lo_u32 v12, v12, s4
    v_lshrrev_b32 v13, 5, v0
    s_and_b32 s4, s3, 1
    s_lshl_b32 s4, s4, 1
    v_or_b32 v13, s4, v13
    v_lshlrev_b32 v13, 1, v13
    v_and_b32 v21, 7, v0
    v_xor_b32 v21, v21, v13
    v_lshlrev_b32 v21, 4, v21
    v_add_u32 v26, v12, v21
    v_lshrrev_b32 v12, 4, v0            ; gb
    v_bfe_u32 v13, v0, 2, 2             ; r
    v_lshrrev_b32 v14, 1, v13
    v_lshlrev_b32 v14, 5, v14
    v_and_b32 v21, 1, v13
    v_lshlrev_b32 v21, 2, v21
    v_add3_u32 v14, v14, v21, v12
    v_lshlrev_b32 v14, 8, v14
    v_and_b32 v21, 1, v0
    v_lshlrev_b32 v21, 3, v21
    v_add_u32 v14, v14, v21
    v_and_b32 v21, 1, v12
    v_lshlrev_b32 v21, 1, v21
    v_lshlrev_b32 v22, 2, v13
    v_add_u32 v21, v21, v22
    v_bfe_u32 v22, v0, 1, 1
    s_lshl_b32 s4, s3, 2
    v_add_u32 v22, s4, v22
    v_xor_b32 v23, v22, v21
    v_lshlrev_b32 v23, 4, v23
    v_add_u32 v28, v14, v23
    v_add_u32 v22, 2, v22
    v_xor_b32 v23, v22, v21
    v_lshlrev_b32 v23, 4, v23
    v_add_u32 v29, v14, v23
    v_lshrrev_b32 v14, 1, v13
    v_lshlrev_b32 v21, 5, v14
    v_lshrrev_b32 v22, 1, v12
    v_lshlrev_b32 v22, 3, v22
    v_add_u32 v21, v21, v22
    v_and_b32 v22, 1, v12
    v_lshlrev_b32 v23, 2, v22
    v_add_u32 v21, v21, v23
    v_and_b32 v23, 1, v13
    v_add_u32 v21, v21, v23
    v_lshlrev_b32 v21, 7, v21
    v_lshlrev_b32 v14, 1, v14
    v_or_b32 v22, v22, v14
    v_lshlrev_b32 v22, 1, v22
    v_bfe_u32 v23, v0, 1, 1
    s_lshl_b32 s4, s3, 1
    v_add_u32 v23, s4, v23
    v_xor_b32 v23, v23, v22
    v_lshlrev_b32 v23, 4, v23
    v_and_b32 v22, 1, v0
    v_lshlrev_b32 v22, 3, v22
    v_add3_u32 v27, v21, v23, v22
    """)
    srd(a, SA,  P['Wq'], 576*8192)
    srd(a, SB0, P['Wk'], 576*8192)
    srd(a, SB1, P['Wv'], 576*8192)
    srd(a, SOUT, P['Wo'], 4096*1152)
    SR = {'Q':SA, 'K':SB0, 'V':SB1, 'O':SOUT}
    regq = [(M,c) for c in range(9) for M in 'QKV' if (M,c) not in RESQ_L]
    units = regq + [('O',j) for j in range(9)] + RESQ_L
    assert len(units) == 36
    a(f"""
    s_lshl_b32 s{sHoff}, s{sH}, 8
    s_mul_i32 s6, s3, {16*8192}
    s_add_u32 s6, s6, s{sHoff}
    s_mul_i32 s7, s{sH}, 147456
    s_mul_i32 s4, s3, {32*1152}
    s_add_u32 s7, s7, s4
    s_lshl_b32 s12, s3, 12
    """)
    NS = 10
    slot_of = lambda i: (i % NS) * SLOT
    def issue(i):
        M, c = units[i]
        for jj in range(4):
            a(f"s_add_u32 m0, s12, {slot_of(i) + jj*1024}")
            if M != 'O':
                a(f"s_add_u32 s4, s6, {(64*c + 4*jj)*8192}")
                a(f"buffer_load_dwordx4 v{24 + (jj&1)}, s[{SR[M]}:{SR[M]+3}], s4 offen lds")
            else:
                a(f"s_add_u32 s4, s7, {8*jj*1152 + c*128}")
                a(f"buffer_load_dwordx4 v26, s[{SR[M]}:{SR[M]+3}], s4 offen lds")
    for i in range(NS): issue(i)
    a("s_waitcnt vmcnt(40)\ns_barrier")
    a(f"""
    s_cmp_lg_u32 s3, 0
    s_cbranch_scc1 L_ci_hs
    s_getreg_b32 s4, hwreg(HW_REG_XCC_ID)
    s_and_b32 s4, s4, 7
    s_mul_i32 s4, s4, 7
    s_mov_b64 s[10:11], 1
    s_lshl_b64 s[10:11], s[10:11], s4
    s_mov_b64 s[8:9], exec
    s_mov_b64 exec, 1
    v_mov_b32 v12, 0
    v_mov_b32 v14, s10
    v_mov_b32 v15, s11
    v_mov_b32 v13, 1
    global_atomic_add_x2 v12, v[14:15], s[{P['dbg']}:{P['dbg']+1}]
    global_atomic_add v12, v13, s[{P['dbg']}:{P['dbg']+1}] offset:16
    s_mov_b64 exec, s[8:9]
    L_ci_hs:
    """)
    TO = 32
    for i in range(36):
        M, c = units[i]
        issued = min(max(i + NS - 2, NS - 1), 35)
        a(f"s_waitcnt vmcnt({min((issued - i)*4, 63)})")
        a("s_barrier")
        if i > 0 and i - 1 + NS <= 35: issue(i - 1 + NS)
        if i >= 30: continue
        base = slot_of(i)
        if M != 'O':
            for x in range(2):
                dst = WM[(M,c,x)]
                a(f"v_add_u32 v30, {base}, v{28+x}")
                for j in range(4):
                    a(f"ds_read_b64_tr_b16 {R(dst+2*j,2)}, v30 offset:{j*2048}")
        else:
            a(f"v_add_u32 v30, {base}, v27")
            for c2 in range(2):
                dst = WM[('O',c,c2)] if (c,c2) not in RESO_L else TO + 8*RESO_L.index((c,c2))
                for j in range(4):
                    a(f"ds_read_b64_tr_b16 {R(dst+2*j,2)}, v30 offset:{(64*c2 + 16*(j>>1) + 2*(j&1))*128}")
        a("s_waitcnt lgkmcnt(0)")
    a("s_barrier")
    a(f"""
    s_lshl_b32 s4, s3, 12
    v_add_u32 v{vResA}, s4, v{vL16}
    v_add_u32 v{vResB}, 0x10000, v{vResA}
    s_lshl_b32 s4, s3, 11
    s_add_u32 s4, s4, {RESO}
    v_add_u32 v{vResO}, s4, v{vL16}
    """)
    for k in range(5):
        a(f"ds_write_b128 v{vResO}, {vr(TO+8*k,4)} offset:{k*8192}\nds_write_b128 v{vResO}, {vr(TO+8*k+4,4)} offset:{k*8192+1024}")
    a("s_waitcnt lgkmcnt(0)")
    for u in range(6):
        base = u * SLOT
        for x in range(2):
            a(f"v_add_u32 v30, {base}, v{28+x}")
            for j in range(4):
                a(f"ds_read_b64_tr_b16 {vr(TO+8*x+2*j,2)}, v30 offset:{j*2048}")
        a("s_waitcnt lgkmcnt(0)\ns_barrier")
        rb, off = (vResA, base) if base < 65536 else (vResB, base - 65536)
        for x in range(2):
            a(f"ds_write_b128 v{rb}, {vr(TO+8*x,4)} offset:{off + x*2048}\nds_write_b128 v{rb}, {vr(TO+8*x+4,4)} offset:{off + x*2048 + 1024}")
        a("s_waitcnt lgkmcnt(0)")
    a("s_barrier")
    stamp(a, 1, 12, 13)
    a(f"""
    v_bfe_u32 v12, v0, 1, 1
    v_mov_b32 v{vIdx}, 0x4444
    v_mov_b32 v13, 0xeeee
    v_cmp_eq_u32 vcc, 1, v12
    s_nop 1
    v_cndmask_b32 v{vIdx}, v{vIdx}, v13, vcc
    v_lshrrev_b32 v12, 2, v0
    v_lshlrev_b32 v12, 5, v12
    v_and_b32 v13, 3, v0
    v_lshlrev_b32 v13, 3, v13
    v_add_u32 v12, v12, v13
    v_add_u32 v{vTrX}, {XQ}, v12
    v_and_b32 v12, 15, v0
    s_lshl_b32 s4, s3, 5
    v_add_u32 v12, s4, v12
    v_lshlrev_b32 v12, 5, v12
    v_lshrrev_b32 v13, 4, v0
    v_lshlrev_b32 v13, 3, v13
    v_add_u32 v12, v12, v13
    v_add_u32 v{vXQw}, {XQ}, v12
    v_bfe_u32 v12, v0, 2, 2
    v_lshlrev_b32 v12, 2, v12
    v_and_b32 v13, 1, v0
    s_and_b32 s4, s3, 1
    s_lshl_b32 s4, s4, 1
    v_add3_u32 v12, v12, v13, s4
    v_lshrrev_b32 v13, 5, v0
    v_lshlrev_b32 v13, 4, v13
    v_add_u32 v12, v12, v13
    v_lshlrev_b32 v12, 4, v12
    v_bfe_u32 v13, v0, 4, 1
    v_lshlrev_b32 v13, 3, v13
    v_add_u32 v12, v12, v13
    s_lshr_b32 s4, s3, 1
    s_lshl_b32 s4, s4, 10
    s_add_u32 s4, s4, {XO}
    v_add_u32 v{vXOw}, s4, v12
    s_mov_b32 s{sMask}, 0xcccccccc
    s_mov_b32 s{sMask+1}, 0xcccccccc
    s_mov_b32 s{sC1}, {fb(C1)}
    s_mov_b32 s{sRT}, -1
    s_cmp_eq_u32 s3, 0
    s_cselect_b32 s{sRT}, s{sH}, s{sRT}
    s_add_u32 s4, s{sH}, 32
    s_cmp_lt_u32 s{sH}, 4
    s_cselect_b32 s4, s4, -1
    s_cmp_eq_u32 s3, 1
    s_cselect_b32 s{sRT}, s4, s{sRT}
    """)
    a(f"""
    s_lshr_b32 s4, s{sRT}, 2
    s_lshl_b32 s4, s4, 10
    s_and_b32 s5, s{sRT}, 1
    s_lshl_b32 s5, s5, 9
    s_add_u32 s4, s4, s5
    s_bfe_u32 s5, s{sRT}, 0x10001
    s_lshl_b32 s5, s5, 5                ; 2*half*16
    s_add_u32 s4, s4, s5
    v_bfe_u32 v12, v0, 2, 1
    v_lshlrev_b32 v12, 8, v12
    v_lshrrev_b32 v13, 4, v0
    v_lshlrev_b32 v13, 6, v13
    v_add_u32 v12, v12, v13
    v_and_b32 v13, 1, v0
    v_lshlrev_b32 v13, 4, v13           ; (e'&1)*16
    v_add_u32 v12, v12, v13
    v_bfe_u32 v13, v0, 1, 1
    v_lshlrev_b32 v13, 3, v13
    v_add_u32 v12, v12, v13
    v_add_u32 v{vMst}, s4, v12
    v_bfe_u32 v13, v0, 3, 1
    v_mul_u32_u24 v13, {CS}, v13
    v_add_u32 v{vMst}, v{vMst}, v13
    v_and_b32 v12, 7, v0
    v_lshrrev_b32 v13, 1, v12
    v_and_b32 v16, 1, v12
    v_lshlrev_b32 v16, 4, v16
    v_mov_b32 v17, 0x3f80
    v_lshlrev_b32 v17, v16, v17
    """)
    for j in range(4):
        a(f"v_cmp_eq_u32 vcc, {j}, v13\ns_nop 1\nv_cndmask_b32 v{20+j}, 0, v17, vcc")
    a(f"v_add_u32 v16, {SEL}, v{vL16}\nds_write_b128 v16, v[20:23]")
    a("s_waitcnt lgkmcnt(0)")
    a(f"""
    v_mov_b32 v12, 0
    L_ci_w:
    global_load_dwordx2 v[14:15], v12, s[{P['dbg']}:{P['dbg']+1}] sc1
    s_waitcnt vmcnt(0)
    v_readfirstlane_b32 s4, v14
    v_readfirstlane_b32 s5, v15
    s_mov_b32 s6, 0
    s_mov_b32 s7, 0
    """)
    for k in range(8):
        a(f"s_and_b32 s10, s4, 127\ns_add_u32 s6, s6, s10\ns_max_u32 s7, s7, s10\ns_lshr_b64 s[4:5], s[4:5], 7")
    a(f"""
    s_cmp_ge_u32 s6, 32
    s_cbranch_scc1 L_ci_go
    s_sleep 2
    """)
    spin_check(a)
    a(f"""
    s_branch L_ci_w
    L_ci_go:
    s_cmp_ge_u32 s7, 32
    s_cselect_b32 s{sMode}, 0, 1
    """)
    if Cfg.FORCE_SLOW: a(f"s_mov_b32 s{sMode}, 1")

def zero(a, base, n):
    for i in range(0, n, 2): a(f"v_mov_b64 {vr(base+i,2)}, 0")
def smf(a, acc, A, B):
    a(f"v_smfmac_f32_16x16x64_bf16 {vr(acc,4)}, {vr(A,4)}, {R(B,8)}, v{vIdx}")

class LQ:
    def __init__(s, a): s.a = a; s.p = []
    def add(s, tag, n=1): s.p.extend([tag]*n)
    def wait(s, tags):
        idx = [i for i,t in enumerate(s.p) if t in tags]
        if not idx: return
        last = max(idx); n = len(s.p) - 1 - last
        s.a(f"s_waitcnt lgkmcnt({min(n,15)})"); del s.p[:last+1]

class Sch:
    def __init__(s, a, lq): s.a = a; s.lq = lq; s.f = []
    def fill(s, instr, tag=None): s.f.append((instr, tag))
    def front(s, lst):
        s.f[0:0] = lst
    def pop(s, n=1):
        for _ in range(n):
            if not s.f: return
            ins, tag = s.f.pop(0)
            s.a(ins)
            if tag is not None: s.lq.add(tag)
    def flush(s): s.pop(len(s.f))

sPJ = 32
WSR = f"s[{SWS}:{SWS+3}]"
ST = 32*8192
res_at = {c: M for (M,c) in RESQ_L}
res_list = sorted(res_at)
def rq(c, x):
    slot = RESQ_L.index((res_at[c],c)) * SLOT
    rb, off = (vResA, slot) if slot < 65536 else (vResB, slot - 65536)
    return [f"ds_read_b128 {vr(LD+8*x+4*q,4)}, v{rb} offset:{off + x*2048 + q*1024}" for q in range(2)]
ACCS = [52,53,54,55,56,57,58,61,62,63]

def chain_state_init(a):
    a(f"""
    s_mov_b32 s{sStep}, -1
    v_add_u32 v{vHi}, {HB}, v{vL16}
    s_lshl_b32 s{sW1k}, s3, 10
    s_lshl_b32 s4, s{sH}, 13
    s_lshl_b32 s5, s3, 11
    s_add_u32 s4, s4, s5
    s_add_u32 s{sKXo}, s4, {WS_KX}
    s_add_u32 s{sVXo}, s4, {WS_VX}
    s_lshl_b32 s4, s{sH}, 13
    s_and_b32 s5, s3, 1
    s_lshl_b32 s5, s5, 12
    s_add_u32 s4, s4, s5
    s_lshr_b32 s5, s3, 1
    s_mul_i32 s5, s5, {WS_VX-WS_KX}
    s_add_u32 s4, s4, s5
    s_add_u32 s{sPFo}, s4, {WS_KX + ST}
    s_lshl_b32 s4, s{sH}, 12
    s_add_u32 s4, s4, s{sW1k}
    s_add_u32 s{sPub}, s4, {WS_KM}
    s_lshl_b32 s4, s{sH}, 4
    s_lshl_b32 s5, s3, 2
    s_add_u32 s4, s4, s5
    s_add_u32 s{sProg}, s4, {F_PROG}
    s_mov_b32 s{sFlo}, {F_KV}
    s_lshl_b32 s4, s3, 13
    s_add_u32 s4, s4, s{sHoff}
    s_add_u32 s{sPst}, s4, {CH_PART + PART_SZ}
    s_add_u32 s5, s4, {CH_PART}
    s_xor_b32 s{sPstX}, s{sPst}, s5
    s_lshl_b32 s4, s{sRT}, 13
    s_add_u32 s{sRd}, s4, {CH_PART}
    s_add_u32 s5, s4, {CH_PART + PART_SZ}
    s_xor_b32 s{sRdX}, s{sRd}, s5
    s_mov_b32 s{sMemOff}, {-65536 & 0x3ffff}
    s_and_b32 s4, s{sH}, 3
    s_mul_i32 s4, s4, {CS}
    s_add_u32 s{sMB}, s4, {CH_MEM}
    s_lshl_b32 s4, s{sH}, 13
    s_lshl_b32 s5, s3, 11
    s_add_u32 s4, s4, s5
    s_add_u32 s{sRa}, s4, {CH_PART + PART_SZ}
    s_add_u32 s5, s4, {CH_PART}
    s_xor_b32 s{sRaX}, s{sRa}, s5
    s_add_u32 s{sRb}, s{sRa}, {32*8192}
    s_add_u32 s5, s5, {32*8192}
    s_xor_b32 s{sRbX}, s{sRb}, s5
    s_cmp_lt_u32 s{sH}, 4
    s_cselect_b32 s{sRb}, s{sRb}, {OOB}
    s_cselect_b32 s{sRbX}, s{sRbX}, 0
    s_mov_b32 s{sC1+1}, s{sC1}
    """)
    wave_wait_flag(a, str(F_KV), 32, vt=12)
    a(f"""
    s_add_u32 m0, s{sW1k}, s{sW1k}
    s_add_u32 m0, m0, {KXB}
    s_nop 0
    buffer_load_dwordx4 v{vL16}, {WSR}, s{sKXo} offen sc1 lds
    buffer_load_dwordx4 v{vL16}, {WSR}, s{sKXo} offen offset:1024 sc1 lds
    s_add_u32 s{sKXo}, s{sKXo}, {ST}
    v_mov_b32 v{vFlag}, 32
    """)
    stamp(a, 2, 12, 13)
    if Cfg.STAMPS: a("\n".join(f"s_mov_b32 s{r}, 0" for r in ACCS))
    cyc(a)

def chain_loop(a, slow):
    T = "s" if slow else "f"
    sfx = " sc1" if slow else ""
    def lb(n): return f"{n}_{T}"
    q0,q1,k0,k1,v0_,v1_ = ACC, ACC+4, ACC+8, ACC+12, ACC+16, ACC+20
    accs = {('Q',0):q0,('Q',1):q1,('K',0):k0,('K',1):k1,('V',0):v0_,('V',1):v1_}
    a.lab(lb("L_step"))
    cyc(a); ev(a, 0)
    lq = LQ(a); sch = Sch(a, lq)
    def aread_i(c): return f"ds_read_b128 {vr(AS+4*(c&1),4)}, v{vHi} offset:{MEMB - HB + c*1024}"
    a(aread_i(0)); lq.add(('A',0))
    a(aread_i(1)); lq.add(('A',1))
    for c in range(9):
        A = AS + 4*(c&1)
        base = [(M,x) for M in 'QKV' for x in range(2)]
        if c in res_at and c != 8:
            Mr = res_at[c]
            others = [o for o in base if o[0] != Mr]
            order = [others[0], (Mr,0), others[1], others[2], (Mr,1), others[3]]
        else:
            order = base
        if c >= 7: order = [('Q',0),('K',0),('Q',1),('K',1)]
        if 1 <= c < 8: sch.front([(aread_i(c+1), ('A',c+1))])
        for n_, (M,x) in enumerate(order):
            isres = (c in res_at and M == res_at[c])
            lq.wait([('A',c)] + ([('R',c,x)] if isres else []))
            B = (LD + 8*x) if isres else WM[(M,c,x)]
            smf(a, accs[(M,x)], A, B)
            if isres:
                nx = [r for r in res_list if r > c]
                if nx:
                    ins = rq(nx[0], x)
                    sch.front([(ins[0], ('R',nx[0],x)), (ins[1], ('R',nx[0],x))])
            if c == 1 and n_ == 5:
                Lok = lb("L_bok")
                a.lab(lb("L_chkB"))
                a("s_waitcnt vmcnt(0)")
                a(f"v_max_u32 v{vT}, v{PB}, v{PB+4}\nv_cmp_eq_u32 vcc, -1, v{vT}\ns_cbranch_vccnz {lb('L_retryB')}")
                ev(a, 1)
                a(f"ds_write_b128 v{vT+2}, {vr(PB,4)} offset:{MEMB-HB+4096}")
                a(f"ds_write_b32 v{vT+3}, v{PB+4}")
                lq.add('W', 2)
            elif c == 2 and n_ == 5:
                lq.wait(['W'])
                a("s_barrier")
                a(f"v_mov_b32 v{vT}, -1")
                for sr_ in (sRa, sRb):
                    for q in range(2):
                        sch.fill(f"buffer_store_dword v{vT}, v{vL16}, {WSR}, s{sr_} offen offset:{q*1024}{sfx}")
                sch.fill(f"s_xor_b32 s{sRa}, s{sRa}, s{sRaX}")
                sch.fill(f"s_xor_b32 s{sRb}, s{sRb}, s{sRbX}")
                sch.fill(f"buffer_load_dwordx4 {vr(PB,4)}, v{vL16}, {WSR}, s{sVXo} offen sc1")
                sch.fill(f"buffer_load_dwordx4 {vr(PB+4,4)}, v{vL16}, {WSR}, s{sVXo} offen offset:1024 sc1")
                sch.fill(f"s_add_u32 s{sVXo}, s{sVXo}, {ST}")
            else:
                sch.pop(1)
        if c == 6:
            sch.flush()
            a(f"v_readfirstlane_b32 s4, v{vFlag}\nv_lshlrev_b32 v{vT}, 2, v{vL16}\nv_mov_b32 v{vT+1}, 0\nv_mov_b32 v{vT+2}, s{sStep}\ns_cmp_ge_u32 s4, 32\ns_cbranch_scc0 {lb('L_flslow')}")
            a.lab(lb("L_fl_ok"))
            sch.fill(f"buffer_load_dword v{vFlag}, v{vT}, {WSR}, s{sPFo} offen sc1")
            sch.fill(f"s_add_u32 s{sPFo}, s{sPFo}, {ST}")
            sch.fill(f"s_add_u32 s4, s{sStep}, 2")
            sch.fill(f"s_lshr_b32 s4, s4, 1")
            sch.fill(f"s_min_u32 s4, s4, 31")
            sch.fill(f"s_lshl_b32 s4, s4, 7")
            sch.fill(f"s_add_u32 s{sFlo}, s4, {F_KV}")
            sch.fill(f"buffer_load_dword v{vFlag}, v{vT+1}, {WSR}, s{sFlo} offen sc1")
            sch.fill(f"buffer_store_dword v{vT+2}, v{vT+1}, {WSR}, s{sProg} offen sc1")
    sch.flush()
    cyc(a, 52); ev(a, 2)
    A7, A8 = AS+4, AS
    smf(a, v0_, A7, WM[('V',7,0)]); smf(a, v1_, A7, WM[('V',7,1)])
    a("s_nop 1")
    a(f"v_pk_add_f32 {vr(q0,2)}, {vr(q0,2)}, {vr(q0+2,2)}\nv_pk_add_f32 {vr(k0,2)}, {vr(k0,2)}, {vr(k0+2,2)}")
    a(f"v_cvt_pk_bf16_f32 v{k0}, v{k0}, v{k0+1}\nv_cvt_pk_bf16_f32 v{k0+1}, v{q0}, v{q0+1}")
    a(f"ds_write_b64 v{vXQw}, {vr(k0,2)}")
    a(f"v_pk_add_f32 {vr(q1,2)}, {vr(q1,2)}, {vr(q1+2,2)}\nv_pk_add_f32 {vr(k1,2)}, {vr(k1,2)}, {vr(k1+2,2)}")
    a(f"v_cvt_pk_bf16_f32 v{k0+2}, v{k1}, v{k1+1}\nv_cvt_pk_bf16_f32 v{k0+3}, v{q1}, v{q1+1}")
    a(f"ds_write_b64 v{vXQw}, {vr(k0+2,2)} offset:512")
    lq.wait([('R',8,0),('R',8,1)])
    smf(a, v0_, A8, LD)
    a(f"buffer_store_dwordx4 {vr(k0,4)}, v{vL16}, {WSR}, s{sPub} offen sc1")
    smf(a, v1_, A8, LD+8)
    a(f"s_add_u32 s4, s{sPub}, {WS_VM - WS_KM}")
    a("s_waitcnt lgkmcnt(0)\ns_barrier")
    sm, s1, s2 = q0, q1, k1
    KL = [24, 28, 12]
    for ks in range(4):
        for x2 in range(2):
            a(f"ds_read_b64_tr_b16 {vr(LD+4*ks+2*x2,2)}, v{vTrX} offset:{(32*ks+16*x2)*32}")
    def kxread(i): return f"ds_read_b128 {vr(KL[i%3],4)}, v{vHi} offset:{KXB - HB + i*1024}"
    for i in range(3): a(kxread(i))
    vp = v0_
    a(f"v_pk_add_f32 {vr(v0_,2)}, {vr(v0_,2)}, {vr(v0_+2,2)}\nv_pk_add_f32 {vr(v1_,2)}, {vr(v1_,2)}, {vr(v1_+2,2)}")
    a(f"v_cvt_pk_bf16_f32 v{vp}, v{v0_}, v{v0_+1}\nv_cvt_pk_bf16_f32 v{vp+2}, v{v1_}, v{v1_+1}\nv_mov_b32 v{vp+1}, 0\nv_mov_b32 v{vp+3}, 0")
    a(f"s_add_u32 s{sPub}, s{sPub}, {32*4096}")
    a(f"buffer_store_dwordx4 {vr(vp,4)}, v{vL16}, {WSR}, s4 offen sc1")
    a(f"s_cmp_eq_u32 s{sStep}, 63\ns_cbranch_scc1 L_chain_last")
    cyc(a, 53)
    a("s_waitcnt lgkmcnt(3)")
    ones = v1_
    for ks in range(4):
        c = "0" if ks == 0 else vr(sm,4)
        a(f"v_mfma_f32_16x16x32_bf16 {vr(sm,4)}, {vr(LD+4*ks,4)}, {vr(LD+4*ks,4)}, {c}")
        a(f"v_mov_b32 v{ones+ks}, 0x3f803f80")
    for i in range(8):
        t, ks = i >> 2, i & 3
        d = s1 if t == 0 else s2
        a(f"s_waitcnt lgkmcnt({min(2, 7 - i)})")
        c = "0" if ks == 0 else vr(d,4)
        a(f"v_mfma_f32_16x16x32_bf16 {vr(d,4)}, {vr(KL[i%3],4)}, {vr(LD+4*ks,4)}, {c}")
        if i + 3 < 8: a(kxread(i + 3))
    a(f"ds_read_b128 {vr(LD+8,4)}, v{vResO} offset:0\nds_read_b128 {vr(LD+12,4)}, v{vResO} offset:1024")
    a.nop(5)
    cyc(a, 54); ev(a, 3)
    vals = [sm, sm+1, s1, s1+1, s1+2, s1+3, s2, s2+1, s2+2, s2+3]
    mx, t2 = AS, AS+1
    a(f"v_max3_f32 v{mx}, v{vals[0]}, v{vals[1]}, v{vals[2]}")
    a(f"v_max3_f32 v{t2}, v{vals[3]}, v{vals[4]}, v{vals[5]}")
    a(f"v_max3_f32 v{mx}, v{mx}, v{vals[6]}, v{vals[7]}")
    a(f"v_max3_f32 v{t2}, v{t2}, v{vals[8]}, v{vals[9]}")
    a(f"v_max_f32 v{mx}, v{mx}, v{t2}")
    a(f"v_mov_b32 v{t2}, v{mx}\ns_nop 1\nv_permlane16_swap_b32 v{mx}, v{t2}\ns_nop 0\nv_max_f32 v{mx}, v{mx}, v{t2}")
    a(f"v_mov_b32 v{t2}, v{mx}\ns_nop 1\nv_permlane32_swap_b32 v{mx}, v{t2}\ns_nop 0\nv_max_f32 v{mx}, v{mx}, v{t2}")
    a(f"v_mul_f32 v{mx}, s{sC1}, v{mx}")
    for b_ in (sm, s1, s1+2, s2, s2+2):
        a(f"v_pk_fma_f32 {vr(b_,2)}, {vr(b_,2)}, s[{sC1}:{sC1+1}], {vr(mx,2)} op_sel_hi:[1,1,0] neg_lo:[0,0,1] neg_hi:[0,0,1]")
    for v in vals: a(f"v_exp_f32 v{v}, v{v}")
    pm, px, lr = LD, LD+4, AS+4
    a(f"v_mov_b32 v{pm+1}, 0")
    a(f"v_cvt_pk_bf16_f32 v{pm}, v{sm}, v{sm+1}")
    a(f"v_cvt_pk_bf16_f32 v{px}, v{s1}, v{s1+1}\nv_cvt_pk_bf16_f32 v{px+1}, v{s1+2}, v{s1+3}")
    a(f"v_cvt_pk_bf16_f32 v{px+2}, v{s2}, v{s2+1}\nv_cvt_pk_bf16_f32 v{px+3}, v{s2+2}, v{s2+3}")
    o0, o1 = sm, s1
    a("s_waitcnt vmcnt(5)\ns_nop 0")
    a(f"v_mfma_f32_16x16x32_bf16 {vr(lr,4)}, {vr(ones,4)}, {vr(px,4)}, 0")
    a(f"v_mfma_f32_16x16x32_bf16 {vr(o0,4)}, {vr(PB,4)}, {vr(px,4)}, 0")
    a(f"ds_read_b128 v[56:59], v{vResO} offset:8192")
    a(f"v_mfma_f32_16x16x32_bf16 {vr(o1,4)}, {vr(PB+4,4)}, {vr(px,4)}, 0")
    a(f"ds_read_b128 v[60:63], v{vResO} offset:{8192+1024}")
    a(f"v_mfma_f32_16x16x16_bf16 {vr(lr,4)}, {vr(ones,2)}, {vr(pm,2)}, {vr(lr,4)}")
    a(f"v_mfma_f32_16x16x16_bf16 {vr(o0,4)}, {vr(vp,2)}, {vr(pm,2)}, {vr(o0,4)}")
    a(f"v_mfma_f32_16x16x16_bf16 {vr(o1,4)}, {vr(vp+2,2)}, {vr(pm,2)}, {vr(o1,4)}")
    zero(a, 12, 4); zero(a, PB, 4)
    a("s_nop 1")
    a(f"v_rcp_f32 v{AS}, v{lr}")
    zero(a, PB+4, 2)
    for j in range(0, 8, 2):
        a(f"v_pk_mul_f32 {vr(o0+j,2)}, {vr(o0+j,2)}, {vr(AS,2)} op_sel_hi:[1,0]")
    a(f"v_cvt_pk_bf16_f32 v{o0}, v{o0}, v{o0+1}\nv_cvt_pk_bf16_f32 v{o0+1}, v{o0+2}, v{o0+3}")
    a(f"s_mov_b64 exec, s[{sMask}:{sMask+1}]")
    a(f"ds_write_b64 v{vXOw}, {vr(o0,2)}")
    a(f"v_cvt_pk_bf16_f32 v{o1}, v{o1}, v{o1+1}\nv_cvt_pk_bf16_f32 v{o1+1}, v{o1+2}, v{o1+3}")
    a(f"ds_write_b64 v{vXOw}, {vr(o1,2)} offset:512")
    a("s_mov_b64 exec, -1")
    zero(a, PB+6, 2); zero(a, 24, 8); zero(a, 64, 8)
    a(f"s_add_u32 m0, s{sW1k}, s{sW1k}\ns_add_u32 m0, m0, {KXB}")
    a("s_waitcnt lgkmcnt(0)\ns_barrier")
    a(f"ds_read_b128 {vr(LD,4)}, v{vHi} offset:{XO-HB}\nds_read_b128 {vr(LD+4,4)}, v{vHi} offset:{XO-HB+1024}")
    a(f"buffer_load_dwordx4 v{vL16}, {WSR}, s{sKXo} offen sc1 lds\nbuffer_load_dwordx4 v{vL16}, {WSR}, s{sKXo} offen offset:1024 sc1 lds")
    zero(a, 48, 8)
    a(f"s_add_u32 s{sKXo}, s{sKXo}, {ST}")
    a("s_waitcnt lgkmcnt(0)")
    cyc(a, 55); ev(a, 4)
    WA = [16, 20, 24, 28, 68, 64, 12, 48, 52]
    ROr = [LD+8, 56]
    lq2 = LQ(a); sc2 = Sch(a, lq2)
    def post(j):
        d = WA[j]
        a(f"v_pk_add_f32 {vr(d,2)}, {vr(d,2)}, {vr(d+2,2)}\nv_cvt_pk_bf16_f32 v{d}, v{d}, v{d+1}")
        sc2.front([(f"buffer_store_dword v{d}, v{vL4}, {WSR}, s{sPJ+j} offen{sfx}", None)])
    for j in range(9):
        smf(a, WA[j], LD, WM[('O',j,0)])
        sc2.pop(1)
        if (j,1) in RESO_L:
            k = RESO_L.index((j,1))
            lq2.wait([('O',k)])
            smf(a, WA[j], LD+4, ROr[k % 2])
            if k + 2 < 5:
                d = ROr[k % 2]
                sc2.fill(f"ds_read_b128 {vr(d,4)}, v{vResO} offset:{(k+2)*8192}", ('O',k+2))
                sc2.fill(f"ds_read_b128 {vr(d+4,4)}, v{vResO} offset:{(k+2)*8192+1024}", ('O',k+2))
        else:
            smf(a, WA[j], LD+4, WM[('O',j,1)])
        sc2.pop(1)
        if j >= 1 and j < 8:
            pass
        if j >= 2: post(j - 2)
    sc2.flush()
    post(7); sc2.flush()
    a("s_nop 1")
    post(8); sc2.flush()
    cyc(a, 56); ev(a, 5)
    a(f"s_cmp_eq_u32 s{sRT}, -1\ns_cbranch_scc1 {lb('L_nored')}")
    a(f"ds_read_b128 v[68:71], v{vHi} offset:{SEL-HB}\ns_add_u32 s{sT1}, s{sRd}, 4096")
    a(f"s_cmp_lt_u32 s{sRT}, {LATE}\ns_cbranch_scc1 {lb('L_poll1')}\ns_waitcnt vmcnt(0)")
    a.lab(lb("L_poll1"))
    RL = 16
    for j in range(8):
        a(f"buffer_load_dwordx4 {vr(RL+4*j,4)}, v{vL16}, {WSR}, s{sRd if j < 4 else sT1} offen offset:{(j&3)*1024} sc1")
    a(f"s_add_u32 s4, s{sMemOff}, 65536\ns_and_b32 s4, s4, 0x3ffff\ns_add_u32 s5, s4, {CH_MEM}\ns_add_u32 s6, s5, {2*CS}\ns_xor_b32 s4, s4, 0x20000\ns_add_u32 s{sRm0}, s4, {CH_MEM}\ns_add_u32 s{sRm1}, s{sRm0}, {2*CS}")
    a("s_waitcnt lgkmcnt(0)")
    for j in range(8):
        b = RL + 4*j
        a(f"s_waitcnt vmcnt({7-j})")
        a(f"v_mfma_f32_16x16x32_bf16 v[64:67], {vr(b,4)}, v[68:71], " + ("0" if j == 0 else "v[64:67]"))
        if j == 2: a(f"v_max3_u32 v{vT}, v{RL}, v{RL+4}, v{RL+8}")
        if j == 4: a(f"v_max3_u32 v{vT}, v{RL+12}, v{RL+16}, v{vT}")
        if j == 6: a(f"v_max3_u32 v{vT}, v{RL+20}, v{RL+24}, v{vT}")
    a(f"v_max_u32 v{vT}, v{vT}, v{RL+28}\nv_cmp_eq_u32 vcc, -1, v{vT}\ns_cbranch_vccnz {lb('L_retry1')}")
    ev(a, 6)
    a(f"""
    s_nop 4
    v_cvt_pk_bf16_f32 v56, v64, v65
    v_cvt_pk_bf16_f32 v57, v66, v67
    buffer_store_dwordx2 v[56:57], v{vMst}, {WSR}, s5 offen{sfx}
    buffer_store_dwordx2 v[56:57], v{vMst}, {WSR}, s6 offen{sfx}
    v_mov_b32 v60, -1
    s_xor_b32 s{sRd}, s{sRd}, s{sRdX}
    buffer_store_dword v60, v{vMst}, {WSR}, s{sRm0} offen{sfx}
    buffer_store_dword v60, v{vMst}, {WSR}, s{sRm1} offen{sfx}
    """)
    a.lab(lb("L_nored"))
    cyc(a, 57); ev(a, 7)
    a.lab(lb("L_book"))
    a(f"""
    s_add_u32 s{sMemOff}, s{sMemOff}, 65536
    s_and_b32 s{sMemOff}, s{sMemOff}, 0x3ffff
    s_add_u32 s{sT0}, s{sMemOff}, s{sMB}
    s_add_u32 s{sM0}, s{sT0}, s{sW1k}
    buffer_load_dwordx4 {vr(AS,4)}, v{vL16}, {WSR}, s{sM0} offen sc1
    s_add_u32 s{sStep}, s{sStep}, 1
    s_add_u32 s{sM1}, s{sM0}, 4096
    s_lshr_b32 s4, s{sW1k}, 2
    s_add_u32 s{sM2}, s{sT0}, s4
    s_add_u32 s{sM2}, s{sM2}, 8192
    s_add_u32 s{sT2}, s4, {MEMB + 8192}
    s_xor_b32 s{sPst}, s{sPst}, s{sPstX}
    s_mov_b32 s{sPJ}, s{sPst}
    """)
    for j in range(1, 9): a(f"s_add_u32 s{sPJ+j}, s{sPst}, {j*4*8192}")
    zero(a, ACC, 24)
    for x in range(2):
        for ins in rq(0, x): a(ins)
    a(f"v_add_u32 v{vT+2}, s{sW1k}, v{vHi}\nv_add_u32 v{vT+3}, s{sT2}, v{vL4}")
    def chk(reg, fail):
        a(f"v_cmp_eq_u32 vcc, -1, v{reg}\ns_cbranch_vccnz {fail}")
    def okpath(reg):
        ev(a, 8, 31)
        a(f"ds_write_b128 v{vT+2}, {vr(reg,4)} offset:{MEMB-HB}")
        a(f"buffer_load_dwordx4 {vr(PB,4)}, v{vL16}, {WSR}, s{sM1} offen sc1\nbuffer_load_dword v{PB+4}, v{vL4}, {WSR}, s{sM2} offen sc1")
    a(f"buffer_load_dwordx4 {vr(AS+4,4)}, v{vL16}, {WSR}, s{sM0} offen sc1")
    a.lab(lb("L_pA0"))
    a("s_waitcnt vmcnt(1)")
    a.lab(lb("L_pA0c"))
    chk(AS, lb("L_pA0f"))
    okpath(AS)
    a.lab(lb("L_pAdone"))
    a("s_waitcnt vmcnt(2) lgkmcnt(0)\ns_barrier")
    cyc(a, 58); ev(a, 9, 31)
    a(f"s_branch {lb('L_step')}")
    a.lab(lb("L_pA0f"))
    if Cfg.STAMPS: a("s_add_u32 s62, s62, 1")
    spin_check(a)
    a(f"buffer_load_dwordx4 {vr(AS,4)}, v{vL16}, {WSR}, s{sM0} offen sc1")
    a("s_waitcnt vmcnt(1)")
    chk(AS+4, lb("L_pA1f"))
    okpath(AS+4)
    a(f"s_branch {lb('L_pAdone')}")
    a.lab(lb("L_pA1f"))
    if Cfg.STAMPS: a("s_add_u32 s62, s62, 1")
    a(f"buffer_load_dwordx4 {vr(AS+4,4)}, v{vL16}, {WSR}, s{sM0} offen sc1")
    a(f"s_branch {lb('L_pA0')}")
    a.lab(lb("L_retryB"))
    if Cfg.STAMPS: a("s_add_u32 s63, s63, 1")
    spin_check(a)
    a(f"buffer_load_dwordx4 {vr(PB,4)}, v{vL16}, {WSR}, s{sM1} offen sc1\nbuffer_load_dword v{PB+4}, v{vL4}, {WSR}, s{sM2} offen sc1\ns_branch {lb('L_chkB')}")
    a.lab(lb("L_retry1"))
    if Cfg.STAMPS: a("s_add_u32 s61, s61, 1")
    spin_check(a)
    a(f"s_branch {lb('L_poll1')}")
    a.lab(lb("L_flslow"))
    wave_wait_flag(a, sFlo, 32, vt=vT)
    a(f"v_lshlrev_b32 v{vT}, 2, v{vL16}\nv_mov_b32 v{vT+1}, 0\ns_branch {lb('L_fl_ok')}")

BACKOFF = 0
LATE = 24
def chain(a):
    chain_init(a)
    chain_state_init(a)
    a(f"s_cmp_lg_u32 s{sMode}, 0\ns_cbranch_scc1 L_book_s\ns_branch L_book_f")
    chain_loop(a, False)
    chain_loop(a, True)
    a.lab("L_chain_last")
    a(f"""
    s_waitcnt vmcnt(0)
    v_mov_b32 v{vT}, 0
    v_mov_b32 v{vT+1}, 64
    buffer_store_dword v{vT+1}, v{vT}, {WSR}, s{sProg} offen sc1
    """)
    stamp(a, 3, 12, 13)
    cyc_out(a, 16, ACCS+[S_SPIN], 12, 13)
    ev_dump(a, 10)
    a("s_waitcnt vmcnt(0)")
```

```python
from asmlib import *
from layout import *
import struct
def fb(f): return "0x%08x" % struct.unpack("<I", struct.pack("<f", f))[0]

P = dict(x=16, mem0=18, Wq=20, Wk=22, Wv=24, Wo=26, seg=28, xb=30, Wg=32, Wu=34, Wd=36, gw=38, out=40, dbg=42, ws=44)
SWS=48; SA=52; SB0=56; SB1=60; SOUT=64
S_SPIN=47
class Cfg:
    STAMPS = False
    FORCE_SLOW = False
    TRACE = False
    NOCOMM = False
WS_STAMP = 0x7000000

def srd(a, dst, ptr, size, add=None):
    if add is None:
        a(f"s_mov_b32 s{dst}, s{ptr}\ns_mov_b32 s{dst+1}, s{ptr+1}")
    else:
        a(f"s_add_u32 s{dst}, s{ptr}, {add}\ns_addc_u32 s{dst+1}, s{ptr+1}, 0")
    a(f"s_mov_b32 s{dst+2}, {size}\ns_mov_b32 s{dst+3}, 0x20000")

def stamp(a, i, vd=1, vz=30):
    if not Cfg.STAMPS: return
    L = a.uniq("L_st")
    a(f"""
    s_cmp_lg_u32 s3, 0
    s_cbranch_scc1 {L}
    s_memrealtime s[96:97]
    s_lshl_b32 s98, s2, 8
    s_add_u32 s98, s98, {WS_STAMP + 4*i}
    s_waitcnt lgkmcnt(0)
    v_mov_b32 v{vd}, s96
    v_mov_b32 v{vz}, 0
    s_mov_b64 s[96:97], exec
    s_mov_b64 exec, 1
    buffer_store_dword v{vd}, v{vz}, s[{SWS}:{SWS+3}], s98 offen
    s_mov_b64 exec, s[96:97]
    """)
    a.lab(L)
def cyc(a, acc=None):
    if not Cfg.STAMPS: return
    a("s_memtime s[94:95]\ns_waitcnt lgkmcnt(0)")
    if acc is not None:
        a(f"s_sub_u32 s93, s94, s89\ns_add_u32 s{acc}, s{acc}, s93")
    a("s_mov_b32 s89, s94")
def cyc_out(a, idx, regs, vd=1, vz=30):
    if not Cfg.STAMPS: return
    L = a.uniq("L_co")
    a(f"s_cmp_lg_u32 s3, 0\ns_cbranch_scc1 {L}\ns_lshl_b32 s98, s2, 8\ns_add_u32 s98, s98, {WS_STAMP + 4*idx}\nv_mov_b32 v{vz}, 0\ns_mov_b64 s[96:97], exec\ns_mov_b64 exec, 1")
    for i, r in enumerate(regs):
        a(f"v_mov_b32 v{vd}, s{r}\nbuffer_store_dword v{vd}, v{vz}, s[{SWS}:{SWS+3}], s98 offen offset:{4*i}\ns_nop 1")
    a("s_mov_b64 exec, s[96:97]")
    a.lab(L)

def prologue(a):
    a("""
    s_cmp_ge_u32 s2, 256
    s_cbranch_scc1 L_exit
    s_load_dwordx16 s[16:31], s[0:1], 0
    s_load_dwordx8 s[32:39], s[0:1], 64
    s_load_dwordx4 s[40:43], s[0:1], 96
    s_load_dwordx2 s[44:45], s[0:1], 112
    v_lshrrev_b32 v1, 6, v0
    v_and_b32 v0, 63, v0
    s_mov_b32 s47, 0
    v_readfirstlane_b32 s3, v1
    s_waitcnt lgkmcnt(0)
    """)
    srd(a, SWS, P['ws'], 0x10000000)

SPIN_MAX = 0x20000
def spin_check(a):
    a(f"s_add_u32 s{S_SPIN}, s{S_SPIN}, 1\ns_cmp_gt_u32 s{S_SPIN}, {SPIN_MAX}\ns_cbranch_scc1 L_exit")

def wave_wait_flag(a, soff, target, vt=28, sleep=True, cmp="ge"):
    if Cfg.NOCOMM: return
    L = a.uniq("L_wf")
    if isinstance(soff, int): so = f"s{soff}"
    else:
        a(f"s_mov_b32 s46, {soff}"); so = "s46"
    a(f"v_mov_b32 v{vt}, 0")
    a.lab(L)
    a(f"buffer_load_dword v{vt+1}, v{vt}, s[{SWS}:{SWS+3}], {so} offen sc1")
    a("s_waitcnt vmcnt(0)")
    a(f"v_readfirstlane_b32 s4, v{vt+1}\ns_nop 1")
    Ld = a.uniq("L_wfd")
    a(f"s_cmp_ge_u32 s4, {target}\ns_cbranch_scc1 {Ld}")
    if sleep: a("s_sleep 8")
    spin_check(a)
    a(f"s_branch {L}")
    a.lab(Ld)

def wg_wait_flag(a, soff, target, vt=28):
    L = a.uniq("L_wg")
    a(f"s_cmp_lg_u32 s3, 0\ns_cbranch_scc1 {L}")
    wave_wait_flag(a, soff, target, vt)
    a.lab(L)
    a("s_barrier")

def wave_signal(a, soff, tmp=28):
    if isinstance(soff, int): so = f"s{soff}"
    else:
        a(f"s_mov_b32 s46, {soff}"); so = "s46"
    a(f"""
    s_mov_b64 s[8:9], exec
    s_mov_b64 exec, 1
    v_mov_b32 v{tmp}, 0
    v_mov_b32 v{tmp+1}, 1
    buffer_atomic_add v{tmp+1}, v{tmp}, s[{SWS}:{SWS+3}], {so} offen
    s_mov_b64 exec, s[8:9]
    """)
def signal_flag(a, soff, tmp=28):
    L = a.uniq("L_sig")
    a(f"s_cmp_lg_u32 s3, 0\ns_cbranch_scc1 {L}")
    wave_signal(a, soff, tmp)
    a.lab(L)

def init_wait(a, vt=28):
    L = a.uniq("L_iw"); Ld = a.uniq("L_iwd")
    a(f"s_cmp_lg_u32 s3, 0\ns_cbranch_scc1 {Ld}\nv_mov_b32 v{vt}, 0")
    a.lab(L)
    a(f"global_load_dword v{vt+1}, v{vt}, s[{P['dbg']}:{P['dbg']+1}] offset:16 sc1\ns_waitcnt vmcnt(0)\nv_readfirstlane_b32 s4, v{vt+1}\ns_nop 1\ns_cmp_ge_u32 s4, 32\ns_cbranch_scc1 {Ld}\ns_sleep 4")
    spin_check(a)
    a(f"s_branch {L}")
    a.lab(Ld)

def ev(a, e, val=30, sstep=70):
    if not Cfg.TRACE: return
    L = a.uniq("L_ev")
    a(f"""
    s_cmp_lg_u32 s{sstep}, {val}
    s_cbranch_scc1 {L}
    s_memrealtime s[94:95]
    s_waitcnt lgkmcnt(0)
    s_mov_b32 s{52+e}, s94
    """)
    a.lab(L)
def ev_dump(a, n, sh=68, vd=12, vz=13):
    if not Cfg.TRACE: return
    a(f"""
    s_lshl_b32 s7, s{sh}, 2
    s_add_u32 s7, s7, s3
    s_lshl_b32 s7, s7, 6
    s_add_u32 s7, s7, {0x7200000}
    v_mov_b32 v{vz}, 0
    s_mov_b64 exec, 1
    """)
    for e in range(n):
        a(f"v_mov_b32 v{vd}, s{52+e}\nbuffer_store_dword v{vd}, v{vz}, s[{SWS}:{SWS+3}], s7 offen offset:{4*e}\ns_nop 1")
    a("s_mov_b64 exec, -1")
```

```python
from common import *

sGrp=68; sSl=69; sSeg=70; sAoff=71; sT0=72; sT1=73; sT2=74
vL16=2; vTrA=3
vDm=6; vRed=7; vOutOff=8; vGoff=9
ACC2=12
LAND=36
TMP=76
def B2(ks, nt, KS):
    i = (ks*3+nt)*4
    return 256+i if i < 256 else (512 - KS*12) + (i-256)

def w2_consts(a):
    a(f"""
    v_lshlrev_b32 v{vL16}, 4, v0
    v_lshrrev_b32 v12, 3, v0
    v_and_b32 v13, 7, v0
    v_bfe_u32 v14, v0, 4, 2
    v_lshlrev_b32 v14, 1, v14
    v_xor_b32 v13, v13, v14
    v_lshlrev_b32 v13, 4, v13
    s_movk_i32 s4, 1152
    v_mul_lo_u32 v12, v12, s4
    v_add_u32 v{vDm}, v12, v13
    v_lshrrev_b32 v12, 2, v0          ; 4g + r  (= l>>2)
    v_bfe_u32 v13, v12, 1, 2
    v_lshlrev_b32 v13, 1, v13         ; swz
    v_lshlrev_b32 v12, 7, v12
    v_and_b32 v14, 1, v0
    v_lshlrev_b32 v14, 3, v14
    v_add_u32 v12, v12, v14
    s_mul_i32 s4, s3, 40960
    v_add_u32 v12, s4, v12
    v_bfe_u32 v14, v0, 1, 1
    """)
    for nt in range(3):
        a(f"""
        v_add_u32 v15, {2*nt}, v14
        v_xor_b32 v15, v15, v13
        v_lshlrev_b32 v15, 4, v15
        v_add_u32 v{vTrA+nt}, v12, v15
        """)

def w2_bload(a, KS, wptr, nrows):
    a(f"s_mul_i32 s13, s{sSl}, 96")
    srd(a, SB0, P[wptr], nrows*1152, add="s13")
    a(f"s_sub_u32 s{SB0+2}, s{SB0+2}, s13")
    NU = KS // 2
    NS = 5
    a(f"s_mul_i32 s12, s3, {KS*32*1152}")
    a(f"s_mul_i32 s11, s3, 40960")
    def issue(u):
        for jj in range(8):
            a(f"s_add_u32 m0, s11, {(u % NS)*8192 + jj*1024}")
            a(f"s_add_u32 s4, s12, {(64*u + 8*jj)*1152}")
            a(f"buffer_load_dwordx4 v{vDm}, s[{SB0}:{SB0+3}], s4 offen lds")
    for u in range(min(NS, NU)): issue(u)
    for u in range(NU):
        issued = min(u + NS - 1, NU - 1)
        a(f"s_waitcnt vmcnt({(issued - u)*8})")
        for k2 in range(2):
            ks = 2*u + k2
            for nt in range(3):
                b = B2(ks, nt, KS)
                for x in range(2):
                    a(f"ds_read_b64_tr_b16 {R(b+2*x,2)}, v{vTrA+nt} offset:{(u % NS)*8192 + (32*k2+16*x)*128}")
        a("s_waitcnt lgkmcnt(0)")
        if u + NS < NU: issue(u + NS)

RED = 0
def w2_gemm(a, KS, abase, segstride):
    a(f"""
    s_mul_i32 s{sAoff}, s{sSeg}, {segstride}
    s_mul_i32 s4, s3, {KS*2048}
    s_add_u32 s{sAoff}, s{sAoff}, s4
    s_add_u32 s{sAoff}, s{sAoff}, {abase}
    """)
    D = 5
    def aload(ks):
        buf = LAND + (ks % D)*8
        a(f"s_add_u32 s{sT0}, s{sAoff}, {ks*2048}")
        a(f"buffer_load_dwordx4 {vr(buf,4)}, v{vL16}, s[{SWS}:{SWS+3}], s{sT0} offen sc1")
        a(f"buffer_load_dwordx4 {vr(buf+4,4)}, v{vL16}, s[{SWS}:{SWS+3}], s{sT0} offen offset:1024 sc1")
    for ks in range(D - 1): aload(ks)
    for ks in range(KS):
        if ks + D - 1 < KS:
            aload(ks + D - 1)
            a(f"s_waitcnt vmcnt({2*(D-1)})")
        else:
            a(f"s_waitcnt vmcnt({2*(KS-1-ks)})")
        buf = LAND + (ks % D)*8
        for tt in range(2):
            for nt in range(3):
                acc = ACC2 + (tt*3+nt)*4
                c = "0" if ks == 0 else vr(acc,4)
                a(f"v_mfma_f32_16x16x32_bf16 {vr(acc,4)}, {R(B2(ks,nt,KS),4)}, {vr(buf+4*tt,4)}, {c}")
    a(f"s_mul_i32 s4, s3, 6144\nv_add_u32 v{vRed}, s4, v{vL16}")
    a.nop(8)
    for t in range(6):
        a(f"ds_write_b128 v{vRed}, {vr(ACC2+4*t,4)} offset:{RED + t*1024}")
    a("s_waitcnt lgkmcnt(0)\ns_barrier")
    a(f"s_lshl_b32 s4, s3, 10\nv_add_u32 v{vRed}, s4, v{vL16}")
    for p in range(4):
        a(f"ds_read_b128 {vr(LAND+4*p,4)}, v{vRed} offset:{RED + p*6144}")
    for p in range(4):
        a(f"ds_read_b128 {vr(LAND+16+4*p,4)}, v{vRed} offset:{RED + p*6144 + 4096}")
    a("s_waitcnt lgkmcnt(0)")
    for half in range(2):
        b = LAND + 16*half
        for r in range(4):
            a(f"v_add_f32 v{b+r}, v{b+r}, v{b+4+r}")
            a(f"v_add_f32 v{b+8+r}, v{b+8+r}, v{b+12+r}")
        for r in range(4):
            a(f"v_add_f32 v{ACC2+4*half+r}, v{b+r}, v{b+8+r}")
    a("s_barrier")

def ffn2_phase(a):
    w2_consts(a)
    w2_bload(a, 36, 'Wd', 4608)
    stamp(a, 3)
    a(f"s_mov_b32 s{sSeg}, s{sGrp}")
    a.lab("L_ffn2_loop")
    a(f"s_lshr_b32 s5, s{sSeg}, 1\ns_lshl_b32 s5, s5, 7\ns_add_u32 s{sT1}, s5, {F_H}")
    wg_wait_flag(a, sT1, 36)
    w2_gemm(a, 36, WS_H, 144*2048)
    a(f"""
    s_mul_i32 s4, s{sSeg}, 12
    s_add_u32 s4, s4, s{sSl}
    s_mul_i32 s4, s4, 6144
    s_lshl_b32 s5, s3, 10
    s_add_u32 s4, s4, s5
    s_add_u32 s{sT1}, s4, {WS_BB}
    buffer_store_dwordx4 {vr(ACC2,4)}, v{vL16}, s[{SWS}:{SWS+3}], s{sT1} offen
    s_cmp_ge_u32 s3, 2
    s_cbranch_scc1 L_ffn2_ns
    s_add_u32 s{sT1}, s{sT1}, 4096
    buffer_store_dwordx4 {vr(ACC2+4,4)}, v{vL16}, s[{SWS}:{SWS+3}], s{sT1} offen
    L_ffn2_ns:
    s_add_u32 s{sSeg}, s{sSeg}, 18
    s_cmp_lt_u32 s{sSeg}, 64
    s_cbranch_scc1 L_ffn2_loop
    s_waitcnt vmcnt(0)
    s_barrier
    """)

tQ=12
tK=44
tS=76
tKM=100
tVM=116
tT=124
C1 = (128 ** -0.5) * 1.4426950408889634
def t4_task(a, Ldone):
    sF=sT1
    a(f"""
    s_lshr_b32 s5, s{sSeg}, 1
    s_lshl_b32 s5, s5, 7
    s_add_u32 s{sF}, s5, {F_KV}
    """)
    wave_wait_flag(a, sF, 32, vt=tT)
    a(f"s_add_u32 s{sF}, s5, {F_Q}")
    wave_wait_flag(a, sF, 16, vt=tT)
    a(f"""
    s_lshl_b32 s4, s{sSeg}, 5
    s_add_u32 s4, s4, s15             ; s*32+h
    s_lshl_b32 s{sT0}, s4, 13         ; *8192
    s_add_u32 s{sT2}, s{sT0}, {WS_QX}
    """)
    for i in range(8):
        if i == 4: a(f"s_add_u32 s{sT2}, s{sT2}, 4096")
        a(f"buffer_load_dwordx4 {vr(tQ+4*i,4)}, v{vL16}, s[{SWS}:{SWS+3}], s{sT2} offen offset:{(i%4)*1024} sc1")
    a(f"s_add_u32 s{sT2}, s{sT0}, {WS_KX}")
    for i in range(8):
        if i == 4: a(f"s_add_u32 s{sT2}, s{sT2}, 4096")
        a(f"buffer_load_dwordx4 {vr(tK+4*i,4)}, v{vL16}, s[{SWS}:{SWS+3}], s{sT2} offen offset:{(i%4)*1024} sc1")
    a("s_waitcnt vmcnt(0)")
    for t in range(2):
        for tt in range(2):
            if t > tt: continue
            d = tS + ((1+t)*2+tt)*4
            for ks in range(4):
                c = "0" if ks == 0 else vr(d,4)
                a(f"v_mfma_f32_16x16x32_bf16 {vr(d,4)}, {vr(tK+(t*4+ks)*4,4)}, {vr(tQ+(tt*4+ks)*4,4)}, {c}")
    a(f"s_nop 7\ns_add_u32 s{sT2}, s{sT0}, {WS_VX}")
    for i in range(8):
        if i == 4: a(f"s_add_u32 s{sT2}, s{sT2}, 4096")
        a(f"buffer_load_dwordx4 {vr(tK+4*i,4)}, v{vL16}, s[{SWS}:{SWS+3}], s{sT2} offen offset:{(i%4)*1024} sc1")
    a(f"s_lshl_b32 s5, s15, 4\ns_add_u32 s{sF}, s5, {F_PROG}\ns_add_u32 s7, s{sSeg}, 1\nv_mov_b32 v{tT}, 0")
    Lw = a.uniq("L_pg"); Ld = a.uniq("L_pgd")
    a.lab(Lw)
    a(f"buffer_load_dwordx4 {vr(tKM,4)}, v{tT}, s[{SWS}:{SWS+3}], s{sF} offen sc1\ns_waitcnt vmcnt(0)")
    a(f"v_min3_u32 v{tKM}, v{tKM}, v{tKM+1}, v{tKM+2}\nv_min_u32 v{tKM}, v{tKM}, v{tKM+3}\ns_nop 0\nv_readfirstlane_b32 s4, v{tKM}\ns_nop 1")
    a(f"s_cmp_ge_u32 s4, s7\ns_cbranch_scc1 {Ld}\ns_sleep 4")
    spin_check(a)
    a(f"s_branch {Lw}")
    a.lab(Ld)
    a(f"""
    s_lshl_b32 s4, s{sSeg}, 5
    s_add_u32 s4, s4, s15
    s_lshl_b32 s5, s4, 12
    s_add_u32 s{sT2}, s5, {WS_KM}
    """)
    for w_ in range(4):
        a(f"buffer_load_dwordx4 {vr(tKM+4*w_,4)}, v{vL16}, s[{SWS}:{SWS+3}], s{sT2} offen offset:{w_*1024} sc1")
    a(f"s_add_u32 s{sT2}, s5, {WS_VM}")
    for et in range(8):
        a(f"buffer_load_dword v{tVM+et}, v{vL16}, s[{SWS}:{SWS+3}], s{sT2} offen offset:{(et>>1)*1024 + (et&1)*8} sc1")
    a(f"""
    s_lshl_b32 s5, s3, 12
    s_add_u32 s5, s5, 32768
    v_and_b32 v{tT}, 15, v0
    v_lshlrev_b32 v{tT}, 5, v{tT}
    v_lshrrev_b32 v{tT+1}, 4, v0
    v_lshlrev_b32 v{tT+1}, 3, v{tT+1}
    v_add3_u32 v{tT}, v{tT}, v{tT+1}, s5
    v_lshrrev_b32 v{tT+1}, 2, v0
    v_lshlrev_b32 v{tT+1}, 5, v{tT+1}
    v_and_b32 v{tT+2}, 3, v0
    v_lshlrev_b32 v{tT+2}, 3, v{tT+2}
    v_add3_u32 v{tT+1}, v{tT+1}, v{tT+2}, s5
    s_waitcnt vmcnt(8)
    """)
    for w_ in range(4):
        a(f"ds_write_b64 v{tT}, {vr(tKM+4*w_,2)} offset:{w_*1024}\nds_write_b64 v{tT}, {vr(tKM+4*w_+2,2)} offset:{w_*1024+512}")
    a("s_waitcnt lgkmcnt(0)")
    for ks in range(4):
        for x2 in range(2):
            a(f"ds_read_b64_tr_b16 {vr(tKM+4*ks+2*x2,2)}, v{tT+1} offset:{(32*ks+16*x2)*32}")
    a("s_waitcnt lgkmcnt(0)")
    for tt in range(2):
        d = tS + tt*4
        for ks in range(4):
            c = "0" if ks == 0 else vr(d,4)
            a(f"v_mfma_f32_16x16x32_bf16 {vr(d,4)}, {vr(tKM+ks*4,4)}, {vr(tQ+(tt*4+ks)*4,4)}, {c}")
    a.nop(8)
    a(f"""
    v_lshrrev_b32 v{tT}, 4, v0
    v_lshlrev_b32 v{tT}, 2, v{tT}
    v_and_b32 v{tT+1}, 15, v0
    v_sub_u32 v{tT}, v{tT}, v{tT+1}
    v_mov_b32 v{tT+1}, 0xff800000
    """)
    for tt in range(2):
        d = tS + ((1+tt)*2+tt)*4
        for r in range(4):
            a(f"v_cmp_lt_i32 vcc, {-r}, v{tT}\ns_nop 1\nv_cndmask_b32 v{d+r}, v{d+r}, v{tT+1}, vcc")
    a(f"s_mov_b32 s6, {fb(C1)}")
    for tt in range(2):
        sm = tS + tt*4; s1 = tS + (2+tt)*4; s2 = tS + (4+tt)*4
        vals = [sm, sm+1, s1, s1+1, s1+2, s1+3] + ([s2, s2+1, s2+2, s2+3] if tt == 1 else [])
        mx = tT; t2 = tT+1
        a(f"v_max3_f32 v{mx}, v{vals[0]}, v{vals[1]}, v{vals[2]}")
        rest = vals[3:]
        while len(rest) >= 2:
            a(f"v_max3_f32 v{mx}, v{mx}, v{rest[0]}, v{rest[1]}"); rest = rest[2:]
        if rest: a(f"v_max_f32 v{mx}, v{mx}, v{rest[0]}")
        for sw in ("v_permlane16_swap_b32", "v_permlane32_swap_b32"):
            a(f"v_mov_b32 v{t2}, v{mx}\ns_nop 1\n{sw} v{mx}, v{t2}\ns_nop 1\nv_max_f32 v{mx}, v{mx}, v{t2}")
        a(f"v_mul_f32 v{mx}, s6, v{mx}")
        for v in vals: a(f"v_fma_f32 v{v}, v{v}, s6, -v{mx}")
        for v in vals: a(f"v_exp_f32 v{v}, v{v}")
        a("s_nop 0")
        p = tQ + tt*8
        a(f"v_cvt_pk_bf16_f32 v{p}, v{sm}, v{sm+1}\nv_mov_b32 v{p+1}, 0")
        a(f"v_cvt_pk_bf16_f32 v{p+4}, v{s1}, v{s1+1}\nv_cvt_pk_bf16_f32 v{p+5}, v{s1+2}, v{s1+3}")
        if tt == 1:
            a(f"v_cvt_pk_bf16_f32 v{p+6}, v{s2}, v{s2+1}\nv_cvt_pk_bf16_f32 v{p+7}, v{s2+2}, v{s2+3}")
        else:
            a(f"v_mov_b32 v{p+6}, 0\nv_mov_b32 v{p+7}, 0")
    for j in range(4): a(f"v_mov_b32 v{tKM+j}, 0x3f803f80")
    a("s_waitcnt vmcnt(0)")
    for et in range(8):
        a(f"v_mov_b32 v{tQ+16+2*et}, v{tVM+et}\nv_mov_b32 v{tQ+17+2*et}, 0")
    a("s_nop 1")
    a(f"""
    s_lshl_b32 s4, s{sSeg}, 7          ; s*128
    s_lshl_b32 s5, s15, 2              ; h*4
    s_add_u32 s4, s4, s5
    s_lshl_b32 s4, s4, 11              ; *2048
    s_add_u32 s{sT2}, s4, {WS_OX}
    """)
    for tt in range(2):
        p = tQ + tt*8
        lreg = tKM + 4
        a(f"v_mfma_f32_16x16x32_bf16 {vr(lreg,4)}, {vr(tKM,4)}, {vr(p+4,4)}, 0")
        for half in range(2):
            for e4 in range(4):
                et = 4*half + e4
                d = tS + 4*e4
                a(f"v_mfma_f32_16x16x32_bf16 {vr(d,4)}, {vr(tK+4*et,4)}, {vr(p+4,4)}, 0")
            if half == 0:
                a(f"v_mfma_f32_16x16x16_bf16 {vr(lreg,4)}, {vr(tKM,2)}, {vr(p,2)}, {vr(lreg,4)}")
            for e4 in range(4):
                et = 4*half + e4
                d = tS + 4*e4
                a(f"v_mfma_f32_16x16x16_bf16 {vr(d,4)}, {vr(tQ+16+2*et,2)}, {vr(p,2)}, {vr(d,4)}")
            a.nop(8)
            if half == 0:
                a(f"v_rcp_f32 v{tT}, v{lreg}\ns_nop 0")
            for j in range(16): a(f"v_mul_f32 v{tS+j}, v{tS+j}, v{tT}")
            for k2 in range(2):
                d = tS + 16 + 4*k2
                s = tS + 8*k2
                for j in range(4): a(f"v_cvt_pk_bf16_f32 v{d+j}, v{s+2*j}, v{s+2*j+1}")
                ksp = 2*half + k2
                off = ksp*2048 + tt*1024
                if off >= 4096:
                    a(f"s_add_u32 s{sT1}, s{sT2}, {off & ~4095}")
                    a(f"buffer_store_dwordx4 {vr(d,4)}, v{vL16}, s[{SWS}:{SWS+3}], s{sT1} offen offset:{off & 4095} sc1")
                else:
                    a(f"buffer_store_dwordx4 {vr(d,4)}, v{vL16}, s[{SWS}:{SWS+3}], s{sT2} offen offset:{off} sc1")
            a("s_nop 1")
    a("s_waitcnt vmcnt(0)")
    a(f"s_lshl_b32 s5, s{sSeg}, 7\ns_add_u32 s{sT1}, s5, {F_O}")
    wave_signal(a, sT1, tmp=tT)

def t5_phase(a):
    w2_consts(a)
    w2_bload(a, 32, 'Wo', 4096)
    stamp(a, 5)
    srd(a, SOUT, P['out'], 2048*1152)
    a("s_barrier")
    wg_wait_flag(a, str(F_G), 8)
    a(f"s_mov_b32 s{sSeg}, s{sGrp}")
    a.lab("L_t5_loop")
    a(f"""
    s_lshl_b32 s15, s{sSl}, 2
    s_add_u32 s15, s15, s3
    s_cmp_ge_u32 s15, 32
    s_cbranch_scc1 L_t4_skip
    """)
    t4_task(a, None)
    a.lab("L_t4_skip")
    a(f"s_lshl_b32 s5, s{sSeg}, 7\ns_add_u32 s{sT1}, s5, {F_O}")
    wg_wait_flag(a, sT1, 32)
    w2_gemm(a, 32, WS_OX, 128*2048)
    for which in range(2):
        Lsk = a.uniq("L_t5sk")
        if which == 1: a(f"s_cmp_ge_u32 s3, 2\ns_cbranch_scc1 {Lsk}")
        a(f"""
        s_add_u32 s5, s3, {4*which}        ; tile
        s_cmp_ge_u32 s5, 3
        s_cselect_b32 s6, 1, 0             ; tt
        s_mul_i32 s7, s6, 3
        s_sub_u32 s7, s5, s7               ; nt
        s_mul_i32 s4, s{sSeg}, 12
        s_add_u32 s4, s4, s{sSl}
        s_mul_i32 s4, s4, 6144
        s_lshl_b32 s9, s5, 10
        s_add_u32 s4, s4, s9
        s_add_u32 s{sT1}, s4, {WS_BB}
        buffer_load_dwordx4 {vr(LAND,4)}, v{vL16}, s[{SWS}:{SWS+3}], s{sT1} offen
        s_lshl_b32 s4, s{sSeg}, 5
        s_lshl_b32 s9, s6, 4
        s_add_u32 s4, s4, s9
        s_lshl_b32 s9, s4, 2
        s_add_u32 s{sT2}, s9, {WS_G}
        v_and_b32 v{TMP}, 15, v0
        v_lshlrev_b32 v{TMP+1}, 2, v{TMP}
        buffer_load_dword v{TMP+2}, v{TMP+1}, s[{SWS}:{SWS+3}], s{sT2} offen sc1
        s_movk_i32 s9, 1152
        v_mul_lo_u32 v{TMP}, v{TMP}, s9
        v_lshrrev_b32 v{TMP+1}, 4, v0
        v_lshlrev_b32 v{TMP+1}, 3, v{TMP+1}   ; 4g*2 bytes
        v_add_u32 v{TMP}, v{TMP}, v{TMP+1}
        s_mul_i32 s4, s4, 1152
        s_mul_i32 s9, s{sSl}, 96
        s_add_u32 s4, s4, s9
        s_lshl_b32 s9, s7, 5
        s_add_u32 s{sT1}, s4, s9
        s_waitcnt vmcnt(0)
        """)
        ac = ACC2 + 4*which
        for r in range(4):
            a(f"v_sub_f32 v{ac+r}, v{ac+r}, v{LAND+r}\nv_fma_f32 v{ac+r}, v{ac+r}, v{TMP+2}, v{LAND+r}")
        a(f"v_cvt_pk_bf16_f32 v{ac}, v{ac}, v{ac+1}\nv_cvt_pk_bf16_f32 v{ac+1}, v{ac+2}, v{ac+3}")
        a(f"buffer_store_dwordx2 {vr(ac,2)}, v{TMP}, s[{SOUT}:{SOUT+3}], s{sT1} offen")
        if which == 1: a.lab(Lsk)
    a(f"""
    s_add_u32 s{sSeg}, s{sSeg}, 18
    s_cmp_lt_u32 s{sSeg}, 64
    s_cbranch_scc1 L_t5_loop
    """)

def gate_task(a):
    srd(a, SA, P['x'], 2048*1152)
    a(f"""
    s_lshl_b32 s4, s15, 8
    s_lshl_b32 s5, s3, 6
    s_add_u32 s12, s4, s5
    v_add_u32 v2, s12, v0
    s_movk_i32 s4, 1152
    v_mul_lo_u32 v3, v2, s4
    v_mov_b32 v4, 0
    v_mov_b32 v7, 0
    """)
    for grp in range(9):
        a(f"s_load_dwordx16 s[68:83], s[{P['gw']}:{P['gw']+1}], {grp*128}\ns_load_dwordx16 s[84:99], s[{P['gw']}:{P['gw']+1}], {grp*128+64}")
        for c in range(8):
            a(f"buffer_load_dwordx4 {vr(8+4*c,4)}, v3, s[{SA}:{SA+3}], 0 offen offset:{grp*128 + c*16}")
        a("s_waitcnt vmcnt(0) lgkmcnt(0)")
        for c in range(8):
            for j in range(4):
                sg = 68+4*c+j; vx = 8+4*c+j
                a(f"s_lshl_b32 s4, s{sg}, 16\ns_and_b32 s5, s{sg}, 0xffff0000")
                a(f"v_lshlrev_b32 v5, 16, v{vx}\nv_and_b32 v6, 0xffff0000, v{vx}")
                a(f"v_fma_f32 v4, v5, s4, v4\nv_fma_f32 v7, v6, s5, v7")
    a("v_add_f32 v4, v4, v7")
    a(f"""
    v_mul_f32 v4, {fb(-1.4426950408889634)}, v4
    v_exp_f32 v4, v4
    s_nop 0
    v_add_f32 v4, 1.0, v4
    v_rcp_f32 v4, v4
    v_lshlrev_b32 v2, 2, v2
    s_mov_b32 s4, {WS_G}
    s_nop 0
    buffer_store_dword v4, v2, s[{SWS}:{SWS+3}], s4 offen sc1
    s_waitcnt vmcnt(0)
    s_barrier
    """)
    signal_flag(a, str(F_G))
```

```python
import sys
from asmlib import *
from layout import *
from common import *
import w1, w2, chain
from w1 import *

NAME = "gated_mix__memory_aug_recurrent_mem_tr__glu_gated_geglu__prompt"
HDR = open("cdna_kernels/%s.s.ref" % NAME).read().split("; @launch")[0].split("; Override launch")[0]

def workers(a):
    a("""
    s_lshr_b32 s15, s2, 3            ; b>>3
    s_and_b32 s4, s2, 7
    s_sub_u32 s4, s4, 1
    s_lshl_b32 s14, s4, 5
    s_add_u32 s14, s14, s15
    """)
    stamp(a, 0)
    w1_phase(a)
    stamp(a, 2)
    a(f"""
    s_cmp_ge_u32 s14, 216
    s_cbranch_scc1 L_gate
    s_mul_hi_u32 s{w2.sGrp}, s14, 0x15555556      ; wid/12
    s_mul_i32 s4, s{w2.sGrp}, 12
    s_sub_u32 s{w2.sSl}, s14, s4
    """)
    w2.ffn2_phase(a)
    stamp(a, 4)
    w2.t5_phase(a)
    stamp(a, 6)
    a("s_branch L_exit")
    a.lab("L_gate")
    a("s_sub_u32 s15, s14, 216")
    w2.gate_task(a)

def build(parts):
    a = A()
    prologue(a)
    a("s_and_b32 s4, s2, 7\ns_cmp_eq_u32 s4, 0\ns_cbranch_scc1 L_chain")
    if Cfg.NOCOMM: a('s_branch L_exit')
    workers(a)
    a("s_branch L_exit")
    a.lab("L_chain")
    chain.chain(a)
    a.lab("L_exit")
    body = a.text()
    if Cfg.NOCOMM:
        import re
        body = re.sub(r's_cbranch_vccnz (L_\w+)', r's_nop 0', body)
    txt = HDR + f"""; @launch grid=(256,1,1) block=(256,1,1) lds=163840
.amdgcn_target "amdgcn-amd-amdhsa--gfx950"
.text
.globl {NAME}_kernel
.p2align 8
.type {NAME}_kernel,@function
{NAME}_kernel:
{body}  s_endpgm
.section .rodata,"a"
.p2align 6
.amdhsa_kernel {NAME}_kernel
  .amdhsa_next_free_vgpr 512
  .amdhsa_next_free_sgpr 102
  .amdhsa_accum_offset 256
  .amdhsa_group_segment_fixed_size 0
  .amdhsa_kernarg_size 120
  .amdhsa_user_sgpr_count 2
  .amdhsa_user_sgpr_kernarg_segment_ptr 1
  .amdhsa_system_sgpr_workgroup_id_x 1
.end_amdhsa_kernel
"""
    return txt

if __name__ == "__main__":
    if "stamps" in sys.argv: Cfg.STAMPS = True
    if "trace" in sys.argv: Cfg.TRACE = True
    if "nocomm" in sys.argv: Cfg.NOCOMM = True
    for a_ in sys.argv:
        if a_.startswith("late="): chain.LATE = int(a_[5:])
        if a_.startswith("backoff="): chain.BACKOFF = int(a_[8:])
    if "slow" in sys.argv: Cfg.FORCE_SLOW = True
    out = sys.argv[1] if len(sys.argv) > 1 else "out.s"
    open(out, "w").write(build(None))
    print("wrote", out)
```

```python
from common import *

SLOT = 16384
RESO = 98304
MEMB = 139264
XQ   = MEMB + 9216
XO   = XQ + 4096
KXB  = XO + 2048
SEL  = KXB + 8192
assert SEL + 1024 == 163840
MEMSTRIDE = 65536
CS = 9472
OOB = 0x10000000
sH=68; sMode=69; sStep=70; sT0=71; sT1=72; sT2=73; sFirst=74; sRT=75; sHoff=76
sMask=84
sLo8=86
sC1=78
sRd=16; sRdX=17; sPst=18; sPstX=19; sMemOff=20; sM0=21; sM1=22; sM2=23; sKXo=24; sVXo=25; sPFo=26; sPub=27; sFlo=28; sProg=29; sW1k=30; sRa=41; sRb=42; sRm0=43; sRm1=31; sMB=77; sRaX=86; sRbX=87; sFlc=80; sReady=81; sPF2=82
vFlag=0; vL16=1; vIdx=2; vResA=3; vResB=4; vResO=5; vTrX=6; vXQw=7; vXOw=8; vL4=9; vMst=10; vHi=11
vT=12
PB=16
AS=24
LD=32
ACC=48
HB=131072
WBASE=72
C1 = (128 ** -0.5) * 1.4426950408889634

RESQ_L = [('Q',0),('K',2),('V',3),('Q',5),('K',6),('V',8)]
RESO_L = [(1,1),(3,1),(5,1),(7,1),(8,1)]
def build_wmap():
    ops = []
    for c in range(9):
        for M in 'QKV':
            if (M,c) in RESQ_L: continue
            for x in range(2): ops.append((M,c,x))
    for j in range(9):
        for c2 in range(2):
            if (j,c2) in RESO_L: continue
            ops.append(('O',j,c2))
    assert len(ops) == 55, len(ops)
    return {o: WBASE + 8*i for i,o in enumerate(ops)}
WM = build_wmap()

def chain_init(a):
    a(f"""
    s_lshr_b32 s{sH}, s2, 3
    v_lshlrev_b32 v{vL16}, 4, v0
    v_lshlrev_b32 v{vL4}, 2, v0
    """)
    stamp(a, 0, 12, 13)
    a(f"""
    v_mov_b32 v12, 0
    v_mov_b32 v13, 0
    v_mov_b32 v14, 0
    v_mov_b32 v15, 0
    v_mov_b32 v16, -1
    v_mov_b32 v17, -1
    v_mov_b32 v18, -1
    v_mov_b32 v19, -1
    s_lshl_b32 s4, s3, 10
    v_add_u32 v20, s4, v{vL16}
    s_mul_i32 s5, s{sH}, 768
    v_cmp_gt_u32 vcc, 768, v20
    s_and_saveexec_b64 s[8:9], vcc
    s_cbranch_execz L_ci_nf
    buffer_store_dwordx4 v[12:15], v20, s[{SWS}:{SWS+3}], s5 offen sc1
    L_ci_nf:
    s_mov_b64 exec, s[8:9]
    s_mul_i32 s5, s{sH}, 18432
    s_add_u32 s5, s5, {CH_PART}
    """)
    for i in range(4):
        a(f"buffer_store_dwordx4 v[16:19], v20, s[{SWS}:{SWS+3}], s5 offen sc1\ns_add_u32 s5, s5, 4096")
    a(f"""
    v_cmp_gt_u32 vcc, 2048, v20
    s_and_saveexec_b64 s[8:9], vcc
    s_cbranch_execz L_ci_np
    buffer_store_dwordx4 v[16:19], v20, s[{SWS}:{SWS+3}], s5 offen sc1
    L_ci_np:
    s_mov_b64 exec, s[8:9]
    s_lshl_b32 s5, s{sH}, 2
    s_add_u32 s5, s5, s3                 ; wi = h*4+w
    s_cmp_ge_u32 s5, 108
    s_cbranch_scc1 L_ci_nm2
    s_mul_hi_u32 s6, s5, 0x1c71c71d      ; wi/9
    s_mul_i32 s7, s6, 9
    s_sub_u32 s7, s5, s7                 ; chunk
    s_lshr_b32 s5, s6, 2
    s_add_u32 s5, s5, 1                  ; idx
    s_lshl_b32 s5, s5, 16
    s_and_b32 s6, s6, 3
    s_mul_i32 s6, s6, {CS}
    s_add_u32 s5, s5, s6
    s_lshl_b32 s7, s7, 10
    s_add_u32 s5, s5, s7
    s_add_u32 s5, s5, {CH_MEM}
    buffer_store_dwordx4 v[16:19], v{vL16}, s[{SWS}:{SWS+3}], s5 offen sc1
    L_ci_nm2:
    """)
    srd(a, SA, P['mem0'], 8*1152)
    a(f"""
    s_cmp_ge_u32 s{sH}, 9
    s_cbranch_scc1 L_ci_m0e
    v_bfe_u32 v12, v0, 2, 2
    v_lshlrev_b32 v12, 1, v12
    v_and_b32 v13, 1, v0
    v_add_u32 v12, v12, v13
    s_movk_i32 s4, 1152
    v_mul_lo_u32 v12, v12, s4
    v_bfe_u32 v13, v0, 1, 1
    v_lshlrev_b32 v13, 6, v13
    v_add_u32 v12, v12, v13
    v_lshrrev_b32 v13, 5, v0
    v_lshlrev_b32 v13, 5, v13
    v_add_u32 v12, v12, v13
    v_bfe_u32 v13, v0, 4, 1
    v_lshlrev_b32 v13, 2, v13
    v_add_u32 v12, v12, v13
    s_lshl_b32 s4, s{sH}, 7
    """)
    for ea in range(8):
        off = (4*(ea&3) + (ea>>2))*2
        a(f"buffer_load_ushort v{32 + ea}, v12, s[{SA}:{SA+3}], s4 offen offset:{off}")
    a("s_waitcnt vmcnt(0)")
    for j in range(4): a(f"v_lshl_or_b32 v{24+j}, v{33+2*j}, 16, v{32+2*j}")
    a(f"""
    s_lshl_b32 s4, s{sH}, 10
    s_mul_i32 s5, s3, {CS}
    s_add_u32 s4, s4, s5
    s_add_u32 s4, s4, {CH_MEM}
    buffer_store_dwordx4 v[24:27], v{vL16}, s[{SWS}:{SWS+3}], s4 offen sc1
    s_nop 1
    L_ci_m0e:
    """)
    a(f"""
    v_lshrrev_b32 v12, 4, v0
    v_and_b32 v13, 1, v12
    s_lshr_b32 s4, s3, 1
    s_lshl_b32 s4, s4, 2
    v_or_b32 v13, s4, v13
    v_lshlrev_b32 v14, 1, v13
    v_and_b32 v21, 15, v0
    v_xor_b32 v22, v21, v14
    v_lshlrev_b32 v22, 4, v22
    v_lshlrev_b32 v12, 13, v12
    v_add_u32 v24, v12, v22
    v_xor_b32 v14, 4, v14
    v_xor_b32 v22, v21, v14
    v_lshlrev_b32 v22, 4, v22
    v_add_u32 v25, v12, v22
    v_lshrrev_b32 v12, 3, v0
    s_movk_i32 s4, 1152
    v_mul_lo_u32 v12, v12, s4
    v_lshrrev_b32 v13, 5, v0
    s_and_b32 s4, s3, 1
    s_lshl_b32 s4, s4, 1
    v_or_b32 v13, s4, v13
    v_lshlrev_b32 v13, 1, v13
    v_and_b32 v21, 7, v0
    v_xor_b32 v21, v21, v13
    v_lshlrev_b32 v21, 4, v21
    v_add_u32 v26, v12, v21
    v_lshrrev_b32 v12, 4, v0            ; gb
    v_bfe_u32 v13, v0, 2, 2             ; r
    v_lshrrev_b32 v14, 1, v13
    v_lshlrev_b32 v14, 5, v14
    v_and_b32 v21, 1, v13
    v_lshlrev_b32 v21, 2, v21
    v_add3_u32 v14, v14, v21, v12
    v_lshlrev_b32 v14, 8, v14
    v_and_b32 v21, 1, v0
    v_lshlrev_b32 v21, 3, v21
    v_add_u32 v14, v14, v21
    v_and_b32 v21, 1, v12
    v_lshlrev_b32 v21, 1, v21
    v_lshlrev_b32 v22, 2, v13
    v_add_u32 v21, v21, v22
    v_bfe_u32 v22, v0, 1, 1
    s_lshl_b32 s4, s3, 2
    v_add_u32 v22, s4, v22
    v_xor_b32 v23, v22, v21
    v_lshlrev_b32 v23, 4, v23
    v_add_u32 v28, v14, v23
    v_add_u32 v22, 2, v22
    v_xor_b32 v23, v22, v21
    v_lshlrev_b32 v23, 4, v23
    v_add_u32 v29, v14, v23
    v_lshrrev_b32 v14, 1, v13
    v_lshlrev_b32 v21, 5, v14
    v_lshrrev_b32 v22, 1, v12
    v_lshlrev_b32 v22, 3, v22
    v_add_u32 v21, v21, v22
    v_and_b32 v22, 1, v12
    v_lshlrev_b32 v23, 2, v22
    v_add_u32 v21, v21, v23
    v_and_b32 v23, 1, v13
    v_add_u32 v21, v21, v23
    v_lshlrev_b32 v21, 7, v21
    v_lshlrev_b32 v14, 1, v14
    v_or_b32 v22, v22, v14
    v_lshlrev_b32 v22, 1, v22
    v_bfe_u32 v23, v0, 1, 1
    s_lshl_b32 s4, s3, 1
    v_add_u32 v23, s4, v23
    v_xor_b32 v23, v23, v22
    v_lshlrev_b32 v23, 4, v23
    v_and_b32 v22, 1, v0
    v_lshlrev_b32 v22, 3, v22
    v_add3_u32 v27, v21, v23, v22
    """)
    srd(a, SA,  P['Wq'], 576*8192)
    srd(a, SB0, P['Wk'], 576*8192)
    srd(a, SB1, P['Wv'], 576*8192)
    srd(a, SOUT, P['Wo'], 4096*1152)
    SR = {'Q':SA, 'K':SB0, 'V':SB1, 'O':SOUT}
    regq = [(M,c) for c in range(9) for M in 'QKV' if (M,c) not in RESQ_L]
    units = regq + [('O',j) for j in range(9)] + RESQ_L
    assert len(units) == 36
    a(f"""
    s_lshl_b32 s{sHoff}, s{sH}, 8
    s_mul_i32 s6, s3, {16*8192}
    s_add_u32 s6, s6, s{sHoff}
    s_mul_i32 s7, s{sH}, 147456
    s_mul_i32 s4, s3, {32*1152}
    s_add_u32 s7, s7, s4
    s_lshl_b32 s12, s3, 12
    """)
    NS = 10
    slot_of = lambda i: (i % NS) * SLOT
    def issue(i):
        M, c = units[i]
        for jj in range(4):
            a(f"s_add_u32 m0, s12, {slot_of(i) + jj*1024}")
            if M != 'O':
                a(f"s_add_u32 s4, s6, {(64*c + 4*jj)*8192}")
                a(f"buffer_load_dwordx4 v{24 + (jj&1)}, s[{SR[M]}:{SR[M]+3}], s4 offen lds")
            else:
                a(f"s_add_u32 s4, s7, {8*jj*1152 + c*128}")
                a(f"buffer_load_dwordx4 v26, s[{SR[M]}:{SR[M]+3}], s4 offen lds")
    for i in range(NS): issue(i)
    a("s_waitcnt vmcnt(40)\ns_barrier")
    if CODEPF:
        Lc = a.uniq("L_cpf")
        a(f"s_cmp_lg_u32 s3, 3\ns_cbranch_scc1 {Lc}")
        code_prefetch(a, "L_step_f", 8192, vt=12)
        a.lab(Lc)
    a(f"""
    s_cmp_lg_u32 s3, 0
    s_cbranch_scc1 L_ci_hs
    s_getreg_b32 s4, hwreg(HW_REG_XCC_ID)
    s_and_b32 s4, s4, 7
    s_mul_i32 s4, s4, 7
    s_mov_b64 s[10:11], 1
    s_lshl_b64 s[10:11], s[10:11], s4
    s_mov_b64 s[8:9], exec
    s_mov_b64 exec, 1
    v_mov_b32 v12, 0
    v_mov_b32 v14, s10
    v_mov_b32 v15, s11
    v_mov_b32 v13, 1
    global_atomic_add_x2 v12, v[14:15], s[{P['dbg']}:{P['dbg']+1}]
    global_atomic_add v12, v13, s[{P['dbg']}:{P['dbg']+1}] offset:16
    s_mov_b64 exec, s[8:9]
    L_ci_hs:
    """)
    TO = 32
    for i in range(36):
        M, c = units[i]
        issued = min(max(i + NS - 2, NS - 1), 35)
        a(f"s_waitcnt vmcnt({min((issued - i)*4, 63)})")
        a("s_barrier")
        if i > 0 and i - 1 + NS <= 35: issue(i - 1 + NS)
        if i >= 30: continue
        base = slot_of(i)
        if M != 'O':
            for x in range(2):
                dst = WM[(M,c,x)]
                a(f"v_add_u32 v30, {base}, v{28+x}")
                for j in range(4):
                    a(f"ds_read_b64_tr_b16 {R(dst+2*j,2)}, v30 offset:{j*2048}")
        else:
            a(f"v_add_u32 v30, {base}, v27")
            for c2 in range(2):
                dst = WM[('O',c,c2)] if (c,c2) not in RESO_L else TO + 8*RESO_L.index((c,c2))
                for j in range(4):
                    a(f"ds_read_b64_tr_b16 {R(dst+2*j,2)}, v30 offset:{(64*c2 + 16*(j>>1) + 2*(j&1))*128}")
        a("s_waitcnt lgkmcnt(0)")
    a("s_barrier")
    a(f"""
    s_lshl_b32 s4, s3, 12
    v_add_u32 v{vResA}, s4, v{vL16}
    v_add_u32 v{vResB}, 0x10000, v{vResA}
    s_lshl_b32 s4, s3, 11
    s_add_u32 s4, s4, {RESO}
    v_add_u32 v{vResO}, s4, v{vL16}
    """)
    for k in range(5):
        a(f"ds_write_b128 v{vResO}, {vr(TO+8*k,4)} offset:{k*8192}\nds_write_b128 v{vResO}, {vr(TO+8*k+4,4)} offset:{k*8192+1024}")
    a("s_waitcnt lgkmcnt(0)")
    for u in range(6):
        base = u * SLOT
        for x in range(2):
            a(f"v_add_u32 v30, {base}, v{28+x}")
            for j in range(4):
                a(f"ds_read_b64_tr_b16 {vr(TO+8*x+2*j,2)}, v30 offset:{j*2048}")
        a("s_waitcnt lgkmcnt(0)\ns_barrier")
        rb, off = (vResA, base) if base < 65536 else (vResB, base - 65536)
        for x in range(2):
            a(f"ds_write_b128 v{rb}, {vr(TO+8*x,4)} offset:{off + x*2048}\nds_write_b128 v{rb}, {vr(TO+8*x+4,4)} offset:{off + x*2048 + 1024}")
        a("s_waitcnt lgkmcnt(0)")
    a("s_barrier")
    stamp(a, 1, 12, 13)
    a(f"""
    v_bfe_u32 v12, v0, 1, 1
    v_mov_b32 v{vIdx}, 0x4444
    v_mov_b32 v13, 0xeeee
    v_cmp_eq_u32 vcc, 1, v12
    s_nop 1
    v_cndmask_b32 v{vIdx}, v{vIdx}, v13, vcc
    v_lshrrev_b32 v12, 2, v0
    v_lshlrev_b32 v12, 5, v12
    v_and_b32 v13, 3, v0
    v_lshlrev_b32 v13, 3, v13
    v_add_u32 v12, v12, v13
    v_add_u32 v{vTrX}, {XQ}, v12
    v_and_b32 v12, 15, v0
    s_lshl_b32 s4, s3, 5
    v_add_u32 v12, s4, v12
    v_lshlrev_b32 v12, 5, v12
    v_lshrrev_b32 v13, 4, v0
    v_lshlrev_b32 v13, 3, v13
    v_add_u32 v12, v12, v13
    v_add_u32 v{vXQw}, {XQ}, v12
    v_bfe_u32 v12, v0, 2, 2
    v_lshlrev_b32 v12, 2, v12
    v_and_b32 v13, 1, v0
    s_and_b32 s4, s3, 1
    s_lshl_b32 s4, s4, 1
    v_add3_u32 v12, v12, v13, s4
    v_lshrrev_b32 v13, 5, v0
    v_lshlrev_b32 v13, 4, v13
    v_add_u32 v12, v12, v13
    v_lshlrev_b32 v12, 4, v12
    v_bfe_u32 v13, v0, 4, 1
    v_lshlrev_b32 v13, 3, v13
    v_add_u32 v12, v12, v13
    s_lshr_b32 s4, s3, 1
    s_lshl_b32 s4, s4, 10
    s_add_u32 s4, s4, {XO}
    v_add_u32 v{vXOw}, s4, v12
    s_mov_b32 s{sMask}, 0xcccccccc
    s_mov_b32 s{sMask+1}, 0xcccccccc
    s_mov_b32 s{sC1}, {fb(C1)}
    s_mov_b32 s{sRT}, -1
    s_cmp_eq_u32 s3, 0
    s_cselect_b32 s{sRT}, s{sH}, s{sRT}
    s_add_u32 s4, s{sH}, 32
    s_cmp_lt_u32 s{sH}, 4
    s_cselect_b32 s4, s4, -1
    s_cmp_eq_u32 s3, 1
    s_cselect_b32 s{sRT}, s4, s{sRT}
    """)
    a(f"""
    s_lshr_b32 s4, s{sRT}, 2
    s_lshl_b32 s4, s4, 10
    s_and_b32 s5, s{sRT}, 1
    s_lshl_b32 s5, s5, 9
    s_add_u32 s4, s4, s5
    s_bfe_u32 s5, s{sRT}, 0x10001
    s_lshl_b32 s5, s5, 5                ; 2*half*16
    s_add_u32 s4, s4, s5
    v_bfe_u32 v12, v0, 2, 1
    v_lshlrev_b32 v12, 8, v12
    v_lshrrev_b32 v13, 4, v0
    v_lshlrev_b32 v13, 6, v13
    v_add_u32 v12, v12, v13
    v_and_b32 v13, 1, v0
    v_lshlrev_b32 v13, 4, v13           ; (e'&1)*16
    v_add_u32 v12, v12, v13
    v_bfe_u32 v13, v0, 1, 1
    v_lshlrev_b32 v13, 3, v13
    v_add_u32 v12, v12, v13
    v_add_u32 v{vMst}, s4, v12
    v_bfe_u32 v13, v0, 3, 1
    v_mul_u32_u24 v13, {CS}, v13
    v_add_u32 v{vMst}, v{vMst}, v13
    v_and_b32 v12, 7, v0
    v_lshrrev_b32 v13, 1, v12
    v_and_b32 v16, 1, v12
    v_lshlrev_b32 v16, 4, v16
    v_mov_b32 v17, 0x3f80
    v_lshlrev_b32 v17, v16, v17
    """)
    for j in range(4):
        a(f"v_cmp_eq_u32 vcc, {j}, v13\ns_nop 1\nv_cndmask_b32 v{20+j}, 0, v17, vcc")
    a(f"v_add_u32 v16, {SEL}, v{vL16}\nds_write_b128 v16, v[20:23]")
    a("s_waitcnt lgkmcnt(0)")
    a(f"""
    v_mov_b32 v12, 0
    L_ci_w:
    global_load_dwordx2 v[14:15], v12, s[{P['dbg']}:{P['dbg']+1}] sc1
    s_waitcnt vmcnt(0)
    v_readfirstlane_b32 s4, v14
    v_readfirstlane_b32 s5, v15
    s_mov_b32 s6, 0
    s_mov_b32 s7, 0
    """)
    for k in range(8):
        a(f"s_and_b32 s10, s4, 127\ns_add_u32 s6, s6, s10\ns_max_u32 s7, s7, s10\ns_lshr_b64 s[4:5], s[4:5], 7")
    a(f"""
    s_cmp_ge_u32 s6, 32
    s_cbranch_scc1 L_ci_go
    s_sleep 2
    """)
    spin_check(a)
    a(f"""
    s_branch L_ci_w
    L_ci_go:
    s_cmp_ge_u32 s7, 32
    s_cselect_b32 s{sMode}, 0, 1
    """)
    if Cfg.FORCE_SLOW: a(f"s_mov_b32 s{sMode}, 1")

def zero(a, base, n):
    for i in range(0, n, 2): a(f"v_mov_b64 {vr(base+i,2)}, 0")
def smf(a, acc, A, B):
    a(f"v_smfmac_f32_16x16x64_bf16 {vr(acc,4)}, {vr(A,4)}, {R(B,8)}, v{vIdx}")

class LQ:
    def __init__(s, a): s.a = a; s.p = []
    def add(s, tag, n=1): s.p.extend([tag]*n)
    def wait(s, tags):
        idx = [i for i,t in enumerate(s.p) if t in tags]
        if not idx: return
        last = max(idx); n = len(s.p) - 1 - last
        s.a(f"s_waitcnt lgkmcnt({min(n,15)})"); del s.p[:last+1]

VSPACE = 4
VSPACE2 = 2
class Sch:
    def __init__(s, a, lq): s.a = a; s.lq = lq; s.f = []; s.since = 99; s.vs = VSPACE
    def fill(s, instr, tag=None): s.f.append((instr, tag))
    def front(s, lst):
        k = 0
        while k < len(s.f) and (s.f[k][1] == 'W' or (isinstance(s.f[k][1], tuple) and s.f[k][1][0] == 'A')): k += 1
        s.f[k:k] = lst
    def pop(s, n=1, force=False):
        for _ in range(n):
            if not s.f: return
            k = 0
            s.since += 1
            if not force and s.vs:
                k = None
                for q, (ins, tag) in enumerate(s.f):
                    if ins.startswith("buffer_"):
                        if s.since >= s.vs and not any(x[0].startswith("buffer_") for x in s.f[:q]): k = q; break
                    else:
                        k = q; break
                if k is None: return
            ins, tag = s.f.pop(k)
            if ins.startswith("buffer_"): s.since = 0
            s.a(ins)
            if tag is not None: s.lq.add(tag)
    def flush(s): s.pop(len(s.f), force=True)

sPJ = 32
WSR = f"s[{SWS}:{SWS+3}]"
ST = 32*8192
res_at = {c: M for (M,c) in RESQ_L}
res_list = sorted(res_at)
def rq(c, x):
    slot = RESQ_L.index((res_at[c],c)) * SLOT
    rb, off = (vResA, slot) if slot < 65536 else (vResB, slot - 65536)
    return [f"ds_read_b128 {vr(LD+8*x+4*q,4)}, v{rb} offset:{off + x*2048 + q*1024}" for q in range(2)]
ACCS = [52,53,54,55,56,57,58,61,62,63,59,60]

def chain_state_init(a):
    a(f"""
    s_mov_b32 s{sStep}, -1
    v_add_u32 v{vHi}, {HB}, v{vL16}
    s_lshl_b32 s{sW1k}, s3, 10
    s_lshl_b32 s4, s{sH}, 13
    s_lshl_b32 s5, s3, 11
    s_add_u32 s4, s4, s5
    s_add_u32 s{sKXo}, s4, {WS_KX}
    s_add_u32 s{sVXo}, s4, {WS_VX - ST}
    s_mov_b32 s{sPFo}, s{sKXo}
    s_lshl_b32 s4, s{sH}, 12
    s_add_u32 s4, s4, s{sW1k}
    s_add_u32 s{sPub}, s4, {WS_KM}
    s_lshl_b32 s4, s{sH}, 4
    s_lshl_b32 s5, s3, 2
    s_add_u32 s4, s4, s5
    s_add_u32 s{sProg}, s4, {F_PROG}
    s_lshl_b32 s4, s3, 13
    s_add_u32 s4, s4, s{sHoff}
    s_add_u32 s{sPst}, s4, {CH_PART + PART_SZ}
    s_add_u32 s5, s4, {CH_PART}
    s_xor_b32 s{sPstX}, s{sPst}, s5
    s_lshl_b32 s4, s{sRT}, 13
    s_add_u32 s{sRd}, s4, {CH_PART}
    s_add_u32 s5, s4, {CH_PART + PART_SZ}
    s_xor_b32 s{sRdX}, s{sRd}, s5
    s_mov_b32 s{sMemOff}, {-65536 & 0x3ffff}
    s_and_b32 s4, s{sH}, 3
    s_mul_i32 s4, s4, {CS}
    s_add_u32 s{sMB}, s4, {CH_MEM}
    s_lshl_b32 s4, s{sH}, 13
    s_lshl_b32 s5, s3, 11
    s_add_u32 s4, s4, s5
    s_add_u32 s{sRa}, s4, {CH_PART}
    s_add_u32 s5, s4, {CH_PART + PART_SZ}
    s_xor_b32 s{sRaX}, s{sRa}, s5
    s_add_u32 s{sRb}, s{sRa}, {32*8192}
    s_add_u32 s5, s5, {32*8192}
    s_xor_b32 s{sRbX}, s{sRb}, s5
    s_cmp_lt_u32 s{sH}, 4
    s_cselect_b32 s{sRb}, s{sRb}, {OOB}
    s_cselect_b32 s{sRbX}, s{sRbX}, 0
    s_mov_b32 s{sC1+1}, s{sC1}
    """)
    a(f"s_mov_b32 s{sFlc}, 0")
    kv_refresh(a, sFlc, 12)
    a(f"""
    s_add_u32 m0, s{sW1k}, s{sW1k}
    s_add_u32 m0, m0, {KXB}
    s_nop 0
    buffer_load_dwordx4 v{vL16}, {WSR}, s{sKXo} offen sc1 lds
    buffer_load_dwordx4 v{vL16}, {WSR}, s{sKXo} offen offset:1024 sc1 lds
    s_add_u32 s{sKXo}, s{sKXo}, {ST}
    """)
    book_salu(a)
    stamp(a, 2, 12, 13)
    if Cfg.STAMPS: a("\n".join(f"s_mov_b32 s{r}, 0" for r in ACCS))
    cyc(a)

def book_salu(a):
    a(f"""
    s_add_u32 s{sMemOff}, s{sMemOff}, 65536
    s_and_b32 s{sMemOff}, s{sMemOff}, 0x3ffff
    s_add_u32 s{sT0}, s{sMemOff}, s{sMB}
    s_add_u32 s{sM0}, s{sT0}, s{sW1k}
    s_add_u32 s{sStep}, s{sStep}, 1
    s_add_u32 s{sM1}, s{sM0}, 4096
    s_lshr_b32 s4, s{sW1k}, 2
    s_add_u32 s{sM2}, s{sT0}, s4
    s_add_u32 s{sM2}, s{sM2}, 8192
    s_add_u32 s{sT2}, s4, {MEMB + 8192}
    s_xor_b32 s{sPst}, s{sPst}, s{sPstX}
    s_mov_b32 s{sPJ}, s{sPst}
    """)
    for j in range(1, 9): a(f"s_add_u32 s{sPJ+j}, s{sPst}, {j*4*8192}")
    a(f"""
    s_xor_b32 s{sRa}, s{sRa}, s{sRaX}
    s_xor_b32 s{sRb}, s{sRb}, s{sRbX}
    s_add_u32 s{sVXo}, s{sVXo}, {ST}
    s_add_u32 s{sPFo}, s{sPFo}, {ST}
    s_add_u32 s{sPF2}, s{sPFo}, {WS_VX - WS_KX}
    s_add_u32 s4, s{sStep}, 1
    s_lshr_b32 s4, s4, 1
    s_min_u32 s{sFlc}, s4, 31
    """)

def kv_refresh(a, target_sgpr, vt):
    if Cfg.NOCOMM or getattr(Cfg,'WEXIT',False) or getattr(Cfg,'NOWAIT',False):
        a(f"s_mov_b32 s{sReady}, 32"); return
    L = a.uniq("L_kvr"); Ld = a.uniq("L_kvd")
    a.lab(L)
    a(f"""
    v_lshlrev_b32 v{vt}, 3, v{vL16}
    v_and_b32 v{vt}, 0xf80, v{vt}
    s_mov_b32 s4, {F_KV}
    buffer_load_dword v{vt}, v{vt}, {WSR}, s4 offen sc1
    s_waitcnt vmcnt(0)
    v_cmp_le_u32 vcc, 32, v{vt}
    s_nop 1
    s_not_b32 s4, vcc_lo
    s_ff1_i32_b32 s4, s4
    s_cmp_eq_u32 s4, -1
    s_cselect_b32 s{sReady}, 32, s4
    s_cmp_gt_u32 s{sReady}, s{target_sgpr}
    s_cbranch_scc1 {Ld}
    s_sleep 4
    """)
    spin_check(a)
    a(f"s_branch {L}")
    a.lab(Ld)

def chain_loop(a, slow):
    T = "s" if slow else "f"
    sfx = " sc1" if slow else ""
    def lb(n): return f"{n}_{T}"
    q0,q1,k0,k1,v0_,v1_ = ACC, ACC+4, ACC+8, ACC+12, ACC+16, ACC+20
    accs = {('Q',0):q0,('Q',1):q1,('K',0):k0,('K',1):k1,('V',0):v0_,('V',1):v1_}
    a.lab(lb("L_step"))
    cyc(a); ev(a, 0)
    if Cfg.STEPLOG:
        L = a.uniq("L_sl")
        a(f"""
        s_cmp_lg_u32 s3, 3
        s_cbranch_scc1 {L}
        s_memrealtime s[94:95]
        s_memtime s[96:97]
        s_lshl_b32 s7, s{sH}, 10
        s_lshl_b32 s6, s{sStep}, 3
        s_add_u32 s7, s7, s6
        s_add_u32 s7, s7, {0x7300000}
        s_waitcnt lgkmcnt(0)
        v_mov_b32 v{PB+6}, s94
        v_mov_b32 v{PB+7}, s96
        v_mov_b32 v{vT}, 0
        buffer_store_dwordx2 {vr(PB+6,2)}, v{vT}, {WSR}, s7 offen
        """)
        a.lab(L)
    lq = LQ(a); sch = Sch(a, lq)
    def aread_i(c): return f"ds_read_b128 {vr(AS+4*(c&1),4)}, v{vHi} offset:{MEMB - HB + c*1024}"
    a(aread_i(0)); lq.add(('A',0))
    a(aread_i(1)); lq.add(('A',1))
    for sr_ in (sRa, sRb):
        for q in range(2):
            sch.fill(f"buffer_store_dword v{vT+1}, v{vL16}, {WSR}, s{sr_} offen offset:{q*1024}{sfx}")
    for c in range(9):
        A = AS + 4*(c&1)
        base = [(M,x) for M in 'QKV' for x in range(2)]
        if c in res_at and c != 8:
            Mr = res_at[c]
            others = [o for o in base if o[0] != Mr]
            order = [others[0], (Mr,0), others[1], others[2], (Mr,1), others[3]]
        else:
            order = base
        if c >= 7: order = [('Q',0),('K',0),('Q',1),('K',1)]
        if 1 <= c < 8: sch.front([(aread_i(c+1), ('A',c+1))])
        for n_, (M,x) in enumerate(order):
            isres = (c in res_at and M == res_at[c])
            lq.wait([('A',c)] + ([('R',c,x)] if isres else []))
            B = (LD + 8*x) if isres else WM[(M,c,x)]
            smf(a, accs[(M,x)], A, B)
            if isres:
                nx = [r for r in res_list if r > c]
                if nx:
                    ins = rq(nx[0], x)
                    sch.front([(ins[0], ('R',nx[0],x)), (ins[1], ('R',nx[0],x))])
            if c == 1 and n_ == 5:
                sch.flush()
                a("s_waitcnt vmcnt(4)")
                a.lab(lb("L_chkB"))
                a(f"v_max_u32 v{PB+6}, v{PB}, v{PB+4}\nv_cmp_eq_u32 vcc, -1, v{PB+6}\ns_cbranch_vccnz {lb('L_retryB')}")
                ev(a, 1)
                sch.front([(f"ds_write_b128 v{vT+2}, {vr(PB,4)} offset:{MEMB-HB+4096}", 'W'), (f"ds_write_b32 v{vT+3}, v{PB+4}", 'W')])
            elif c == 2 and n_ == 5:
                sch.flush()
                lq.wait(['W'])
                a("s_barrier")
                if not Cfg.NOVX:
                    sch.fill(f"buffer_load_dwordx4 {vr(PB,4)}, v{vL16}, {WSR}, s{sVXo} offen sc1")
                    sch.fill(f"buffer_load_dwordx4 {vr(PB+4,4)}, v{vL16}, {WSR}, s{sVXo} offen offset:1024 sc1")
                a(f"v_sub_u32 v{vT+2}, 0, v{vL16}\nv_mov_b32 v{vT+3}, s{sStep}")
                if PF2:
                    sch.fill(f"buffer_load_dword v{vFlag}, v{vT}, {WSR}, s{sPFo} offen sc1")
                    sch.fill(f"buffer_load_dword v{vFlag}, v{vT}, {WSR}, s{sPF2} offen sc1")
                if not Cfg.NOFL: sch.fill(f"buffer_store_dword v{vT+3}, v{vT+2}, {WSR}, s{sProg} offen sc1")
            else:
                sch.pop(1)
    sch.flush()
    cyc(a, 52); ev(a, 2)
    for _ in range(ADDQ): a('s_nop 15')
    A7, A8 = AS+4, AS
    smf(a, v0_, A7, WM[('V',7,0)]); smf(a, v1_, A7, WM[('V',7,1)])
    a("s_nop 1")
    a(f"v_pk_add_f32 {vr(q0,2)}, {vr(q0,2)}, {vr(q0+2,2)}\nv_pk_add_f32 {vr(k0,2)}, {vr(k0,2)}, {vr(k0+2,2)}")
    a(f"v_cvt_pk_bf16_f32 v{k0}, v{k0}, v{k0+1}\nv_cvt_pk_bf16_f32 v{k0+1}, v{q0}, v{q0+1}")
    a(f"ds_write_b64 v{vXQw}, {vr(k0,2)}")
    a(f"v_pk_add_f32 {vr(q1,2)}, {vr(q1,2)}, {vr(q1+2,2)}\nv_pk_add_f32 {vr(k1,2)}, {vr(k1,2)}, {vr(k1+2,2)}")
    a(f"v_cvt_pk_bf16_f32 v{k0+2}, v{k1}, v{k1+1}\nv_cvt_pk_bf16_f32 v{k0+3}, v{q1}, v{q1+1}")
    a(f"ds_write_b64 v{vXQw}, {vr(k0+2,2)} offset:512")
    lq.wait([('R',8,0),('R',8,1)])
    smf(a, v0_, A8, LD)
    if not Cfg.NOPUB: a(f"buffer_store_dwordx4 {vr(k0,4)}, v{vL16}, {WSR}, s{sPub} offen sc1")
    smf(a, v1_, A8, LD+8)
    a(f"s_add_u32 s4, s{sPub}, {WS_VM - WS_KM}")
    a("s_waitcnt lgkmcnt(0)\ns_barrier")
    sm, s1, s2 = q0, q1, k1
    KL = [24, 28, 12]
    for ks in range(4):
        for x2 in range(2):
            a(f"ds_read_b64_tr_b16 {vr(LD+4*ks+2*x2,2)}, v{vTrX} offset:{(32*ks+16*x2)*32}")
    def kxread(i): return f"ds_read_b128 {vr(KL[i%3],4)}, v{vHi} offset:{KXB - HB + i*1024}"
    for i in range(3): a(kxread(i))
    vp = v0_
    a(f"v_pk_add_f32 {vr(v0_,2)}, {vr(v0_,2)}, {vr(v0_+2,2)}\nv_pk_add_f32 {vr(v1_,2)}, {vr(v1_,2)}, {vr(v1_+2,2)}")
    a(f"v_cvt_pk_bf16_f32 v{vp}, v{v0_}, v{v0_+1}\nv_cvt_pk_bf16_f32 v{vp+2}, v{v1_}, v{v1_+1}\nv_mov_b32 v{vp+1}, 0\nv_mov_b32 v{vp+3}, 0")
    a(f"s_add_u32 s{sPub}, s{sPub}, {32*4096}")
    if not Cfg.NOPUB: a(f"buffer_store_dwordx4 {vr(vp,4)}, v{vL16}, {WSR}, s4 offen sc1")
    a(f"s_cmp_eq_u32 s{sStep}, 63\ns_cbranch_scc1 L_chain_last")
    cyc(a, 53)
    a("s_waitcnt lgkmcnt(3)")
    ones = v1_
    for ks in range(4):
        c = "0" if ks == 0 else vr(sm,4)
        a(f"v_mfma_f32_16x16x32_bf16 {vr(sm,4)}, {vr(LD+4*ks,4)}, {vr(LD+4*ks,4)}, {c}")
        a(f"v_mov_b32 v{ones+ks}, 0x3f803f80")
    for i in range(8):
        t, ks = i >> 2, i & 3
        d = s1 if t == 0 else s2
        a(f"s_waitcnt lgkmcnt({min(2, 7 - i)})")
        c = "0" if ks == 0 else vr(d,4)
        a(f"v_mfma_f32_16x16x32_bf16 {vr(d,4)}, {vr(KL[i%3],4)}, {vr(LD+4*ks,4)}, {c}")
        if i + 3 < 8: a(kxread(i + 3))
    a(f"ds_read_b128 {vr(LD+8,4)}, v{vResO} offset:0\nds_read_b128 {vr(LD+12,4)}, v{vResO} offset:1024")
    a.nop(5)
    cyc(a, 54); ev(a, 3)
    vals = [sm, sm+1, s1, s1+1, s1+2, s1+3, s2, s2+1, s2+2, s2+3]
    mx, t2 = AS, AS+1
    a(f"v_max3_f32 v{mx}, v{vals[0]}, v{vals[1]}, v{vals[2]}")
    a(f"v_max3_f32 v{t2}, v{vals[3]}, v{vals[4]}, v{vals[5]}")
    a(f"v_max3_f32 v{mx}, v{mx}, v{vals[6]}, v{vals[7]}")
    a(f"v_max3_f32 v{t2}, v{t2}, v{vals[8]}, v{vals[9]}")
    a(f"v_max_f32 v{mx}, v{mx}, v{t2}")
    a(f"v_mov_b32 v{t2}, v{mx}\ns_nop 1\nv_permlane16_swap_b32 v{mx}, v{t2}\ns_nop 0\nv_max_f32 v{mx}, v{mx}, v{t2}")
    a(f"v_mov_b32 v{t2}, v{mx}\ns_nop 1\nv_permlane32_swap_b32 v{mx}, v{t2}\ns_nop 0\nv_max_f32 v{mx}, v{mx}, v{t2}")
    a(f"v_mul_f32 v{mx}, s{sC1}, v{mx}")
    for b_ in (sm, s1, s1+2, s2, s2+2):
        a(f"v_pk_fma_f32 {vr(b_,2)}, {vr(b_,2)}, s[{sC1}:{sC1+1}], {vr(mx,2)} op_sel_hi:[1,1,0] neg_lo:[0,0,1] neg_hi:[0,0,1]")
    if not SKIPSM:
        for v in vals: a(f"v_exp_f32 v{v}, v{v}")
    pm, px, lr = LD, LD+4, AS+4
    a(f"v_mov_b32 v{pm+1}, 0")
    a(f"v_cvt_pk_bf16_f32 v{pm}, v{sm}, v{sm+1}")
    a(f"v_cvt_pk_bf16_f32 v{px}, v{s1}, v{s1+1}\nv_cvt_pk_bf16_f32 v{px+1}, v{s1+2}, v{s1+3}")
    a(f"v_cvt_pk_bf16_f32 v{px+2}, v{s2}, v{s2+1}\nv_cvt_pk_bf16_f32 v{px+3}, v{s2+2}, v{s2+3}")
    o0, o1 = sm, s1
    if Cfg.STAMPS and Cfg.CYC:
        a("s_memtime s[90:91]\ns_waitcnt lgkmcnt(0)")
    a(f"s_waitcnt vmcnt({max(0,3 + (2 if PF2 else 0) - (2 if Cfg.NOPUB else 0) - (1 if Cfg.NOFL else 0))})\ns_nop 0")
    if Cfg.STAMPS and Cfg.CYC:
        a("s_memtime s[92:93]\ns_waitcnt lgkmcnt(0)\ns_sub_u32 s92, s92, s90\ns_add_u32 s59, s59, s92\ns_max_u32 s60, s60, s92")
    a(f"v_mfma_f32_16x16x32_bf16 {vr(lr,4)}, {vr(ones,4)}, {vr(px,4)}, 0")
    a(f"v_mfma_f32_16x16x32_bf16 {vr(o0,4)}, {vr(PB,4)}, {vr(px,4)}, 0")
    a(f"ds_read_b128 v[56:59], v{vResO} offset:8192")
    a(f"v_mfma_f32_16x16x32_bf16 {vr(o1,4)}, {vr(PB+4,4)}, {vr(px,4)}, 0")
    a(f"ds_read_b128 v[60:63], v{vResO} offset:{8192+1024}")
    a(f"v_mfma_f32_16x16x16_bf16 {vr(lr,4)}, {vr(ones,2)}, {vr(pm,2)}, {vr(lr,4)}")
    a(f"v_mfma_f32_16x16x16_bf16 {vr(o0,4)}, {vr(vp,2)}, {vr(pm,2)}, {vr(o0,4)}")
    a(f"v_mfma_f32_16x16x16_bf16 {vr(o1,4)}, {vr(vp+2,2)}, {vr(pm,2)}, {vr(o1,4)}")
    zero(a, 12, 4); zero(a, PB, 4)
    a("s_nop 1")
    a(f"v_rcp_f32 v{AS}, v{lr}")
    zero(a, PB+4, 2)
    for j in range(0, 8, 2):
        a(f"v_pk_mul_f32 {vr(o0+j,2)}, {vr(o0+j,2)}, {vr(AS,2)} op_sel_hi:[1,0]")
    a(f"v_cvt_pk_bf16_f32 v{o0}, v{o0}, v{o0+1}\nv_cvt_pk_bf16_f32 v{o0+1}, v{o0+2}, v{o0+3}")
    a(f"s_mov_b64 exec, s[{sMask}:{sMask+1}]")
    a(f"ds_write_b64 v{vXOw}, {vr(o0,2)}")
    a(f"v_cvt_pk_bf16_f32 v{o1}, v{o1}, v{o1+1}\nv_cvt_pk_bf16_f32 v{o1+1}, v{o1+2}, v{o1+3}")
    a(f"ds_write_b64 v{vXOw}, {vr(o1,2)} offset:512")
    a("s_mov_b64 exec, -1")
    zero(a, PB+6, 2); zero(a, 24, 8); zero(a, 64, 8)
    a(f"s_add_u32 m0, s{sW1k}, s{sW1k}\ns_add_u32 m0, m0, {KXB}")
    a("s_waitcnt lgkmcnt(0)\ns_barrier")
    a(f"ds_read_b128 {vr(LD,4)}, v{vHi} offset:{XO-HB}\nds_read_b128 {vr(LD+4,4)}, v{vHi} offset:{XO-HB+1024}")
    if not Cfg.NOKX: a(f"buffer_load_dwordx4 v{vL16}, {WSR}, s{sKXo} offen sc1 lds\nbuffer_load_dwordx4 v{vL16}, {WSR}, s{sKXo} offen offset:1024 sc1 lds")
    zero(a, 48, 8)
    a(f"s_add_u32 s{sKXo}, s{sKXo}, {ST}")
    a("s_waitcnt lgkmcnt(0)")
    cyc(a, 55); ev(a, 4)
    WA = [16, 20, 24, 28, 68, 64, 12, 48, 52]
    ROr = [LD+8, 56]
    lq2 = LQ(a); sc2 = Sch(a, lq2); sc2.vs = VSPACE2
    def post(j):
        d = WA[j]
        a(f"v_pk_add_f32 {vr(d,2)}, {vr(d,2)}, {vr(d+2,2)}\nv_cvt_pk_bf16_f32 v{d}, v{d}, v{d+1}")
        sc2.front([(f"buffer_store_dword v{d}, v{vL4}, {WSR}, s{sPJ+j} offen{sfx}", None)])
    for j in range(9):
        smf(a, WA[j], LD, WM[('O',j,0)])
        sc2.pop(1)
        if (j,1) in RESO_L:
            k = RESO_L.index((j,1))
            lq2.wait([('O',k)])
            smf(a, WA[j], LD+4, ROr[k % 2])
            if k + 2 < 5:
                d = ROr[k % 2]
                sc2.fill(f"ds_read_b128 {vr(d,4)}, v{vResO} offset:{(k+2)*8192}", ('O',k+2))
                sc2.fill(f"ds_read_b128 {vr(d+4,4)}, v{vResO} offset:{(k+2)*8192+1024}", ('O',k+2))
        else:
            smf(a, WA[j], LD+4, WM[('O',j,1)])
        sc2.pop(1)
        if j >= 1 and j < 8:
            pass
        if j >= 2: post(j - 2)
    sc2.flush()
    post(7); sc2.flush()
    a("s_nop 1")
    post(8); sc2.flush()
    for _ in range(ADDW): a('s_nop 15')
    cyc(a, 56); ev(a, 5)
    book_salu(a)
    a(f"s_cmp_eq_u32 s{sRT}, -1\ns_cbranch_scc1 {lb('L_nored_d') if DELAY0 else lb('L_nored')}")
    a(f"ds_read_b128 v[68:71], v{vHi} offset:{SEL-HB}\ns_add_u32 s{sT1}, s{sRd}, 4096")
    if PROBE:
        a(f"v_lshlrev_b32 v{vT}, 4, v{vL16}\nv_and_b32 v{vT}, 0x1f00, v{vT}\nv_lshrrev_b32 v{vT+1}, 2, v{vL16}\nv_and_b32 v{vT+1}, 0x80, v{vT+1}\nv_or_b32 v{vT}, v{vT}, v{vT+1}")
        a.lab(lb("L_probe"))
        a(f"buffer_load_dword v{vT+1}, v{vT}, {WSR}, s{sRd} offen sc1\ns_waitcnt vmcnt(0)\nv_cmp_eq_u32 vcc, -1, v{vT+1}\ns_cbranch_vccz {lb('L_poll1')}")
        if Cfg.STAMPS: a("s_add_u32 s63, s63, 1")
        spin_check(a)
        a(f"s_branch {lb('L_probe')}")
    else:
        a(f"s_waitcnt vmcnt({NE})\ns_cmp_lt_u32 s{sRT}, 16\ns_cbranch_scc1 {lb('L_poll1')}\ns_waitcnt vmcnt({N2})\ns_cmp_lt_u32 s{sRT}, {LATE}\ns_cbranch_scc1 {lb('L_poll1')}\ns_waitcnt vmcnt(0)")
    a.lab(lb("L_poll1"))
    RL = 16
    for j in range(8):
        a(f"buffer_load_dwordx4 {vr(RL+4*j,4)}, v{vL16}, {WSR}, s{sRd if j < 4 else sT1} offen offset:{(j&3)*1024} sc1")
    a(f"s_add_u32 s5, s{sMemOff}, {CH_MEM}\ns_add_u32 s6, s5, {2*CS}\ns_xor_b32 s4, s{sMemOff}, 0x20000\ns_add_u32 s{sRm0}, s4, {CH_MEM}\ns_add_u32 s{sRm1}, s{sRm0}, {2*CS}")
    a("s_waitcnt lgkmcnt(0)")
    if PERLOAD:
        for j in range(8):
            b = RL + 4*j
            a.lab(lb('L_c1_%d' % j))
            a(f"s_waitcnt vmcnt({7-j})")
            a(f"v_cmp_eq_u32 vcc, -1, v{b}\ns_cbranch_vccnz {lb('L_r1_%d' % j)}")
            a(f"v_mfma_f32_16x16x32_bf16 v[64:67], {vr(b,4)}, v[68:71], " + ("0" if j == 0 else "v[64:67]"))
    else:
        for j in range(8):
            b = RL + 4*j
            a(f"s_waitcnt vmcnt({7-j})")
            a(f"v_mfma_f32_16x16x32_bf16 v[64:67], {vr(b,4)}, v[68:71], " + ("0" if j == 0 else "v[64:67]"))
            if j == 2: a(f"v_max3_u32 v{vT}, v{RL}, v{RL+4}, v{RL+8}")
            if j == 4: a(f"v_max3_u32 v{vT}, v{RL+12}, v{RL+16}, v{vT}")
            if j == 6: a(f"v_max3_u32 v{vT}, v{RL+20}, v{RL+24}, v{vT}")
        a(f"v_max_u32 v{vT}, v{vT}, v{RL+28}\nv_cmp_eq_u32 vcc, -1, v{vT}\ns_cbranch_vccnz {lb('L_retry1')}")
    ev(a, 6, 31)
    a(f"""
    s_nop {7 if PERLOAD else 4}
    v_cvt_pk_bf16_f32 v56, v64, v65
    v_cvt_pk_bf16_f32 v57, v66, v67
    buffer_store_dwordx2 v[56:57], v{vMst}, {WSR}, s5 offen{sfx}
    buffer_store_dwordx2 v[56:57], v{vMst}, {WSR}, s6 offen{sfx}
    v_mov_b32 v60, -1
    s_xor_b32 s{sRd}, s{sRd}, s{sRdX}
    buffer_store_dword v60, v{vMst}, {WSR}, s{sRm0} offen{sfx}
    buffer_store_dword v60, v{vMst}, {WSR}, s{sRm1} offen{sfx}
    """)
    a.lab(lb("L_nored"))
    cyc(a, 57); ev(a, 7, 31)
    a.lab(lb("L_book"))
    a(f"buffer_load_dwordx4 {vr(AS,4)}, v{vL16}, {WSR}, s{sM0} offen sc1")
    zero(a, ACC, 24)
    for x in range(2):
        for ins in rq(0, x): a(ins)
    a(f"""
    v_add_u32 v{vT+2}, s{sW1k}, v{vHi}
    v_add_u32 v{vT+3}, s{sT2}, v{vL4}
    v_mov_b32 v{vT+1}, -1
    v_lshlrev_b32 v{vT}, 1, v{vL16}
    s_cmp_ge_u32 s{sFlc}, s{sReady}
    s_cbranch_scc1 {lb('L_flslow')}
    """)
    a.lab(lb("L_fl_ok"))
    def chk(reg, fail):
        a(f"v_cmp_eq_u32 vcc, -1, v{reg}\ns_cbranch_vccnz {fail}")
    def okpath(reg):
        ev(a, 8, 31)
        a(f"ds_write_b128 v{vT+2}, {vr(reg,4)} offset:{MEMB-HB}")
        a(f"buffer_load_dwordx4 {vr(PB,4)}, v{vL16}, {WSR}, s{sM1} offen sc1\nbuffer_load_dword v{PB+4}, v{vL4}, {WSR}, s{sM2} offen sc1")
    a(f"buffer_load_dwordx4 {vr(AS+4,4)}, v{vL16}, {WSR}, s{sM0} offen sc1")
    a.lab(lb("L_pA0"))
    a("s_waitcnt vmcnt(1)")
    a.lab(lb("L_pA0c"))
    chk(AS, lb("L_pA0f"))
    okpath(AS)
    a.lab(lb("L_pAdone"))
    a("s_waitcnt vmcnt(2) lgkmcnt(0)\ns_barrier")
    cyc(a, 58); ev(a, 9, 31)
    a(f"s_branch {lb('L_step')}")
    a.lab(lb("L_pA0f"))
    if Cfg.STAMPS: a("s_add_u32 s62, s62, 1")
    spin_check(a)
    if BACKOFF: a(f"s_sleep {BACKOFF}")
    a(f"buffer_load_dwordx4 {vr(AS,4)}, v{vL16}, {WSR}, s{sM0} offen sc1")
    a("s_waitcnt vmcnt(1)")
    chk(AS+4, lb("L_pA1f"))
    okpath(AS+4)
    a(f"s_branch {lb('L_pAdone')}")
    a.lab(lb("L_pA1f"))
    if Cfg.STAMPS: a("s_add_u32 s62, s62, 1")
    a(f"buffer_load_dwordx4 {vr(AS+4,4)}, v{vL16}, {WSR}, s{sM0} offen sc1")
    a(f"s_branch {lb('L_pA0')}")
    if DELAY0:
        a.lab(lb("L_nored_d"))
        zero(a, ACC, 24)
        a(f"s_sleep {DELAY0}\ns_branch {lb('L_nored')}")
    a.lab(lb("L_retryB"))
    if Cfg.STAMPS: a("s_add_u32 s63, s63, 1")
    spin_check(a)
    a(f"buffer_load_dwordx4 {vr(PB,4)}, v{vL16}, {WSR}, s{sM1} offen sc1\nbuffer_load_dword v{PB+4}, v{vL4}, {WSR}, s{sM2} offen sc1\ns_branch {lb('L_chkB')}")
    if PERLOAD:
        for j in range(8):
            b = 16 + 4*j
            a.lab(lb('L_r1_%d' % j))
            if Cfg.STAMPS: a("s_add_u32 s61, s61, 1")
            spin_check(a)
            for jj in range(j, 8):
                a(f"buffer_load_dwordx4 {vr(16+4*jj,4)}, v{vL16}, {WSR}, s{sRd if jj < 4 else sT1} offen offset:{(jj&3)*1024} sc1")
            a(f"s_branch {lb('L_c1_%d' % j)}")
    a.lab(lb("L_retry1"))
    if Cfg.STAMPS: a("s_add_u32 s61, s61, 1")
    spin_check(a)
    a(f"s_branch {lb('L_poll1')}")
    a.lab(lb("L_flslow"))
    kv_refresh(a, sFlc, PB+6)
    a(f"s_branch {lb('L_fl_ok')}")

BACKOFF = 0
DELAY0 = 0
CODEPF = True
ADDQ = 0
ADDW = 0
SKIPSM = False
PF2 = False
PROBE = False
PERLOAD = False
NE = 9
N2 = 9
LATE = 28
def chain(a):
    chain_init(a)
    chain_state_init(a)
    a(f"s_cmp_lg_u32 s{sMode}, 0\ns_cbranch_scc1 L_book_s\ns_branch L_book_f")
    chain_loop(a, False)
    chain_loop(a, True)
    a.lab("L_chain_last")
    a(f"""
    s_waitcnt vmcnt(0)
    v_sub_u32 v{vT}, 0, v{vL16}
    v_mov_b32 v{vT+1}, 64
    buffer_store_dword v{vT+1}, v{vT}, {WSR}, s{sProg} offen sc1
    """)
    stamp(a, 3, 12, 13)
    cyc_out(a, 16, ACCS+[S_SPIN], 12, 13)
    ev_dump(a, 10)
    a("s_waitcnt vmcnt(0)")
```

```python
from asmlib import *
from layout import *
import struct
def fb(f): return "0x%08x" % struct.unpack("<I", struct.pack("<f", f))[0]

P = dict(x=16, mem0=18, Wq=20, Wk=22, Wv=24, Wo=26, seg=28, xb=30, Wg=32, Wu=34, Wd=36, gw=38, out=40, dbg=42, ws=44)
SWS=48; SA=52; SB0=56; SB1=60; SOUT=64
S_SPIN=47
class Cfg:
    STAMPS = False
    FORCE_SLOW = False
    TRACE = False
    NOCOMM = False
    NOPUB = False
    NOPF = True
    CYC = True
    NOKX = False
    NOVX = False
    NOFL = False
    STEPLOG = False
WS_STAMP = 0x7000000

def srd(a, dst, ptr, size, add=None):
    if add is None:
        a(f"s_mov_b32 s{dst}, s{ptr}\ns_mov_b32 s{dst+1}, s{ptr+1}")
    else:
        a(f"s_add_u32 s{dst}, s{ptr}, {add}\ns_addc_u32 s{dst+1}, s{ptr+1}, 0")
    a(f"s_mov_b32 s{dst+2}, {size}\ns_mov_b32 s{dst+3}, 0x20000")

def stamp(a, i, vd=1, vz=30):
    if not Cfg.STAMPS: return
    L = a.uniq("L_st")
    a(f"""
    s_cmp_lg_u32 s3, 0
    s_cbranch_scc1 {L}
    s_memrealtime s[96:97]
    s_lshl_b32 s98, s2, 8
    s_add_u32 s98, s98, {WS_STAMP + 4*i}
    s_waitcnt lgkmcnt(0)
    v_mov_b32 v{vd}, s96
    v_mov_b32 v{vz}, 0
    s_mov_b64 s[96:97], exec
    s_mov_b64 exec, 1
    buffer_store_dword v{vd}, v{vz}, s[{SWS}:{SWS+3}], s98 offen
    s_mov_b64 exec, s[96:97]
    """)
    a.lab(L)
def cyc(a, acc=None):
    if not Cfg.STAMPS or not Cfg.CYC: return
    a("s_memtime s[94:95]\ns_waitcnt lgkmcnt(0)")
    if acc is not None:
        a(f"s_sub_u32 s93, s94, s89\ns_add_u32 s{acc}, s{acc}, s93")
    a("s_mov_b32 s89, s94")
def cyc_out(a, idx, regs, vd=1, vz=30):
    if not Cfg.STAMPS: return
    L = a.uniq("L_co")
    a(f"s_cmp_lg_u32 s3, 0\ns_cbranch_scc1 {L}\ns_lshl_b32 s98, s2, 8\ns_add_u32 s98, s98, {WS_STAMP + 4*idx}\nv_mov_b32 v{vz}, 0\ns_mov_b64 s[96:97], exec\ns_mov_b64 exec, 1")
    for i, r in enumerate(regs):
        a(f"v_mov_b32 v{vd}, s{r}\nbuffer_store_dword v{vd}, v{vz}, s[{SWS}:{SWS+3}], s98 offen offset:{4*i}\ns_nop 1")
    a("s_mov_b64 exec, s[96:97]")
    a.lab(L)

def prologue(a):
    a("""
    s_cmp_ge_u32 s2, 256
    s_cbranch_scc1 L_exit
    s_load_dwordx16 s[16:31], s[0:1], 0
    s_load_dwordx8 s[32:39], s[0:1], 64
    s_load_dwordx4 s[40:43], s[0:1], 96
    s_load_dwordx2 s[44:45], s[0:1], 112
    v_lshrrev_b32 v1, 6, v0
    v_and_b32 v0, 63, v0
    s_mov_b32 s47, 0
    v_readfirstlane_b32 s3, v1
    s_waitcnt lgkmcnt(0)
    """)
    srd(a, SWS, P['ws'], 0x10000000)

SPIN_MAX = 0x20000
def spin_check(a):
    a(f"s_add_u32 s{S_SPIN}, s{S_SPIN}, 1\ns_cmp_gt_u32 s{S_SPIN}, {SPIN_MAX}\ns_cbranch_scc1 L_exit")

def wave_wait_flag(a, soff, target, vt=28, sleep=True, cmp="ge"):
    if Cfg.NOCOMM or getattr(Cfg,'WEXIT',False): return
    L = a.uniq("L_wf")
    if isinstance(soff, int): so = f"s{soff}"
    else:
        a(f"s_mov_b32 s46, {soff}"); so = "s46"
    a(f"v_mov_b32 v{vt}, 0")
    a.lab(L)
    a(f"buffer_load_dword v{vt+1}, v{vt}, s[{SWS}:{SWS+3}], {so} offen sc1")
    a("s_waitcnt vmcnt(0)")
    a(f"v_readfirstlane_b32 s4, v{vt+1}\ns_nop 1")
    Ld = a.uniq("L_wfd")
    a(f"s_cmp_ge_u32 s4, {target}\ns_cbranch_scc1 {Ld}")
    if sleep: a(f"s_sleep {3 if sleep is True else sleep}")
    spin_check(a)
    a(f"s_branch {L}")
    a.lab(Ld)

def wg_wait_flag(a, soff, target, vt=28):
    L = a.uniq("L_wg")
    a(f"s_cmp_lg_u32 s3, 0\ns_cbranch_scc1 {L}")
    wave_wait_flag(a, soff, target, vt)
    a.lab(L)
    a("s_barrier")

def wave_signal(a, soff, tmp=28):
    if isinstance(soff, int): so = f"s{soff}"
    else:
        a(f"s_mov_b32 s46, {soff}"); so = "s46"
    a(f"""
    s_mov_b64 s[8:9], exec
    s_mov_b64 exec, 1
    v_mov_b32 v{tmp}, 0
    v_mov_b32 v{tmp+1}, 1
    buffer_atomic_add v{tmp+1}, v{tmp}, s[{SWS}:{SWS+3}], {so} offen
    s_mov_b64 exec, s[8:9]
    """)
def signal_flag(a, soff, tmp=28):
    L = a.uniq("L_sig")
    a(f"s_cmp_lg_u32 s3, 0\ns_cbranch_scc1 {L}")
    wave_signal(a, soff, tmp)
    a.lab(L)

def init_wait(a, vt=28):
    L = a.uniq("L_iw"); Ld = a.uniq("L_iwd")
    a(f"s_cmp_lg_u32 s3, 0\ns_cbranch_scc1 {Ld}\nv_mov_b32 v{vt}, 0")
    a.lab(L)
    a(f"global_load_dword v{vt+1}, v{vt}, s[{P['dbg']}:{P['dbg']+1}] offset:16 sc1\ns_waitcnt vmcnt(0)\nv_readfirstlane_b32 s4, v{vt+1}\ns_nop 1\ns_cmp_ge_u32 s4, 32\ns_cbranch_scc1 {Ld}\ns_sleep 4")
    spin_check(a)
    a(f"s_branch {L}")
    a.lab(Ld)

def ev(a, e, val=30, sstep=70):
    if not Cfg.TRACE: return
    L = a.uniq("L_ev")
    a(f"""
    s_cmp_lg_u32 s{sstep}, {val}
    s_cbranch_scc1 {L}
    s_memrealtime s[94:95]
    s_waitcnt lgkmcnt(0)
    s_mov_b32 s{52+e}, s94
    """)
    a.lab(L)
def ev_dump(a, n, sh=68, vd=12, vz=13):
    if not Cfg.TRACE: return
    a(f"""
    s_lshl_b32 s7, s{sh}, 2
    s_add_u32 s7, s7, s3
    s_lshl_b32 s7, s7, 6
    s_add_u32 s7, s7, {0x7200000}
    v_mov_b32 v{vz}, 0
    s_mov_b64 exec, 1
    """)
    for e in range(n):
        a(f"v_mov_b32 v{vd}, s{52+e}\nbuffer_store_dword v{vd}, v{vz}, s[{SWS}:{SWS+3}], s7 offen offset:{4*e}\ns_nop 1")
    a("s_mov_b64 exec, -1")

def code_prefetch(a, label, nbytes, vt=12):
    L = a.uniq("L_pc")
    a(f"s_getpc_b64 s[10:11]")
    a.lab(L)
    a(f"""
    s_add_u32 s10, s10, {label}-{L}
    s_addc_u32 s11, s11, 0
    v_lshlrev_b32 v{vt}, 7, v0
    """)
    for i in range((nbytes + 8191)//8192):
        a(f"global_load_dword v{vt+1}, v{vt}, s[10:11] offset:0")
        if i + 1 < (nbytes + 8191)//8192: a(f"v_add_u32 v{vt}, 8192, v{vt}")
```

```python
from common import *

sGrp=68; sSl=69; sSeg=70; sAoff=71; sT0=72; sT1=73; sT2=74
vL16=2; vTrA=3
vDm=6; vRed=7; vOutOff=8; vGoff=9
ACC2=12
LAND=36
TMP=76
def B2(ks, nt, KS):
    i = (ks*3+nt)*4
    return 256+i if i < 256 else (512 - KS*12) + (i-256)

def w2_consts(a):
    a(f"""
    v_lshlrev_b32 v{vL16}, 4, v0
    v_lshrrev_b32 v12, 3, v0
    v_and_b32 v13, 7, v0
    v_bfe_u32 v14, v0, 4, 2
    v_lshlrev_b32 v14, 1, v14
    v_xor_b32 v13, v13, v14
    v_lshlrev_b32 v13, 4, v13
    s_movk_i32 s4, 1152
    v_mul_lo_u32 v12, v12, s4
    v_add_u32 v{vDm}, v12, v13
    v_lshrrev_b32 v12, 2, v0          ; 4g + r  (= l>>2)
    v_bfe_u32 v13, v12, 1, 2
    v_lshlrev_b32 v13, 1, v13         ; swz
    v_lshlrev_b32 v12, 7, v12
    v_and_b32 v14, 1, v0
    v_lshlrev_b32 v14, 3, v14
    v_add_u32 v12, v12, v14
    s_mul_i32 s4, s3, 40960
    v_add_u32 v12, s4, v12
    v_bfe_u32 v14, v0, 1, 1
    """)
    for nt in range(3):
        a(f"""
        v_add_u32 v15, {2*nt}, v14
        v_xor_b32 v15, v15, v13
        v_lshlrev_b32 v15, 4, v15
        v_add_u32 v{vTrA+nt}, v12, v15
        """)

def w2_bload(a, KS, wptr, nrows):
    a(f"s_mul_i32 s13, s{sSl}, 96")
    srd(a, SB0, P[wptr], nrows*1152, add="s13")
    a(f"s_sub_u32 s{SB0+2}, s{SB0+2}, s13")
    NU = KS // 2
    NS = 5
    a(f"s_mul_i32 s12, s3, {KS*32*1152}")
    a(f"s_mul_i32 s11, s3, 40960")
    def issue(u):
        for jj in range(8):
            a(f"s_add_u32 m0, s11, {(u % NS)*8192 + jj*1024}")
            a(f"s_add_u32 s4, s12, {(64*u + 8*jj)*1152}")
            a(f"buffer_load_dwordx4 v{vDm}, s[{SB0}:{SB0+3}], s4 offen lds")
    for u in range(min(NS, NU)): issue(u)
    for u in range(NU):
        issued = min(u + NS - 1, NU - 1)
        a(f"s_waitcnt vmcnt({(issued - u)*8})")
        for k2 in range(2):
            ks = 2*u + k2
            for nt in range(3):
                b = B2(ks, nt, KS)
                for x in range(2):
                    a(f"ds_read_b64_tr_b16 {R(b+2*x,2)}, v{vTrA+nt} offset:{(u % NS)*8192 + (32*k2+16*x)*128}")
        a("s_waitcnt lgkmcnt(0)")
        if u + NS < NU: issue(u + NS)

RED = 0
def w2_gemm(a, KS, abase, segstride, D=5):
    a(f"""
    s_mul_i32 s{sAoff}, s{sSeg}, {segstride}
    s_mul_i32 s4, s3, {KS*2048}
    s_add_u32 s{sAoff}, s{sAoff}, s4
    s_add_u32 s{sAoff}, s{sAoff}, {abase}
    """)
    def aload(ks):
        buf = LAND + (ks % D)*8
        a(f"s_add_u32 s{sT0}, s{sAoff}, {ks*2048}")
        a(f"buffer_load_dwordx4 {vr(buf,4)}, v{vL16}, s[{SWS}:{SWS+3}], s{sT0} offen sc1")
        a(f"buffer_load_dwordx4 {vr(buf+4,4)}, v{vL16}, s[{SWS}:{SWS+3}], s{sT0} offen offset:1024 sc1")
    for ks in range(D - 1): aload(ks)
    for ks in range(KS):
        if ks + D - 1 < KS:
            aload(ks + D - 1)
            a(f"s_waitcnt vmcnt({2*(D-1)})")
        else:
            a(f"s_waitcnt vmcnt({2*(KS-1-ks)})")
        buf = LAND + (ks % D)*8
        for tt in range(2):
            for nt in range(3):
                acc = ACC2 + (tt*3+nt)*4
                c = "0" if ks == 0 else vr(acc,4)
                a(f"v_mfma_f32_16x16x32_bf16 {vr(acc,4)}, {R(B2(ks,nt,KS),4)}, {vr(buf+4*tt,4)}, {c}")
    a(f"s_mul_i32 s4, s3, 6144\nv_add_u32 v{vRed}, s4, v{vL16}")
    a.nop(8)
    for t in range(6):
        a(f"ds_write_b128 v{vRed}, {vr(ACC2+4*t,4)} offset:{RED + t*1024}")
    a("s_waitcnt lgkmcnt(0)\ns_barrier")
    a(f"s_lshl_b32 s4, s3, 10\nv_add_u32 v{vRed}, s4, v{vL16}")
    for p in range(4):
        a(f"ds_read_b128 {vr(LAND+4*p,4)}, v{vRed} offset:{RED + p*6144}")
    for p in range(4):
        a(f"ds_read_b128 {vr(LAND+16+4*p,4)}, v{vRed} offset:{RED + p*6144 + 4096}")
    a("s_waitcnt lgkmcnt(0)")
    for half in range(2):
        b = LAND + 16*half
        for r in range(4):
            a(f"v_add_f32 v{b+r}, v{b+r}, v{b+4+r}")
            a(f"v_add_f32 v{b+8+r}, v{b+8+r}, v{b+12+r}")
        for r in range(4):
            a(f"v_add_f32 v{ACC2+4*half+r}, v{b+r}, v{b+8+r}")
    a("s_barrier")

def ffn2_phase(a):
    w2_consts(a)
    w2_bload(a, 36, 'Wd', 4608)
    stamp(a, 3)
    a(f"s_mov_b32 s{sSeg}, s{sGrp}")
    a.lab("L_ffn2_loop")
    a(f"s_lshr_b32 s5, s{sSeg}, 1\ns_lshl_b32 s5, s5, 7\ns_add_u32 s{sT1}, s5, {F_H}")
    wg_wait_flag(a, sT1, 36)
    w2_gemm(a, 36, WS_H, 144*2048)
    a(f"""
    s_mul_i32 s4, s{sSeg}, 12
    s_add_u32 s4, s4, s{sSl}
    s_mul_i32 s4, s4, 6144
    s_lshl_b32 s5, s3, 10
    s_add_u32 s4, s4, s5
    s_add_u32 s{sT1}, s4, {WS_BB}
    buffer_store_dwordx4 {vr(ACC2,4)}, v{vL16}, s[{SWS}:{SWS+3}], s{sT1} offen
    s_cmp_ge_u32 s3, 2
    s_cbranch_scc1 L_ffn2_ns
    s_add_u32 s{sT1}, s{sT1}, 4096
    buffer_store_dwordx4 {vr(ACC2+4,4)}, v{vL16}, s[{SWS}:{SWS+3}], s{sT1} offen
    L_ffn2_ns:
    s_add_u32 s{sSeg}, s{sSeg}, 18
    s_cmp_lt_u32 s{sSeg}, 64
    s_cbranch_scc1 L_ffn2_loop
    s_waitcnt vmcnt(0)
    s_barrier
    """)

tQ=12
tK=44
tS=76
tKM=100
tVM=116
tT=124
C1 = (128 ** -0.5) * 1.4426950408889634
def t4_task(a, Ldone):
    sF=sT1
    a(f"""
    s_lshr_b32 s5, s{sSeg}, 1
    s_lshl_b32 s5, s5, 7
    s_add_u32 s{sF}, s5, {F_KV}
    """)
    wave_wait_flag(a, sF, 32, vt=tT)
    a(f"s_add_u32 s{sF}, s5, {F_Q}")
    wave_wait_flag(a, sF, 16, vt=tT)
    a(f"""
    s_lshl_b32 s4, s{sSeg}, 5
    s_add_u32 s4, s4, s15             ; s*32+h
    s_lshl_b32 s{sT0}, s4, 13         ; *8192
    s_add_u32 s{sT2}, s{sT0}, {WS_QX}
    """)
    for i in range(8):
        if i == 4: a(f"s_add_u32 s{sT2}, s{sT2}, 4096")
        a(f"buffer_load_dwordx4 {vr(tQ+4*i,4)}, v{vL16}, s[{SWS}:{SWS+3}], s{sT2} offen offset:{(i%4)*1024} sc1")
    a(f"s_add_u32 s{sT2}, s{sT0}, {WS_KX}")
    for i in range(8):
        if i == 4: a(f"s_add_u32 s{sT2}, s{sT2}, 4096")
        a(f"buffer_load_dwordx4 {vr(tK+4*i,4)}, v{vL16}, s[{SWS}:{SWS+3}], s{sT2} offen offset:{(i%4)*1024} sc1")
    a("s_waitcnt vmcnt(0)")
    for t in range(2):
        for tt in range(2):
            if t > tt: continue
            d = tS + ((1+t)*2+tt)*4
            for ks in range(4):
                c = "0" if ks == 0 else vr(d,4)
                a(f"v_mfma_f32_16x16x32_bf16 {vr(d,4)}, {vr(tK+(t*4+ks)*4,4)}, {vr(tQ+(tt*4+ks)*4,4)}, {c}")
    a(f"s_nop 7\ns_add_u32 s{sT2}, s{sT0}, {WS_VX}")
    for i in range(8):
        if i == 4: a(f"s_add_u32 s{sT2}, s{sT2}, 4096")
        a(f"buffer_load_dwordx4 {vr(tK+4*i,4)}, v{vL16}, s[{SWS}:{SWS+3}], s{sT2} offen offset:{(i%4)*1024} sc1")
    a(f"s_lshl_b32 s5, s15, 4\ns_add_u32 s{sF}, s5, {F_PROG}\ns_add_u32 s7, s{sSeg}, 1\nv_mov_b32 v{tT}, 0")
    Lw = a.uniq("L_pg"); Ld = a.uniq("L_pgd")
    a.lab(Lw)
    a(f"buffer_load_dwordx4 {vr(tKM,4)}, v{tT}, s[{SWS}:{SWS+3}], s{sF} offen sc1\ns_waitcnt vmcnt(0)")
    a(f"v_min3_u32 v{tKM}, v{tKM}, v{tKM+1}, v{tKM+2}\nv_min_u32 v{tKM}, v{tKM}, v{tKM+3}\ns_nop 0\nv_readfirstlane_b32 s4, v{tKM}\ns_nop 1")
    a(f"s_cmp_ge_u32 s4, s7\ns_cbranch_scc1 {Ld}\ns_sleep 4")
    spin_check(a)
    a(f"s_branch {Lw}")
    a.lab(Ld)
    stamp(a, 8, vd=tT, vz=tT+1)
    a(f"""
    s_lshl_b32 s4, s{sSeg}, 5
    s_add_u32 s4, s4, s15
    s_lshl_b32 s5, s4, 12
    s_add_u32 s{sT2}, s5, {WS_KM}
    """)
    for w_ in range(4):
        a(f"buffer_load_dwordx4 {vr(tKM+4*w_,4)}, v{vL16}, s[{SWS}:{SWS+3}], s{sT2} offen offset:{w_*1024} sc1")
    a(f"s_add_u32 s{sT2}, s5, {WS_VM}")
    for et in range(8):
        a(f"buffer_load_dword v{tVM+et}, v{vL16}, s[{SWS}:{SWS+3}], s{sT2} offen offset:{(et>>1)*1024 + (et&1)*8} sc1")
    a(f"""
    s_lshl_b32 s5, s3, 12
    s_add_u32 s5, s5, 32768
    v_and_b32 v{tT}, 15, v0
    v_lshlrev_b32 v{tT}, 5, v{tT}
    v_lshrrev_b32 v{tT+1}, 4, v0
    v_lshlrev_b32 v{tT+1}, 3, v{tT+1}
    v_add3_u32 v{tT}, v{tT}, v{tT+1}, s5
    v_lshrrev_b32 v{tT+1}, 2, v0
    v_lshlrev_b32 v{tT+1}, 5, v{tT+1}
    v_and_b32 v{tT+2}, 3, v0
    v_lshlrev_b32 v{tT+2}, 3, v{tT+2}
    v_add3_u32 v{tT+1}, v{tT+1}, v{tT+2}, s5
    s_waitcnt vmcnt(8)
    """)
    for w_ in range(4):
        a(f"ds_write_b64 v{tT}, {vr(tKM+4*w_,2)} offset:{w_*1024}\nds_write_b64 v{tT}, {vr(tKM+4*w_+2,2)} offset:{w_*1024+512}")
    a("s_waitcnt lgkmcnt(0)")
    for ks in range(4):
        for x2 in range(2):
            a(f"ds_read_b64_tr_b16 {vr(tKM+4*ks+2*x2,2)}, v{tT+1} offset:{(32*ks+16*x2)*32}")
    a("s_waitcnt lgkmcnt(0)")
    for tt in range(2):
        d = tS + tt*4
        for ks in range(4):
            c = "0" if ks == 0 else vr(d,4)
            a(f"v_mfma_f32_16x16x32_bf16 {vr(d,4)}, {vr(tKM+ks*4,4)}, {vr(tQ+(tt*4+ks)*4,4)}, {c}")
    a.nop(8)
    a(f"""
    v_lshrrev_b32 v{tT}, 4, v0
    v_lshlrev_b32 v{tT}, 2, v{tT}
    v_and_b32 v{tT+1}, 15, v0
    v_sub_u32 v{tT}, v{tT}, v{tT+1}
    v_mov_b32 v{tT+1}, 0xff800000
    """)
    for tt in range(2):
        d = tS + ((1+tt)*2+tt)*4
        for r in range(4):
            a(f"v_cmp_lt_i32 vcc, {-r}, v{tT}\ns_nop 1\nv_cndmask_b32 v{d+r}, v{d+r}, v{tT+1}, vcc")
    a(f"s_mov_b32 s6, {fb(C1)}")
    for tt in range(2):
        sm = tS + tt*4; s1 = tS + (2+tt)*4; s2 = tS + (4+tt)*4
        vals = [sm, sm+1, s1, s1+1, s1+2, s1+3] + ([s2, s2+1, s2+2, s2+3] if tt == 1 else [])
        mx = tT; t2 = tT+1
        a(f"v_max3_f32 v{mx}, v{vals[0]}, v{vals[1]}, v{vals[2]}")
        rest = vals[3:]
        while len(rest) >= 2:
            a(f"v_max3_f32 v{mx}, v{mx}, v{rest[0]}, v{rest[1]}"); rest = rest[2:]
        if rest: a(f"v_max_f32 v{mx}, v{mx}, v{rest[0]}")
        for sw in ("v_permlane16_swap_b32", "v_permlane32_swap_b32"):
            a(f"v_mov_b32 v{t2}, v{mx}\ns_nop 1\n{sw} v{mx}, v{t2}\ns_nop 1\nv_max_f32 v{mx}, v{mx}, v{t2}")
        a(f"v_mul_f32 v{mx}, s6, v{mx}")
        for v in vals: a(f"v_fma_f32 v{v}, v{v}, s6, -v{mx}")
        for v in vals: a(f"v_exp_f32 v{v}, v{v}")
        a("s_nop 0")
        p = tQ + tt*8
        a(f"v_cvt_pk_bf16_f32 v{p}, v{sm}, v{sm+1}\nv_mov_b32 v{p+1}, 0")
        a(f"v_cvt_pk_bf16_f32 v{p+4}, v{s1}, v{s1+1}\nv_cvt_pk_bf16_f32 v{p+5}, v{s1+2}, v{s1+3}")
        if tt == 1:
            a(f"v_cvt_pk_bf16_f32 v{p+6}, v{s2}, v{s2+1}\nv_cvt_pk_bf16_f32 v{p+7}, v{s2+2}, v{s2+3}")
        else:
            a(f"v_mov_b32 v{p+6}, 0\nv_mov_b32 v{p+7}, 0")
    for j in range(4): a(f"v_mov_b32 v{tKM+j}, 0x3f803f80")
    a("s_waitcnt vmcnt(0)")
    for et in range(8):
        a(f"v_mov_b32 v{tQ+16+2*et}, v{tVM+et}\nv_mov_b32 v{tQ+17+2*et}, 0")
    a("s_nop 1")
    a(f"""
    s_lshl_b32 s4, s{sSeg}, 7          ; s*128
    s_lshl_b32 s5, s15, 2              ; h*4
    s_add_u32 s4, s4, s5
    s_lshl_b32 s4, s4, 11              ; *2048
    s_add_u32 s{sT2}, s4, {WS_OX}
    """)
    for tt in range(2):
        p = tQ + tt*8
        lreg = tKM + 4
        a(f"v_mfma_f32_16x16x32_bf16 {vr(lreg,4)}, {vr(tKM,4)}, {vr(p+4,4)}, 0")
        for half in range(2):
            for e4 in range(4):
                et = 4*half + e4
                d = tS + 4*e4
                a(f"v_mfma_f32_16x16x32_bf16 {vr(d,4)}, {vr(tK+4*et,4)}, {vr(p+4,4)}, 0")
            if half == 0:
                a(f"v_mfma_f32_16x16x16_bf16 {vr(lreg,4)}, {vr(tKM,2)}, {vr(p,2)}, {vr(lreg,4)}")
            for e4 in range(4):
                et = 4*half + e4
                d = tS + 4*e4
                a(f"v_mfma_f32_16x16x16_bf16 {vr(d,4)}, {vr(tQ+16+2*et,2)}, {vr(p,2)}, {vr(d,4)}")
            a.nop(8)
            if half == 0:
                a(f"v_rcp_f32 v{tT}, v{lreg}\ns_nop 0")
            for j in range(16): a(f"v_mul_f32 v{tS+j}, v{tS+j}, v{tT}")
            for k2 in range(2):
                d = tS + 16 + 4*k2
                s = tS + 8*k2
                for j in range(4): a(f"v_cvt_pk_bf16_f32 v{d+j}, v{s+2*j}, v{s+2*j+1}")
                ksp = 2*half + k2
                off = ksp*2048 + tt*1024
                if off >= 4096:
                    a(f"s_add_u32 s{sT1}, s{sT2}, {off & ~4095}")
                    a(f"buffer_store_dwordx4 {vr(d,4)}, v{vL16}, s[{SWS}:{SWS+3}], s{sT1} offen offset:{off & 4095} sc1")
                else:
                    a(f"buffer_store_dwordx4 {vr(d,4)}, v{vL16}, s[{SWS}:{SWS+3}], s{sT2} offen offset:{off} sc1")
            a("s_nop 1")
    a("s_waitcnt vmcnt(0)")
    a(f"s_lshl_b32 s5, s{sSeg}, 7\ns_add_u32 s{sT1}, s5, {F_O}")
    wave_signal(a, sT1, tmp=tT)

def t5_phase(a):
    w2_consts(a)
    w2_bload(a, 32, 'Wo', 4096)
    stamp(a, 5)
    srd(a, SOUT, P['out'], 2048*1152)
    a("s_barrier")
    wg_wait_flag(a, str(F_G), 8)
    a(f"s_mov_b32 s{sSeg}, s{sGrp}")
    a.lab("L_t5_loop")
    a(f"""
    s_lshl_b32 s15, s{sSl}, 2
    s_add_u32 s15, s15, s3
    s_cmp_ge_u32 s15, 32
    s_cbranch_scc1 L_t4_skip
    """)
    t4_task(a, None)
    a.lab("L_t4_skip")
    stamp(a, 9, vd=76, vz=77)
    a(f"s_lshl_b32 s5, s{sSeg}, 7\ns_add_u32 s{sT1}, s5, {F_O}")
    wg_wait_flag(a, sT1, 32)
    stamp(a, 10, vd=76, vz=77)
    w2_gemm(a, 32, WS_OX, 128*2048, D=11)
    stamp(a, 11, vd=76, vz=77)
    for which in range(2):
        Lsk = a.uniq("L_t5sk")
        if which == 1: a(f"s_cmp_ge_u32 s3, 2\ns_cbranch_scc1 {Lsk}")
        a(f"""
        s_add_u32 s5, s3, {4*which}        ; tile
        s_cmp_ge_u32 s5, 3
        s_cselect_b32 s6, 1, 0             ; tt
        s_mul_i32 s7, s6, 3
        s_sub_u32 s7, s5, s7               ; nt
        s_mul_i32 s4, s{sSeg}, 12
        s_add_u32 s4, s4, s{sSl}
        s_mul_i32 s4, s4, 6144
        s_lshl_b32 s9, s5, 10
        s_add_u32 s4, s4, s9
        s_add_u32 s{sT1}, s4, {WS_BB}
        buffer_load_dwordx4 {vr(LAND,4)}, v{vL16}, s[{SWS}:{SWS+3}], s{sT1} offen
        s_lshl_b32 s4, s{sSeg}, 5
        s_lshl_b32 s9, s6, 4
        s_add_u32 s4, s4, s9
        s_lshl_b32 s9, s4, 2
        s_add_u32 s{sT2}, s9, {WS_G}
        v_and_b32 v{TMP}, 15, v0
        v_lshlrev_b32 v{TMP+1}, 2, v{TMP}
        buffer_load_dword v{TMP+2}, v{TMP+1}, s[{SWS}:{SWS+3}], s{sT2} offen sc1
        s_movk_i32 s9, 1152
        v_mul_lo_u32 v{TMP}, v{TMP}, s9
        v_lshrrev_b32 v{TMP+1}, 4, v0
        v_lshlrev_b32 v{TMP+1}, 3, v{TMP+1}   ; 4g*2 bytes
        v_add_u32 v{TMP}, v{TMP}, v{TMP+1}
        s_mul_i32 s4, s4, 1152
        s_mul_i32 s9, s{sSl}, 96
        s_add_u32 s4, s4, s9
        s_lshl_b32 s9, s7, 5
        s_add_u32 s{sT1}, s4, s9
        s_waitcnt vmcnt(0)
        """)
        ac = ACC2 + 4*which
        for r in range(4):
            a(f"v_sub_f32 v{ac+r}, v{ac+r}, v{LAND+r}\nv_fma_f32 v{ac+r}, v{ac+r}, v{TMP+2}, v{LAND+r}")
        a(f"v_cvt_pk_bf16_f32 v{ac}, v{ac}, v{ac+1}\nv_cvt_pk_bf16_f32 v{ac+1}, v{ac+2}, v{ac+3}")
        a(f"buffer_store_dwordx2 {vr(ac,2)}, v{TMP}, s[{SOUT}:{SOUT+3}], s{sT1} offen")
        if which == 1: a.lab(Lsk)
    a(f"""
    s_add_u32 s{sSeg}, s{sSeg}, 18
    s_cmp_lt_u32 s{sSeg}, 64
    s_cbranch_scc1 L_t5_loop
    """)

def gate_task(a):
    srd(a, SA, P['x'], 2048*1152)
    a(f"""
    s_lshl_b32 s4, s15, 8
    s_lshl_b32 s5, s3, 6
    s_add_u32 s12, s4, s5
    v_add_u32 v2, s12, v0
    s_movk_i32 s4, 1152
    v_mul_lo_u32 v3, v2, s4
    v_mov_b32 v4, 0
    v_mov_b32 v7, 0
    """)
    for grp in range(9):
        a(f"s_load_dwordx16 s[68:83], s[{P['gw']}:{P['gw']+1}], {grp*128}\ns_load_dwordx16 s[84:99], s[{P['gw']}:{P['gw']+1}], {grp*128+64}")
        for c in range(8):
            a(f"buffer_load_dwordx4 {vr(8+4*c,4)}, v3, s[{SA}:{SA+3}], 0 offen offset:{grp*128 + c*16}")
        a("s_waitcnt vmcnt(0) lgkmcnt(0)")
        for c in range(8):
            for j in range(4):
                sg = 68+4*c+j; vx = 8+4*c+j
                a(f"s_lshl_b32 s4, s{sg}, 16\ns_and_b32 s5, s{sg}, 0xffff0000")
                a(f"v_lshlrev_b32 v5, 16, v{vx}\nv_and_b32 v6, 0xffff0000, v{vx}")
                a(f"v_fma_f32 v4, v5, s4, v4\nv_fma_f32 v7, v6, s5, v7")
    a("v_add_f32 v4, v4, v7")
    a(f"""
    v_mul_f32 v4, {fb(-1.4426950408889634)}, v4
    v_exp_f32 v4, v4
    s_nop 0
    v_add_f32 v4, 1.0, v4
    v_rcp_f32 v4, v4
    v_lshlrev_b32 v2, 2, v2
    s_mov_b32 s4, {WS_G}
    s_nop 0
    buffer_store_dword v4, v2, s[{SWS}:{SWS+3}], s4 offen sc1
    s_waitcnt vmcnt(0)
    s_barrier
    """)
    signal_flag(a, str(F_G))
```

```python
import sys
from asmlib import *
from layout import *
from common import *
import w1, w2, chain
from w1 import *

NAME = "gated_mix__memory_aug_recurrent_mem_tr__glu_gated_geglu__prompt"
HDR = open("cdna_kernels/%s.s.ref" % NAME).read().split("; @launch")[0].split("; Override launch")[0]

def workers(a):
    a("""
    s_lshr_b32 s15, s2, 3            ; b>>3
    s_and_b32 s4, s2, 7
    s_sub_u32 s4, s4, 1
    s_lshl_b32 s14, s4, 5
    s_add_u32 s14, s14, s15
    """)
    stamp(a, 0)
    if getattr(Cfg,'WSPIN',False):
        a('s_mov_b32 s70, 0\nL_wspin:\ns_sleep 32\ns_add_u32 s70, s70, 1\ns_cmp_lt_u32 s70, 160\ns_cbranch_scc1 L_wspin\ns_branch L_exit')
    w1_phase(a)
    stamp(a, 2)
    if getattr(Cfg,'W1ONLY',False): a('s_branch L_exit')
    a(f"""
    s_cmp_ge_u32 s14, 216
    s_cbranch_scc1 L_gate
    s_mul_hi_u32 s{w2.sGrp}, s14, 0x15555556      ; wid/12
    s_mul_i32 s4, s{w2.sGrp}, 12
    s_sub_u32 s{w2.sSl}, s14, s4
    """)
    w2.ffn2_phase(a)
    stamp(a, 4)
    w2.t5_phase(a)
    stamp(a, 6)
    a("s_branch L_exit")
    a.lab("L_gate")
    a("s_sub_u32 s15, s14, 216")
    w2.gate_task(a)

def build(parts):
    a = A()
    prologue(a)
    a("s_and_b32 s4, s2, 7\ns_cmp_eq_u32 s4, 0\ns_cbranch_scc1 L_chain")
    if Cfg.NOCOMM or getattr(Cfg,'WEXIT',False): a('s_branch L_exit')
    workers(a)
    a("s_branch L_exit")
    a.lab("L_chain")
    chain.chain(a)
    a.lab("L_exit")
    body = a.text()
    if Cfg.NOCOMM:
        import re
        body = re.sub(r's_cbranch_vccnz (L_\w+)', r's_nop 0', body)
    txt = HDR + f"""; @launch grid=(256,1,1) block=(256,1,1) lds=163840
.amdgcn_target "amdgcn-amd-amdhsa--gfx950"
.text
.globl {NAME}_kernel
.p2align 8
.type {NAME}_kernel,@function
{NAME}_kernel:
{body}  s_endpgm
.section .rodata,"a"
.p2align 6
.amdhsa_kernel {NAME}_kernel
  .amdhsa_next_free_vgpr 512
  .amdhsa_next_free_sgpr 102
  .amdhsa_accum_offset 256
  .amdhsa_group_segment_fixed_size 0
  .amdhsa_kernarg_size 120
  .amdhsa_user_sgpr_count 2
  .amdhsa_user_sgpr_kernarg_segment_ptr 1
  .amdhsa_system_sgpr_workgroup_id_x 1
.end_amdhsa_kernel
"""
    return txt

if __name__ == "__main__":
    if "stamps" in sys.argv: Cfg.STAMPS = True
    if "trace" in sys.argv: Cfg.TRACE = True
    if "nocomm" in sys.argv: Cfg.NOCOMM = True
    for a_ in sys.argv:
        if a_.startswith("late="): chain.LATE = int(a_[5:])
        if a_.startswith("backoff="): chain.BACKOFF = int(a_[8:])
        if a_.startswith("ne="): chain.NE = int(a_[3:])
        if a_.startswith("perload="): chain.PERLOAD = bool(int(a_[8:]))
        if a_.startswith("probe="): chain.PROBE = bool(int(a_[6:]))
        if a_.startswith("n2="): chain.N2 = int(a_[3:])
        if a_.startswith("pf2="): chain.PF2 = bool(int(a_[4:]))
        if a_.startswith("vspace="): chain.VSPACE = int(a_[7:])
        if a_.startswith("addq="): chain.ADDQ = int(a_[5:])
        if a_.startswith("addw="): chain.ADDW = int(a_[5:])
        if a_.startswith("skipsm="): chain.SKIPSM = True
        if a_.startswith("vs2="): chain.VSPACE2 = int(a_[4:])
        if a_.startswith("delay0="): chain.DELAY0 = int(a_[7:])
    if "nopub" in sys.argv: Cfg.NOPUB = True
    if "nopf" in sys.argv: Cfg.NOPF = True
    if "nocyc" in sys.argv: Cfg.CYC = False
    if "steplog" in sys.argv: Cfg.STEPLOG = True
    if "nokx" in sys.argv: Cfg.NOKX = True
    if "novx" in sys.argv: Cfg.NOVX = True
    if "nofl" in sys.argv: Cfg.NOFL = True
    if "wexit" in sys.argv: Cfg.WEXIT = True
    if "wspin" in sys.argv: Cfg.WSPIN = True; Cfg.NOWAIT = True
    if "w1only" in sys.argv: Cfg.W1ONLY = True
    if "slow" in sys.argv: Cfg.FORCE_SLOW = True
    out = sys.argv[1] if len(sys.argv) > 1 else "out.s"
    open(out, "w").write(build(None))
    print("wrote", out)
```

```python
from common import *

SLOT = 16384
RESO = 98304
MEMB = 139264
XQ   = MEMB + 9216
XO   = XQ + 4096
KXB  = XO + 2048
SEL  = KXB + 8192
assert SEL + 1024 == 163840
MEMSTRIDE = 65536
CS = 9472
OOB = 0x10000000
sH=68; sMode=69; sStep=70; sT0=71; sT1=72; sT2=73; sFirst=74; sRT=75; sHoff=76
sMask=84
sLo8=86
sC1=78
sRd=16; sRdX=17; sPst=18; sPstX=19; sMemOff=20; sM0=21; sM1=22; sM2=23; sKXo=24; sVXo=25; sPFo=26; sPub=27; sFlo=28; sProg=29; sW1k=30; sRa=41; sRb=42; sRm0=43; sRm1=31; sMB=77; sRaX=86; sRbX=87; sFlc=80; sReady=81; sPF2=82; sProgL=28
vFlag=0; vL16=1; vIdx=2; vResA=3; vResB=4; vResO=5; vTrX=6; vXQw=7; vXOw=8; vL4=9; vMst=10; vHi=11
vT=12
PB=16
AS=24
LD=32
ACC=48
HB=131072
WBASE=72
C1 = (128 ** -0.5) * 1.4426950408889634

RESQ_L = [('Q',0),('K',2),('V',3),('Q',5),('K',6),('V',8)]
RESO_L = [(1,1),(3,1),(5,1),(7,1),(8,1)]
def build_wmap():
    ops = []
    for c in range(9):
        for M in 'QKV':
            if (M,c) in RESQ_L: continue
            for x in range(2): ops.append((M,c,x))
    for j in range(9):
        for c2 in range(2):
            if (j,c2) in RESO_L: continue
            ops.append(('O',j,c2))
    assert len(ops) == 55, len(ops)
    return {o: WBASE + 8*i for i,o in enumerate(ops)}
WM = build_wmap()

def chain_init(a):
    a(f"""
    s_lshr_b32 s{sH}, s2, 3
    s_xor_b32 s{sH}, s{sH}, {XP.get('hx', 0) and 2 or 0}
    v_lshlrev_b32 v{vL16}, 4, v0
    v_lshlrev_b32 v{vL4}, 2, v0
    """)
    stamp(a, 0, 12, 13)
    a(f"""
    v_mov_b32 v12, 0
    v_mov_b32 v13, 0
    v_mov_b32 v14, 0
    v_mov_b32 v15, 0
    v_mov_b32 v16, -1
    v_mov_b32 v17, -1
    v_mov_b32 v18, -1
    v_mov_b32 v19, -1
    s_lshl_b32 s4, s3, 10
    v_add_u32 v20, s4, v{vL16}
    s_mul_i32 s5, s{sH}, 800
    v_cmp_gt_u32 vcc, 800, v20
    s_and_saveexec_b64 s[8:9], vcc
    s_cbranch_execz L_ci_nf
    buffer_store_dwordx4 v[12:15], v20, s[{SWS}:{SWS+3}], s5 offen sc1
    L_ci_nf:
    s_mov_b64 exec, s[8:9]
    s_mul_i32 s5, s{sH}, 18432
    s_add_u32 s5, s5, {CH_PART}
    """)
    for i in range(4):
        a(f"buffer_store_dwordx4 v[16:19], v20, s[{SWS}:{SWS+3}], s5 offen sc1\ns_add_u32 s5, s5, 4096")
    a(f"""
    v_cmp_gt_u32 vcc, 2048, v20
    s_and_saveexec_b64 s[8:9], vcc
    s_cbranch_execz L_ci_np
    buffer_store_dwordx4 v[16:19], v20, s[{SWS}:{SWS+3}], s5 offen sc1
    L_ci_np:
    s_mov_b64 exec, s[8:9]
    s_lshl_b32 s5, s{sH}, 2
    s_add_u32 s5, s5, s3                 ; wi = h*4+w
    s_cmp_ge_u32 s5, 108
    s_cbranch_scc1 L_ci_nm2
    s_mul_hi_u32 s6, s5, 0x1c71c71d      ; wi/9
    s_mul_i32 s7, s6, 9
    s_sub_u32 s7, s5, s7                 ; chunk
    s_lshr_b32 s5, s6, 2
    s_add_u32 s5, s5, 1                  ; idx
    s_lshl_b32 s5, s5, 16
    s_and_b32 s6, s6, 3
    s_mul_i32 s6, s6, {CS}
    s_add_u32 s5, s5, s6
    s_lshl_b32 s7, s7, 10
    s_add_u32 s5, s5, s7
    s_add_u32 s5, s5, {CH_MEM}
    buffer_store_dwordx4 v[16:19], v{vL16}, s[{SWS}:{SWS+3}], s5 offen sc1
    L_ci_nm2:
    """)
    srd(a, SA, P['mem0'], 8*1152)
    a(f"""
    s_cmp_ge_u32 s{sH}, 9
    s_cbranch_scc1 L_ci_m0e
    v_bfe_u32 v12, v0, 2, 2
    v_lshlrev_b32 v12, 1, v12
    v_and_b32 v13, 1, v0
    v_add_u32 v12, v12, v13
    s_movk_i32 s4, 1152
    v_mul_lo_u32 v12, v12, s4
    v_bfe_u32 v13, v0, 1, 1
    v_lshlrev_b32 v13, 6, v13
    v_add_u32 v12, v12, v13
    v_lshrrev_b32 v13, 5, v0
    v_lshlrev_b32 v13, 5, v13
    v_add_u32 v12, v12, v13
    v_bfe_u32 v13, v0, 4, 1
    v_lshlrev_b32 v13, 2, v13
    v_add_u32 v12, v12, v13
    s_lshl_b32 s4, s{sH}, 7
    """)
    for ea in range(8):
        off = (4*(ea&3) + (ea>>2))*2
        a(f"buffer_load_ushort v{32 + ea}, v12, s[{SA}:{SA+3}], s4 offen offset:{off}")
    a("s_waitcnt vmcnt(0)")
    for j in range(4): a(f"v_lshl_or_b32 v{24+j}, v{33+2*j}, 16, v{32+2*j}")
    a(f"""
    s_lshl_b32 s4, s{sH}, 10
    s_mul_i32 s5, s3, {CS}
    s_add_u32 s4, s4, s5
    s_add_u32 s4, s4, {CH_MEM}
    buffer_store_dwordx4 v[24:27], v{vL16}, s[{SWS}:{SWS+3}], s4 offen sc1
    s_nop 1
    L_ci_m0e:
    """)
    a(f"""
    v_lshrrev_b32 v12, 4, v0
    v_and_b32 v13, 1, v12
    s_lshr_b32 s4, s3, 1
    s_lshl_b32 s4, s4, 2
    v_or_b32 v13, s4, v13
    v_lshlrev_b32 v14, 1, v13
    v_and_b32 v21, 15, v0
    v_xor_b32 v22, v21, v14
    v_lshlrev_b32 v22, 4, v22
    v_lshlrev_b32 v12, 13, v12
    v_add_u32 v24, v12, v22
    v_xor_b32 v14, 4, v14
    v_xor_b32 v22, v21, v14
    v_lshlrev_b32 v22, 4, v22
    v_add_u32 v25, v12, v22
    v_lshrrev_b32 v12, 3, v0
    s_movk_i32 s4, 1152
    v_mul_lo_u32 v12, v12, s4
    v_lshrrev_b32 v13, 5, v0
    s_and_b32 s4, s3, 1
    s_lshl_b32 s4, s4, 1
    v_or_b32 v13, s4, v13
    v_lshlrev_b32 v13, 1, v13
    v_and_b32 v21, 7, v0
    v_xor_b32 v21, v21, v13
    v_lshlrev_b32 v21, 4, v21
    v_add_u32 v26, v12, v21
    v_lshrrev_b32 v12, 4, v0            ; gb
    v_bfe_u32 v13, v0, 2, 2             ; r
    v_lshrrev_b32 v14, 1, v13
    v_lshlrev_b32 v14, 5, v14
    v_and_b32 v21, 1, v13
    v_lshlrev_b32 v21, 2, v21
    v_add3_u32 v14, v14, v21, v12
    v_lshlrev_b32 v14, 8, v14
    v_and_b32 v21, 1, v0
    v_lshlrev_b32 v21, 3, v21
    v_add_u32 v14, v14, v21
    v_and_b32 v21, 1, v12
    v_lshlrev_b32 v21, 1, v21
    v_lshlrev_b32 v22, 2, v13
    v_add_u32 v21, v21, v22
    v_bfe_u32 v22, v0, 1, 1
    s_lshl_b32 s4, s3, 2
    v_add_u32 v22, s4, v22
    v_xor_b32 v23, v22, v21
    v_lshlrev_b32 v23, 4, v23
    v_add_u32 v28, v14, v23
    v_add_u32 v22, 2, v22
    v_xor_b32 v23, v22, v21
    v_lshlrev_b32 v23, 4, v23
    v_add_u32 v29, v14, v23
    v_lshrrev_b32 v14, 1, v13
    v_lshlrev_b32 v21, 5, v14
    v_lshrrev_b32 v22, 1, v12
    v_lshlrev_b32 v22, 3, v22
    v_add_u32 v21, v21, v22
    v_and_b32 v22, 1, v12
    v_lshlrev_b32 v23, 2, v22
    v_add_u32 v21, v21, v23
    v_and_b32 v23, 1, v13
    v_add_u32 v21, v21, v23
    v_lshlrev_b32 v21, 7, v21
    v_lshlrev_b32 v14, 1, v14
    v_or_b32 v22, v22, v14
    v_lshlrev_b32 v22, 1, v22
    v_bfe_u32 v23, v0, 1, 1
    s_lshl_b32 s4, s3, 1
    v_add_u32 v23, s4, v23
    v_xor_b32 v23, v23, v22
    v_lshlrev_b32 v23, 4, v23
    v_and_b32 v22, 1, v0
    v_lshlrev_b32 v22, 3, v22
    v_add3_u32 v27, v21, v23, v22
    """)
    srd(a, SA,  P['Wq'], 576*8192)
    srd(a, SB0, P['Wk'], 576*8192)
    srd(a, SB1, P['Wv'], 576*8192)
    srd(a, SOUT, P['Wo'], 4096*1152)
    SR = {'Q':SA, 'K':SB0, 'V':SB1, 'O':SOUT}
    regq = [(M,c) for c in range(9) for M in 'QKV' if (M,c) not in RESQ_L]
    ou = [('O',j) for j in range(9)]
    units = []
    qi = oi = 0
    for n_ in range(30):
        if n_ in (2,5,9,12,15,19,22,25,28): units.append(ou[oi]); oi += 1
        else: units.append(regq[qi]); qi += 1
    assert qi == 21 and oi == 9
    units += RESQ_L
    assert len(units) == 36
    a(f"""
    s_lshl_b32 s{sHoff}, s{sH}, 8
    s_mul_i32 s6, s3, {16*8192}
    s_add_u32 s6, s6, s{sHoff}
    s_mul_i32 s7, s{sH}, 147456
    s_mul_i32 s4, s3, {32*1152}
    s_add_u32 s7, s7, s4
    s_lshl_b32 s12, s3, 12
    """)
    NS = 10
    slot_of = lambda i: (i % NS) * SLOT
    def issue(i):
        M, c = units[i]
        for jj in range(4):
            a(f"s_add_u32 m0, s12, {slot_of(i) + jj*1024}")
            if M != 'O':
                a(f"s_add_u32 s4, s6, {(64*c + 4*jj)*8192}")
                a(f"buffer_load_dwordx4 v{24 + (jj&1)}, s[{SR[M]}:{SR[M]+3}], s4 offen lds")
            else:
                a(f"s_add_u32 s4, s7, {8*jj*1152 + c*128}")
                a(f"buffer_load_dwordx4 v26, s[{SR[M]}:{SR[M]+3}], s4 offen lds")
    for i in range(NS): issue(i)
    a("s_waitcnt vmcnt(40)\ns_barrier")
    if CODEPF:
        Lc = a.uniq("L_cpf")
        a(f"s_cmp_lg_u32 s3, 3\ns_cbranch_scc1 {Lc}")
        code_prefetch(a, "L_common_f", 8192, vt=12)
        a.lab(Lc)
    a(f"""
    s_cmp_lg_u32 s3, 0
    s_cbranch_scc1 L_ci_hs
    s_getreg_b32 s4, hwreg(HW_REG_XCC_ID)
    s_and_b32 s4, s4, 7
    s_mul_i32 s4, s4, 7
    s_mov_b64 s[10:11], 1
    s_lshl_b64 s[10:11], s[10:11], s4
    s_mov_b64 s[8:9], exec
    s_mov_b64 exec, 1
    v_mov_b32 v12, 0
    v_mov_b32 v14, s10
    v_mov_b32 v15, s11
    v_mov_b32 v13, 1
    global_atomic_add_x2 v12, v[14:15], s[{P['dbg']}:{P['dbg']+1}]
    global_atomic_add v12, v13, s[{P['dbg']}:{P['dbg']+1}] offset:16
    s_mov_b64 exec, s[8:9]
    L_ci_hs:
    """)
    TO = 32
    a(f"""
    s_lshl_b32 s4, s3, 12
    v_add_u32 v{vResA}, s4, v{vL16}
    v_add_u32 v{vResB}, 0x10000, v{vResA}
    s_lshl_b32 s4, s3, 11
    s_add_u32 s4, s4, {RESO}
    v_add_u32 v{vResO}, s4, v{vL16}
    """)
    for i in range(36):
        M, c = units[i]
        issued = min(max(i + NS - 2, NS - 1), 35)
        a(f"s_waitcnt vmcnt({min((issued - i)*4, 63)}) lgkmcnt(0)")
        a("s_barrier")
        if i > 0 and i - 1 + NS <= 35: issue(i - 1 + NS)
        if i == 33:
            a(f"""
            v_mov_b32 v12, 0
            global_load_dwordx2 v[14:15], v12, s[{P['dbg']}:{P['dbg']+1}] sc1
            """)
        base = slot_of(i)
        if i >= 30:
            if i == 30:
                for k in range(5):
                    a(f"ds_write_b128 v{vResO}, {vr(TO+8*k,4)} offset:{k*8192}\nds_write_b128 v{vResO}, {vr(TO+8*k+4,4)} offset:{k*8192+1024}")
                a("s_waitcnt lgkmcnt(0)")
            for x in range(2):
                a(f"v_add_u32 v30, {base}, v{28+x}")
                for j in range(4):
                    a(f"ds_read_b64_tr_b16 {vr(TO+8*x+2*j,2)}, v30 offset:{j*2048}")
            a("s_waitcnt lgkmcnt(0)\ns_barrier")
            rb, off = (vResA, base) if base < 65536 else (vResB, base - 65536)
            for x in range(2):
                a(f"ds_write_b128 v{rb}, {vr(TO+8*x,4)} offset:{off + x*2048}\nds_write_b128 v{rb}, {vr(TO+8*x+4,4)} offset:{off + x*2048 + 1024}")
            continue
        if M != 'O':
            for x in range(2):
                dst = WM[(M,c,x)]
                a(f"v_add_u32 v30, {base}, v{28+x}")
                for j in range(4):
                    a(f"ds_read_b64_tr_b16 {R(dst+2*j,2)}, v30 offset:{j*2048}")
        else:
            a(f"v_add_u32 v30, {base}, v27")
            for c2 in range(2):
                dst = WM[('O',c,c2)] if (c,c2) not in RESO_L else TO + 8*RESO_L.index((c,c2))
                for j in range(4):
                    a(f"ds_read_b64_tr_b16 {R(dst+2*j,2)}, v30 offset:{(64*c2 + 16*(j>>1) + 2*(j&1))*128}")
    a("s_waitcnt vmcnt(0) lgkmcnt(0)\ns_barrier")
    a(f"""
    v_readfirstlane_b32 s8, v14
    v_readfirstlane_b32 s9, v15
    """)
    stamp(a, 1, 12, 13)
    a(f"""
    v_mov_b32 v12, 0
    s_mov_b32 s4, s8
    s_mov_b32 s5, s9
    s_branch L_ci_w2
    L_ci_w:
    global_load_dwordx2 v[14:15], v12, s[{P['dbg']}:{P['dbg']+1}] sc1
    s_waitcnt vmcnt(0)
    v_readfirstlane_b32 s4, v14
    v_readfirstlane_b32 s5, v15
    L_ci_w2:
    s_mov_b32 s6, 0
    s_mov_b32 s7, 0
    """)
    for k in range(8):
        a(f"s_and_b32 s10, s4, 127\ns_add_u32 s6, s6, s10\ns_max_u32 s7, s7, s10\ns_lshr_b64 s[4:5], s[4:5], 7")
    a(f"""
    s_cmp_ge_u32 s6, 32
    s_cbranch_scc1 L_ci_go
    s_sleep 2
    """)
    spin_check(a)
    a(f"""
    s_branch L_ci_w
    L_ci_go:
    s_cmp_ge_u32 s7, 32
    s_cselect_b32 s{sMode}, 0, 1
    """)
    a(f"""
    v_lshlrev_b32 v71, 3, v{vL16}
    v_and_b32 v71, 0xf80, v71
    s_mov_b32 s4, {F_KV}
    buffer_load_dword v71, v71, s[{SWS}:{SWS+3}], s4 offen sc1
    """)
    a(f"""
    v_bfe_u32 v12, v0, 1, 1
    v_mov_b32 v{vIdx}, 0x4444
    v_mov_b32 v13, 0xeeee
    v_cmp_eq_u32 vcc, 1, v12
    s_nop 1
    v_cndmask_b32 v{vIdx}, v{vIdx}, v13, vcc
    v_lshrrev_b32 v12, 2, v0
    v_lshlrev_b32 v12, 5, v12
    v_and_b32 v13, 3, v0
    v_lshlrev_b32 v13, 3, v13
    v_add_u32 v12, v12, v13
    v_add_u32 v{vTrX}, {XQ}, v12
    v_and_b32 v12, 15, v0
    s_lshl_b32 s4, s3, 5
    v_add_u32 v12, s4, v12
    v_lshlrev_b32 v12, 5, v12
    v_lshrrev_b32 v13, 4, v0
    v_lshlrev_b32 v13, 3, v13
    v_add_u32 v12, v12, v13
    v_add_u32 v{vXQw}, {XQ}, v12
    v_bfe_u32 v12, v0, 2, 2
    v_lshlrev_b32 v12, 2, v12
    v_and_b32 v13, 1, v0
    s_and_b32 s4, s3, 1
    s_lshl_b32 s4, s4, 1
    v_add3_u32 v12, v12, v13, s4
    v_lshrrev_b32 v13, 5, v0
    v_lshlrev_b32 v13, 4, v13
    v_add_u32 v12, v12, v13
    v_lshlrev_b32 v12, 4, v12
    v_bfe_u32 v13, v0, 4, 1
    v_lshlrev_b32 v13, 3, v13
    v_add_u32 v12, v12, v13
    s_lshr_b32 s4, s3, 1
    s_lshl_b32 s4, s4, 10
    s_add_u32 s4, s4, {XO}
    v_add_u32 v{vXOw}, s4, v12
    s_mov_b32 s{sMask}, 0xcccccccc
    s_mov_b32 s{sMask+1}, 0xcccccccc
    s_mov_b32 s{sC1}, {fb(C1)}
    s_mov_b32 s{sRT}, -1
    s_cmp_eq_u32 s3, 0
    s_cselect_b32 s{sRT}, s{sH}, s{sRT}
    s_add_u32 s4, s{sH}, 32
    s_cmp_lt_u32 s{sH}, 4
    s_cselect_b32 s4, s4, -1
    s_cmp_eq_u32 s3, 1
    s_cselect_b32 s{sRT}, s4, s{sRT}
    """)
    a(f"""
    s_lshr_b32 s4, s{sRT}, 2
    s_lshl_b32 s4, s4, 10
    s_and_b32 s5, s{sRT}, 1
    s_lshl_b32 s5, s5, 9
    s_add_u32 s4, s4, s5
    s_bfe_u32 s5, s{sRT}, 0x10001
    s_lshl_b32 s5, s5, 5                ; 2*half*16
    s_add_u32 s4, s4, s5
    v_bfe_u32 v12, v0, 2, 1
    v_lshlrev_b32 v12, 8, v12
    v_lshrrev_b32 v13, 4, v0
    v_lshlrev_b32 v13, 6, v13
    v_add_u32 v12, v12, v13
    v_and_b32 v13, 1, v0
    v_lshlrev_b32 v13, 4, v13           ; (e'&1)*16
    v_add_u32 v12, v12, v13
    v_bfe_u32 v13, v0, 1, 1
    v_lshlrev_b32 v13, 3, v13
    v_add_u32 v12, v12, v13
    v_add_u32 v{vMst}, s4, v12
    v_bfe_u32 v13, v0, 3, 1
    v_mul_u32_u24 v13, {CS}, v13
    v_add_u32 v{vMst}, v{vMst}, v13
    v_and_b32 v12, 7, v0
    v_lshrrev_b32 v13, 1, v12
    v_and_b32 v16, 1, v12
    v_lshlrev_b32 v16, 4, v16
    v_mov_b32 v17, 0x3f80
    v_lshlrev_b32 v17, v16, v17
    """)
    for j in range(4):
        a(f"v_cmp_eq_u32 vcc, {j}, v13\ns_nop 1\nv_cndmask_b32 v{20+j}, 0, v17, vcc")
    a(f"v_add_u32 v16, {SEL}, v{vL16}\nds_write_b128 v16, v[20:23]")
    a("s_waitcnt lgkmcnt(0)")
    if Cfg.FORCE_SLOW: a(f"s_mov_b32 s{sMode}, 1")

def zero(a, base, n):
    for i in range(0, n, 2): a(f"v_mov_b64 {vr(base+i,2)}, 0")
def smf(a, acc, A, B):
    a(f"v_smfmac_f32_16x16x64_bf16 {vr(acc,4)}, {vr(A,4)}, {R(B,8)}, v{vIdx}")

class LQ:
    def __init__(s, a): s.a = a; s.p = []
    def add(s, tag, n=1): s.p.extend([tag]*n)
    def wait(s, tags):
        idx = [i for i,t in enumerate(s.p) if t in tags]
        if not idx: return
        last = max(idx); n = len(s.p) - 1 - last
        s.a(f"s_waitcnt lgkmcnt({min(n,15)})"); del s.p[:last+1]

VSPACE = 4
VSPACE2 = 2
class Sch:
    def __init__(s, a, lq): s.a = a; s.lq = lq; s.f = []; s.since = 99; s.vs = VSPACE
    def fill(s, instr, tag=None): s.f.append((instr, tag))
    def front(s, lst):
        k = 0
        while k < len(s.f) and (s.f[k][1] == 'W' or (isinstance(s.f[k][1], tuple) and s.f[k][1][0] == 'A')): k += 1
        s.f[k:k] = lst
    def pop(s, n=1, force=False):
        for _ in range(n):
            if not s.f: return
            k = 0
            s.since += 1
            if not force and s.vs:
                k = None
                for q, (ins, tag) in enumerate(s.f):
                    if ins.startswith("buffer_"):
                        if s.since >= s.vs and not any(x[0].startswith("buffer_") for x in s.f[:q]): k = q; break
                    else:
                        k = q; break
                if k is None: return
            ins, tag = s.f.pop(k)
            if ins.startswith("buffer_"): s.since = 0
            s.a(ins)
            if tag is not None: s.lq.add(tag)
    def flush(s): s.pop(len(s.f), force=True)

sPJ = 32
WSR = f"s[{SWS}:{SWS+3}]"
ST = 32*8192
res_at = {c: M for (M,c) in RESQ_L}
res_list = sorted(res_at)
def rq(c, x):
    slot = RESQ_L.index((res_at[c],c)) * SLOT
    rb, off = (vResA, slot) if slot < 65536 else (vResB, slot - 65536)
    return [f"ds_read_b128 {vr(LD+8*x+4*q,4)}, v{rb} offset:{off + x*2048 + q*1024}" for q in range(2)]
ACCS = [52,53,54,55,56,57,58,61,62,63,59,60]

def chain_state_init(a):
    a(f"""
    s_mov_b32 s{sStep}, -1
    v_add_u32 v{vHi}, {HB}, v{vL16}
    s_lshl_b32 s{sW1k}, s3, 10
    s_lshl_b32 s4, s{sH}, 13
    s_lshl_b32 s5, s3, 11
    s_add_u32 s4, s4, s5
    s_add_u32 s{sKXo}, s4, {WS_KX}
    s_add_u32 s{sVXo}, s4, {WS_VX - ST}
    s_mov_b32 s{sPFo}, s{sKXo}
    s_lshl_b32 s4, s{sH}, 12
    s_add_u32 s4, s4, s{sW1k}
    s_add_u32 s{sPub}, s4, {WS_KM}
    s_lshl_b32 s4, s{sH}, 7
    s_add_u32 s{sProg}, s4, {F_PROG}
    s_mov_b32 s{sProgL}, s{sProg}
    s_cmp_eq_u32 s3, 3
    s_cselect_b32 s{sProg}, s{sProg}, {OOB}
    s_lshl_b32 s4, s3, 13
    s_add_u32 s4, s4, s{sHoff}
    s_add_u32 s{sPst}, s4, {CH_PART + PART_SZ}
    s_add_u32 s5, s4, {CH_PART}
    s_xor_b32 s{sPstX}, s{sPst}, s5
    s_lshl_b32 s4, s{sRT}, 13
    s_add_u32 s{sRd}, s4, {CH_PART}
    s_add_u32 s5, s4, {CH_PART + PART_SZ}
    s_xor_b32 s{sRdX}, s{sRd}, s5
    s_mov_b32 s{sMemOff}, {-65536 & 0x3ffff}
    s_and_b32 s4, s{sH}, 3
    s_mul_i32 s4, s4, {CS}
    s_add_u32 s{sMB}, s4, {CH_MEM}
    s_lshl_b32 s4, s{sH}, 13
    s_lshl_b32 s5, s3, 11
    s_add_u32 s4, s4, s5
    s_add_u32 s{sRa}, s4, {CH_PART}
    s_add_u32 s5, s4, {CH_PART + PART_SZ}
    s_xor_b32 s{sRaX}, s{sRa}, s5
    s_add_u32 s{sRb}, s{sRa}, {32*8192}
    s_add_u32 s5, s5, {32*8192}
    s_xor_b32 s{sRbX}, s{sRb}, s5
    s_cmp_lt_u32 s{sH}, 4
    s_cselect_b32 s{sRb}, s{sRb}, {OOB}
    s_cselect_b32 s{sRbX}, s{sRbX}, 0
    s_mov_b32 s{sC1+1}, s{sC1}
    s_mov_b32 s{sThr}, {fb(60.0/C1)}
    """)
    a(f"s_mov_b32 s{sFlc}, 0")
    Lkv = a.uniq("L_kv0"); Lkd = a.uniq("L_kv0d")
    a(f"""
    s_waitcnt vmcnt(0)
    v_cmp_le_u32 vcc, 32, v71
    s_nop 1
    s_not_b32 s4, vcc_lo
    s_ff1_i32_b32 s4, s4
    s_cmp_eq_u32 s4, -1
    s_cselect_b32 s{sReady}, 32, s4
    s_cmp_gt_u32 s{sReady}, 0
    s_cbranch_scc1 {Lkd}
    """)
    a.lab(Lkv)
    kv_refresh(a, sFlc, 12)
    a.lab(Lkd)
    a(f"""
    s_add_u32 m0, s{sW1k}, s{sW1k}
    s_add_u32 m0, m0, {KXB}
    s_nop 0
    buffer_load_dwordx4 v{vL16}, {WSR}, s{sKXo} offen sc1 lds
    buffer_load_dwordx4 v{vL16}, {WSR}, s{sKXo} offen offset:1024 sc1 lds
    s_add_u32 s{sKXo}, s{sKXo}, {ST}
    """)
    book_salu(a)
    stamp(a, 2, 12, 13)
    if Cfg.STAMPS: a("\n".join(f"s_mov_b32 s{r}, 0" for r in ACCS))
    cyc(a)

def book_salu(a):
    a(f"""
    s_add_u32 s{sMemOff}, s{sMemOff}, 65536
    s_and_b32 s{sMemOff}, s{sMemOff}, 0x3ffff
    s_add_u32 s{sT0}, s{sMemOff}, s{sMB}
    s_add_u32 s{sM0}, s{sT0}, s{sW1k}
    s_add_u32 s{sStep}, s{sStep}, 1
    s_add_u32 s{sM1}, s{sM0}, 4096
    s_lshr_b32 s4, s{sW1k}, 2
    s_add_u32 s{sM2}, s{sT0}, s4
    s_add_u32 s{sM2}, s{sM2}, 8192
    s_add_u32 s{sT2}, s4, {MEMB + 8192}
    s_xor_b32 s{sPst}, s{sPst}, s{sPstX}
    s_mov_b32 s{sPJ}, s{sPst}
    """)
    for j in range(1, 9): a(f"s_add_u32 s{sPJ+j}, s{sPst}, {j*4*8192}")
    a(f"""
    s_xor_b32 s{sRa}, s{sRa}, s{sRaX}
    s_xor_b32 s{sRb}, s{sRb}, s{sRbX}
    s_add_u32 s{sVXo}, s{sVXo}, {ST}
    s_add_u32 s{sPFo}, s{sPFo}, {ST}
    s_add_u32 s{sPF2}, s{sPFo}, {WS_VX - WS_KX}
    s_add_u32 s4, s{sStep}, 1
    s_lshr_b32 s4, s4, 1
    s_min_u32 s{sFlc}, s4, 31
    """)

def kv_refresh(a, target_sgpr, vt):
    if Cfg.NOCOMM or getattr(Cfg,'WEXIT',False) or getattr(Cfg,'NOWAIT',False):
        a(f"s_mov_b32 s{sReady}, 32"); return
    L = a.uniq("L_kvr"); Ld = a.uniq("L_kvd")
    a.lab(L)
    a(f"""
    v_lshlrev_b32 v{vt}, 3, v{vL16}
    v_and_b32 v{vt}, 0xf80, v{vt}
    s_mov_b32 s4, {F_KV}
    buffer_load_dword v{vt}, v{vt}, {WSR}, s4 offen sc1
    s_waitcnt vmcnt(0)
    v_cmp_le_u32 vcc, 32, v{vt}
    s_nop 1
    s_not_b32 s4, vcc_lo
    s_ff1_i32_b32 s4, s4
    s_cmp_eq_u32 s4, -1
    s_cselect_b32 s{sReady}, 32, s4
    s_cmp_gt_u32 s{sReady}, s{target_sgpr}
    s_cbranch_scc1 {Ld}
    s_sleep 4
    """)
    spin_check(a)
    a(f"s_branch {L}")
    a.lab(Ld)

def probe(a, instr, sacc, smax):
    if Cfg.STAMPS and Cfg.CYC and PROBES:
        a("s_memtime s[90:91]\ns_waitcnt lgkmcnt(0)")
        a(instr)
        a(f"s_memtime s[92:93]\ns_waitcnt lgkmcnt(0)\ns_sub_u32 s92, s92, s90\ns_add_u32 s{sacc}, s{sacc}, s92\ns_max_u32 s{smax}, s{smax}, s92")
    else:
        a(instr)
PROBES = False

def chain_loop(a, slow):
    T0 = "s" if slow else "f"
    sfx = " sc1" if slow else ""
    q0,q1,k0,k1,v0_,v1_ = ACC, ACC+4, ACC+8, ACC+12, ACC+16, ACC+20
    accs = {('Q',0):q0,('Q',1):q1,('K',0):k0,('K',1):k1,('V',0):v0_,('V',1):v1_}
    RL = 16
    def loads1():
        for j in range(8):
            a(f"buffer_load_dwordx4 {vr(RL+4*j,4)}, v{vL16}, {WSR}, s{sRd if j < 4 else sT1} offen offset:{(j&3)*1024} sc1")
    def aread_i(c): return f"ds_read_b128 {vr(AS+4*(c&1),4)}, v{vHi} offset:{MEMB - HB + c*1024}"
    ool = []

    def emit(final):
        T = T0 + ("z" if final else "")
        def lb(n): return f"{n}_{T}"
        a.lab(lb("L_common"))
        if not final:
            cyc(a, 57); ev(a, 7, 31)
            a(f"s_cmp_eq_u32 s{sStep}, 63\ns_cbranch_scc1 L_common_{T0}z")
        a(f"""
        v_add_u32 v{vT+2}, s{sW1k}, v{vHi}
        v_add_u32 v{vT+3}, s{sT2}, v{vL4}
        v_mov_b32 v{vT+1}, -1
        s_cmp_ge_u32 s{sFlc}, s{sReady}
        s_cbranch_scc1 {lb('L_flslow')}
        """)
        a.lab(lb("L_fl_ok"))
        def chk(reg, fail):
            a(f"v_cmp_eq_u32 vcc, -1, v{reg}\ns_cbranch_vccnz {fail}")
        def okpath(reg):
            if not final: ev(a, 8, 31)
            a(f"ds_write_b128 v{vT+2}, {vr(reg,4)} offset:{MEMB-HB}")
            a(f"buffer_load_dwordx4 {vr(PB,4)}, v{vL16}, {WSR}, s{sM1} offen sc1\nbuffer_load_dword v{PB+4}, v{vL4}, {WSR}, s{sM2} offen sc1")
        a(f"buffer_load_dwordx4 {vr(AS+4,4)}, v{vL16}, {WSR}, s{sM0} offen sc1")
        a.lab(lb("L_pA0"))
        a("s_waitcnt vmcnt(1)")
        chk(AS, lb("L_pA0f"))
        okpath(AS)
        a.lab(lb("L_pAdone"))
        a("s_waitcnt vmcnt(2) lgkmcnt(0)\ns_barrier")
        if not final:
            cyc(a, 58); ev(a, 9, 31)
        def ool_poll():
            a.lab(lb("L_pA0f"))
            if Cfg.STAMPS: a("s_add_u32 s62, s62, 1")
            spin_check(a)
            a(f"buffer_load_dwordx4 {vr(AS,4)}, v{vL16}, {WSR}, s{sM0} offen sc1")
            a("s_waitcnt vmcnt(1)")
            chk(AS+4, lb("L_pA1f"))
            okpath(AS+4)
            a(f"s_branch {lb('L_pAdone')}")
            a.lab(lb("L_pA1f"))
            if Cfg.STAMPS: a("s_add_u32 s62, s62, 1")
            a(f"buffer_load_dwordx4 {vr(AS+4,4)}, v{vL16}, {WSR}, s{sM0} offen sc1")
            a(f"s_branch {lb('L_pA0')}")
            a.lab(lb("L_retryB"))
            if Cfg.STAMPS: a("s_add_u32 s63, s63, 1")
            spin_check(a)
            a(f"buffer_load_dwordx4 {vr(PB,4)}, v{vL16}, {WSR}, s{sM1} offen sc1\nbuffer_load_dword v{PB+4}, v{vL4}, {WSR}, s{sM2} offen sc1\ns_waitcnt vmcnt(0)\ns_branch {lb('L_chkB')}")
            a.lab(lb("L_flslow"))
            kv_refresh(a, sFlc, PB+6)
            a(f"s_branch {lb('L_fl_ok')}")
        ool.append(ool_poll)
        if not final:
            cyc(a); ev(a, 0)
            if Cfg.STEPLOG:
                L = a.uniq("L_sl")
                a(f"""
                s_cmp_lg_u32 s3, 3
                s_cbranch_scc1 {L}
                s_memrealtime s[94:95]
                s_memtime s[96:97]
                s_lshl_b32 s7, s{sH}, 10
                s_lshl_b32 s6, s{sStep}, 3
                s_add_u32 s7, s7, s6
                s_add_u32 s7, s7, {0x7300000}
                s_waitcnt lgkmcnt(0)
                v_mov_b32 v{PB+6}, s94
                v_mov_b32 v{PB+7}, s96
                v_mov_b32 v{vT}, 0
                buffer_store_dwordx2 {vr(PB+6,2)}, v{vT}, {WSR}, s7 offen
                """)
                a.lab(L)
        lq = LQ(a); sch = Sch(a, lq)
        a(aread_i(0)); lq.add(('A',0))
        a(aread_i(1)); lq.add(('A',1))
        nre = 0
        if not final:
            for sr_ in (sRa, sRb):
                for q in range(2):
                    sch.fill(f"buffer_store_dword v{vT+1}, v{vL16}, {WSR}, s{sr_} offen offset:{q*1024}{sfx}"); nre += 1
        mats = 'KV' if final else 'QKV'
        for c in range(9):
            A = AS + 4*(c&1)
            base = [(M,x) for M in mats for x in range(2)]
            if c in res_at and c != 8 and res_at[c] in mats:
                Mr = res_at[c]
                others = [o for o in base if o[0] != Mr]
                if len(others) == 4: order = [others[0], (Mr,0), others[1], others[2], (Mr,1), others[3]]
                else: order = [others[0], (Mr,0), others[1], (Mr,1)]
            else:
                order = base
            if c >= 7 and not final: order = [('Q',0),('K',0),('Q',1),('K',1)]
            if c >= 7 and final: order = [('K',0),('K',1)]
            if 1 <= c < 8: sch.front([(aread_i(c+1), ('A',c+1))])
            last = len(order) - 1
            for n_, (M,x) in enumerate(order):
                isres = (c in res_at and M == res_at[c])
                lq.wait([('A',c)] + ([('R',c,x)] if isres else []))
                B = (LD + 8*x) if isres else WM[(M,c,x)]
                smf(a, accs[(M,x)], A, B)
                if isres:
                    nx = [r for r in res_list if r > c and res_at[r] in mats]
                    if nx:
                        ins = rq(nx[0], x)
                        sch.front([(ins[0], ('R',nx[0],x)), (ins[1], ('R',nx[0],x))])
                if c == 1 and n_ == last:
                    sch.flush()
                    a(f"s_waitcnt vmcnt({nre})")
                    a.lab(lb("L_chkB"))
                    a(f"v_max_u32 v{PB+6}, v{PB}, v{PB+4}\nv_cmp_eq_u32 vcc, -1, v{PB+6}\ns_cbranch_vccnz {lb('L_retryB')}")
                    if not final: ev(a, 1)
                    sch.front([(f"ds_write_b128 v{vT+2}, {vr(PB,4)} offset:{MEMB-HB+4096}", 'W'), (f"ds_write_b32 v{vT+3}, v{PB+4}", 'W')])
                elif c == 2 and n_ == last:
                    sch.flush()
                    lq.wait(['W'])
                    a("s_barrier")
                    if not final:
                        if not Cfg.NOVX:
                            sch.fill(f"buffer_load_dwordx4 {vr(PB,4)}, v{vL16}, {WSR}, s{sVXo} offen sc1")
                            sch.fill(f"buffer_load_dwordx4 {vr(PB+4,4)}, v{vL16}, {WSR}, s{sVXo} offen offset:1024 sc1")
                        a(f"v_sub_u32 v{vT+2}, 0, v{vL16}\nv_mov_b32 v{vT+3}, s{sStep}")
                        if not Cfg.NOFL: sch.fill(f"buffer_store_dword v{vT+3}, v{vT+2}, {WSR}, s{sProg} offen sc1")
                else:
                    sch.pop(1)
                if final and c == 0 and n_ == last and 'Q' == res_at[0]:
                    nx = [r for r in res_list if res_at[r] in mats]
                    for x2 in range(2):
                        ins = rq(nx[0], x2)
                        sch.front([(ins[0], ('R',nx[0],x2)), (ins[1], ('R',nx[0],x2))])
        sch.flush()
        if not final:
            cyc(a, 52); ev(a, 2)
            for _ in range(ADDQ): a('s_nop 15')
        A7, A8 = AS+4, AS
        smf(a, v0_, A7, WM[('V',7,0)]); smf(a, v1_, A7, WM[('V',7,1)])
        a("s_nop 1")
        vp = v0_
        if final:
            lq.wait([('R',8,0),('R',8,1)])
            smf(a, v0_, A8, LD); smf(a, v1_, A8, LD+8)
            a.nop(8)
            a(f"v_pk_add_f32 {vr(k0,2)}, {vr(k0,2)}, {vr(k0+2,2)}\nv_pk_add_f32 {vr(k1,2)}, {vr(k1,2)}, {vr(k1+2,2)}")
            a(f"v_cvt_pk_bf16_f32 v{k0}, v{k0}, v{k0+1}\nv_cvt_pk_bf16_f32 v{k0+2}, v{k1}, v{k1+1}")
            a(f"v_pk_add_f32 {vr(v0_,2)}, {vr(v0_,2)}, {vr(v0_+2,2)}\nv_pk_add_f32 {vr(v1_,2)}, {vr(v1_,2)}, {vr(v1_+2,2)}")
            a(f"v_cvt_pk_bf16_f32 v{k0+1}, v{v0_}, v{v0_+1}\nv_cvt_pk_bf16_f32 v{k0+3}, v{v1_}, v{v1_+1}")
            a(f"buffer_store_dwordx4 {vr(k0,4)}, v{vL16}, {WSR}, s{sPub} offen sc1")
            a("s_branch L_chain_last")
            return
        a(f"v_pk_add_f32 {vr(q0,2)}, {vr(q0,2)}, {vr(q0+2,2)}\nv_pk_add_f32 {vr(k0,2)}, {vr(k0,2)}, {vr(k0+2,2)}")
        a(f"v_cvt_pk_bf16_f32 v{k0}, v{k0}, v{k0+1}\nv_cvt_pk_bf16_f32 v{k0+1}, v{q0}, v{q0+1}")
        a(f"ds_write_b64 v{vXQw}, {vr(k0,2)}")
        a(f"v_pk_add_f32 {vr(q1,2)}, {vr(q1,2)}, {vr(q1+2,2)}\nv_pk_add_f32 {vr(k1,2)}, {vr(k1,2)}, {vr(k1+2,2)}")
        a(f"v_cvt_pk_bf16_f32 v{k0+2}, v{k1}, v{k1+1}\nv_cvt_pk_bf16_f32 v{k0+3}, v{q1}, v{q1+1}")
        a(f"ds_write_b64 v{vXQw}, {vr(k0+2,2)} offset:512")
        lq.wait([('R',8,0),('R',8,1)])
        smf(a, v0_, A8, LD)
        smf(a, v1_, A8, LD+8)
        a("s_waitcnt lgkmcnt(0)\ns_barrier")
        sm, s1, s2 = q0, q1, k1
        KL = [24, 28, 12]
        for ks in range(4):
            for x2 in range(2):
                a(f"ds_read_b64_tr_b16 {vr(LD+4*ks+2*x2,2)}, v{vTrX} offset:{(32*ks+16*x2)*32}")
        def kxread(i): return f"ds_read_b128 {vr(KL[i%3],4)}, v{vHi} offset:{KXB - HB + i*1024}"
        for i in range(3): a(kxread(i))
        a(f"v_pk_add_f32 {vr(v0_,2)}, {vr(v0_,2)}, {vr(v0_+2,2)}\nv_pk_add_f32 {vr(v1_,2)}, {vr(v1_,2)}, {vr(v1_+2,2)}")
        a(f"v_cvt_pk_bf16_f32 v{k0+1}, v{v0_}, v{v0_+1}\nv_cvt_pk_bf16_f32 v{k0+3}, v{v1_}, v{v1_+1}")
        a(f"v_cvt_pk_bf16_f32 v{vp}, v{v0_}, v{v0_+1}\nv_cvt_pk_bf16_f32 v{vp+2}, v{v1_}, v{v1_+1}\nv_mov_b32 v{vp+1}, 0\nv_mov_b32 v{vp+3}, 0")
        cyc(a, 53)
        a("s_waitcnt lgkmcnt(3)")
        ones = v1_
        for ks in range(4):
            c = "0" if ks == 0 else vr(sm,4)
            a(f"v_mfma_f32_16x16x32_bf16 {vr(sm,4)}, {vr(LD+4*ks,4)}, {vr(LD+4*ks,4)}, {c}")
            a(f"v_mov_b32 v{ones+ks}, 0x3f803f80")
            if ks == 1 and not Cfg.NOPUB: a(f"buffer_store_dwordx4 {vr(k0,4)}, v{vL16}, {WSR}, s{sPub} offen sc1")
        for i in range(8):
            t, ks = i >> 2, i & 3
            d = s1 if t == 0 else s2
            a(f"s_waitcnt lgkmcnt({min(2, 7 - i)})")
            c = "0" if ks == 0 else vr(d,4)
            a(f"v_mfma_f32_16x16x32_bf16 {vr(d,4)}, {vr(KL[i%3],4)}, {vr(LD+4*ks,4)}, {c}")
            if i + 3 < 8: a(kxread(i + 3))
            if i == 6: a(f"s_add_u32 s{sPub}, s{sPub}, {32*4096}")
        a(f"ds_read_b128 {vr(LD+8,4)}, v{vResO} offset:0\nds_read_b128 {vr(LD+12,4)}, v{vResO} offset:1024")
        if KXEARLY:
            a(f"s_add_u32 m0, s{sW1k}, s{sW1k}\ns_add_u32 m0, m0, {KXB}\ns_barrier")
            if not Cfg.NOKX: a(f"buffer_load_dwordx4 v{vL16}, {WSR}, s{sKXo} offen sc1 lds\nbuffer_load_dwordx4 v{vL16}, {WSR}, s{sKXo} offen offset:1024 sc1 lds")
            a(f"s_add_u32 s{sKXo}, s{sKXo}, {ST}")
        else:
            a.nop(5)
        cyc(a, 54); ev(a, 3)
        vals = [sm, sm+1, s1, s1+1, s1+2, s1+3, s2, s2+1, s2+2, s2+3]
        mx, t2 = AS, AS+1
        pairs = (sm, s1, s1+2, s2, s2+2)
        def truemax():
            a(f"v_max3_f32 v{mx}, v{vals[0]}, v{vals[1]}, v{vals[2]}")
            a(f"v_max3_f32 v{t2}, v{vals[3]}, v{vals[4]}, v{vals[5]}")
            a(f"v_max3_f32 v{mx}, v{mx}, v{vals[6]}, v{vals[7]}")
            a(f"v_max3_f32 v{t2}, v{t2}, v{vals[8]}, v{vals[9]}")
            a(f"v_max_f32 v{mx}, v{mx}, v{t2}")
            a(f"v_mov_b32 v{t2}, v{mx}\ns_nop 1\nv_permlane16_swap_b32 v{mx}, v{t2}\ns_nop 0\nv_max_f32 v{mx}, v{mx}, v{t2}")
            a(f"v_mov_b32 v{t2}, v{mx}\ns_nop 1\nv_permlane32_swap_b32 v{mx}, v{t2}\ns_nop 0\nv_max_f32 v{mx}, v{mx}, v{t2}")
            a(f"v_mul_f32 v{mx}, s{sC1}, v{mx}")
            for b_ in pairs:
                a(f"v_pk_fma_f32 {vr(b_,2)}, {vr(b_,2)}, s[{sC1}:{sC1+1}], {vr(mx,2)} op_sel_hi:[1,1,0] neg_lo:[0,0,1] neg_hi:[0,0,1]")
        if SKIPMAX:
            a(f"v_max3_f32 v{mx}, |v{vals[0]}|, |v{vals[1]}|, |v{vals[2]}|")
            a(f"v_max3_f32 v{t2}, |v{vals[3]}|, |v{vals[4]}|, |v{vals[5]}|")
            a(f"v_max3_f32 v{mx}, v{mx}, |v{vals[6]}|, |v{vals[7]}|")
            a(f"v_max3_f32 v{t2}, v{t2}, |v{vals[8]}|, |v{vals[9]}|")
            a(f"v_max_f32 v{mx}, v{mx}, v{t2}")
            a(f"v_cmp_nle_f32 vcc, v{mx}, v{vThr}" if False else f"v_cmp_ngt_f32 vcc, s{sThr}, v{mx}")
            for b_ in pairs[:2]:
                pass
            a(f"s_and_b64 vcc, vcc, s[{sMask}:{sMask+1}]\ns_cbranch_scc1 {lb('L_tmax')}")
            for b_ in pairs:
                a(f"v_pk_mul_f32 {vr(b_,2)}, {vr(b_,2)}, s[{sC1}:{sC1+1}]")
            a.lab(lb("L_tmaxr"))
            def ool_tm():
                a.lab(lb("L_tmax"))
                truemax()
                a(f"s_branch {lb('L_tmaxr')}")
            ool.append(ool_tm)
        else:
            truemax()
        if not SKIPSM:
            for v in vals: a(f"v_exp_f32 v{v}, v{v}")
        pm, px, lr = LD, LD+4, AS+4
        a(f"v_mov_b32 v{pm+1}, 0")
        a(f"v_cvt_pk_bf16_f32 v{pm}, v{sm}, v{sm+1}")
        a(f"v_cvt_pk_bf16_f32 v{px}, v{s1}, v{s1+1}\nv_cvt_pk_bf16_f32 v{px+1}, v{s1+2}, v{s1+3}")
        a(f"v_cvt_pk_bf16_f32 v{px+2}, v{s2}, v{s2+1}\nv_cvt_pk_bf16_f32 v{px+3}, v{s2+2}, v{s2+3}")
        o0, o1 = sm, s1
        probe(a, f"s_waitcnt vmcnt({max(0, 2 + (2 if KXEARLY and not Cfg.NOKX else 0) - (1 if Cfg.NOPUB else 0) - (1 if Cfg.NOFL else 0))})", 59, 60)
        a("s_nop 0")
        a(f"v_mfma_f32_16x16x32_bf16 {vr(lr,4)}, {vr(ones,4)}, {vr(px,4)}, 0")
        a(f"v_mfma_f32_16x16x32_bf16 {vr(o0,4)}, {vr(PB,4)}, {vr(px,4)}, 0")
        a(f"ds_read_b128 v[56:59], v{vResO} offset:8192")
        a(f"v_mfma_f32_16x16x32_bf16 {vr(o1,4)}, {vr(PB+4,4)}, {vr(px,4)}, 0")
        a(f"ds_read_b128 v[60:63], v{vResO} offset:{8192+1024}")
        a(f"v_mfma_f32_16x16x16_bf16 {vr(lr,4)}, {vr(ones,2)}, {vr(pm,2)}, {vr(lr,4)}")
        a(f"v_mfma_f32_16x16x16_bf16 {vr(o0,4)}, {vr(vp,2)}, {vr(pm,2)}, {vr(o0,4)}")
        a(f"v_mfma_f32_16x16x16_bf16 {vr(o1,4)}, {vr(vp+2,2)}, {vr(pm,2)}, {vr(o1,4)}")
        zero(a, 12, 4); zero(a, PB, 4)
        a("s_nop 1")
        a(f"v_rcp_f32 v{AS}, v{lr}")
        zero(a, PB+4, 2)
        for j in range(0, 8, 2):
            a(f"v_pk_mul_f32 {vr(o0+j,2)}, {vr(o0+j,2)}, {vr(AS,2)} op_sel_hi:[1,0]")
        a(f"v_cvt_pk_bf16_f32 v{o0}, v{o0}, v{o0+1}\nv_cvt_pk_bf16_f32 v{o0+1}, v{o0+2}, v{o0+3}")
        a(f"s_mov_b64 exec, s[{sMask}:{sMask+1}]")
        a(f"ds_write_b64 v{vXOw}, {vr(o0,2)}")
        a(f"v_cvt_pk_bf16_f32 v{o1}, v{o1}, v{o1+1}\nv_cvt_pk_bf16_f32 v{o1+1}, v{o1+2}, v{o1+3}")
        a(f"ds_write_b64 v{vXOw}, {vr(o1,2)} offset:512")
        a("s_mov_b64 exec, -1")
        zero(a, PB+6, 2); zero(a, 24, 8); zero(a, 64, 8)
        if not KXEARLY: a(f"s_add_u32 m0, s{sW1k}, s{sW1k}\ns_add_u32 m0, m0, {KXB}")
        a("s_waitcnt lgkmcnt(0)\ns_barrier")
        a(f"ds_read_b128 {vr(LD,4)}, v{vHi} offset:{XO-HB}\nds_read_b128 {vr(LD+4,4)}, v{vHi} offset:{XO-HB+1024}")
        if not KXEARLY:
            if not Cfg.NOKX: a(f"buffer_load_dwordx4 v{vL16}, {WSR}, s{sKXo} offen sc1 lds\nbuffer_load_dwordx4 v{vL16}, {WSR}, s{sKXo} offen offset:1024 sc1 lds")
        zero(a, 48, 8)
        if not KXEARLY: a(f"s_add_u32 s{sKXo}, s{sKXo}, {ST}")
        a("s_waitcnt lgkmcnt(0)")
        cyc(a, 55); ev(a, 4)
        WA = [16, 20, 24, 28, 68, 64, 12, 48, 52]
        ROr = [LD+8, 56]
        lq2 = LQ(a); sc2 = Sch(a, lq2); sc2.vs = VSPACE2
        def post_(j):
            d = WA[j]
            a(f"v_pk_add_f32 {vr(d,2)}, {vr(d,2)}, {vr(d+2,2)}\nv_cvt_pk_bf16_f32 v{d}, v{d}, v{d+1}")
            sc2.front([(f"buffer_store_dword v{d}, v{vL4}, {WSR}, s{sPJ+j} offen{sfx}", None)])
        for j in range(9):
            smf(a, WA[j], LD, WM[('O',j,0)])
            sc2.pop(1)
            if (j,1) in RESO_L:
                k = RESO_L.index((j,1))
                lq2.wait([('O',k)])
                smf(a, WA[j], LD+4, ROr[k % 2])
                if k + 2 < 5:
                    d = ROr[k % 2]
                    sc2.fill(f"ds_read_b128 {vr(d,4)}, v{vResO} offset:{(k+2)*8192}", ('O',k+2))
                    sc2.fill(f"ds_read_b128 {vr(d+4,4)}, v{vResO} offset:{(k+2)*8192+1024}", ('O',k+2))
            else:
                smf(a, WA[j], LD+4, WM[('O',j,1)])
            sc2.pop(1)
            if j >= 2: post_(j - 2)
        sc2.flush()
        post_(7); sc2.flush()
        a("s_nop 1")
        post_(8); sc2.flush()
        for _ in range(ADDW): a('s_nop 15')
        cyc(a, 56); ev(a, 5)
        a(f"s_cmp_eq_u32 s{sRT}, -1\ns_cbranch_scc1 {lb('L_nonred')}")
        a(f"ds_read_b128 v[68:71], v{vHi} offset:{SEL-HB}\ns_add_u32 s{sT1}, s{sRd}, 4096")
        if not EARLY: book_salu(a)
        if SIMPLEW:
            a(f"s_cmp_lt_u32 s{sRT}, {LATE}\ns_cbranch_scc1 {lb('L_poll1')}\ns_waitcnt vmcnt({N2})")
        else:
            a(f"s_waitcnt vmcnt({NE})\ns_cmp_lt_u32 s{sRT}, 16\ns_cbranch_scc1 {lb('L_poll1')}\ns_waitcnt vmcnt({N2})\ns_cmp_lt_u32 s{sRT}, {LATE}\ns_cbranch_scc1 {lb('L_poll1')}\ns_waitcnt vmcnt(0)")
        a.lab(lb("L_poll1"))
        loads1()
        if EARLY: book_salu(a)
        a(f"s_add_u32 s5, s{sMemOff}, {CH_MEM}\ns_add_u32 s6, s5, {2*CS}\ns_xor_b32 s4, s{sMemOff}, 0x20000\ns_add_u32 s{sRm0}, s4, {CH_MEM}\ns_add_u32 s{sRm1}, s{sRm0}, {2*CS}")
        zero(a, ACC, 16)
        a(f"v_mov_b32 v{vT+1}, -1")
        a("s_waitcnt lgkmcnt(0)")
        a.lab(lb("L_w1"))
        for j in range(8):
            b = RL + 4*j
            a(f"s_waitcnt vmcnt({7-j})")
            a(f"v_mfma_f32_16x16x32_bf16 v[64:67], {vr(b,4)}, v[68:71], " + ("0" if j == 0 else "v[64:67]"))
            if j == 2: a(f"v_max3_u32 v{vT}, v{RL}, v{RL+4}, v{RL+8}")
            if j == 4: a(f"v_max3_u32 v{vT}, v{RL+12}, v{RL+16}, v{vT}")
            if j == 6: a(f"v_max3_u32 v{vT}, v{RL+20}, v{RL+24}, v{vT}")
        a(f"v_max_u32 v{vT}, v{vT}, v{RL+28}\nv_cmp_eq_u32 vcc, -1, v{vT}\ns_cbranch_vccnz {lb('L_retry1')}")
        ev(a, 6, 31)
        a(f"""
        s_xor_b32 s{sRd}, s{sRd}, s{sRdX}
        s_nop 3
        v_cvt_pk_bf16_f32 v64, v64, v65
        v_cvt_pk_bf16_f32 v65, v66, v67
        buffer_store_dwordx2 v[64:65], v{vMst}, {WSR}, s5 offen{sfx}
        buffer_store_dwordx2 v[64:65], v{vMst}, {WSR}, s6 offen{sfx}
        """)
        a(f"buffer_store_dword v{vT+1}, v{vMst}, {WSR}, s{sRm0} offen{sfx}\nbuffer_store_dword v{vT+1}, v{vMst}, {WSR}, s{sRm1} offen{sfx}")
        a(f"buffer_load_dwordx4 {vr(AS,4)}, v{vL16}, {WSR}, s{sM0} offen sc1")
        for x in range(2):
            for ins in rq(0, x): a(ins)
        zero(a, ACC+16, 8)
        a(f"s_branch {lb('L_common')}")
        a.lab(lb("L_nonred"))
        book_salu(a)
        a.lab(lb("L_book"))
        zero(a, ACC, 24)
        for x in range(2):
            for ins in rq(0, x): a(ins)
        a(f"buffer_load_dwordx4 {vr(AS,4)}, v{vL16}, {WSR}, s{sM0} offen sc1")
        a(f"s_branch {lb('L_common')}")
        def ool_r1():
            a.lab(lb("L_retry1"))
            if Cfg.STAMPS: a("s_add_u32 s61, s61, 1")
            spin_check(a)
            loads1()
            a(f"s_branch {lb('L_w1')}")
        ool.append(ool_r1)
    emit(False)
    emit(True)
    for f in ool: f()

SKIPMAX = True
SIMPLEW = False
KXEARLY = False
sThr = 83
BACKOFF = 0
DELAY0 = 0
XP = {}
EARLY = True
CODEPF = True
ADDQ = 0
ADDW = 0
SKIPSM = False
PF2 = False
PROBE = False
PERLOAD = False
NE = 9
N2 = 4
LATE = 20
def chain(a):
    chain_init(a)
    chain_state_init(a)
    a(f"s_cmp_lg_u32 s{sMode}, 0\ns_cbranch_scc1 L_book_s\ns_branch L_book_f")
    chain_loop(a, False)
    chain_loop(a, True)
    a.lab("L_chain_last")
    a(f"""
    s_waitcnt vmcnt(0)
    s_barrier
    v_sub_u32 v{vT}, 0, v{vL16}
    v_mov_b32 v{vT+1}, 64
    buffer_store_dword v{vT+1}, v{vT}, {WSR}, s{sProg} offen sc1
    """)
    stamp(a, 3, 12, 13)
    cyc_out(a, 16, ACCS+[S_SPIN], 12, 13)
    ev_dump(a, 10)
    a("s_waitcnt vmcnt(0)")
```

```python
from common import *

sGrp=68; sSl=69; sSeg=70; sAoff=71; sT0=72; sT1=73; sT2=74
vL16=2; vTrA=3
vDm=6; vRed=7; vOutOff=8; vGoff=9
ACC2=12
LAND=36
TMP=76
def B2(ks, nt, KS):
    i = (ks*3+nt)*4
    return 256+i if i < 256 else (512 - KS*12) + (i-256)

def w2_consts(a):
    a(f"""
    v_lshlrev_b32 v{vL16}, 4, v0
    v_lshrrev_b32 v12, 3, v0
    v_and_b32 v13, 7, v0
    v_bfe_u32 v14, v0, 4, 2
    v_lshlrev_b32 v14, 1, v14
    v_xor_b32 v13, v13, v14
    v_lshlrev_b32 v13, 4, v13
    s_movk_i32 s4, 1152
    v_mul_lo_u32 v12, v12, s4
    v_add_u32 v{vDm}, v12, v13
    v_lshrrev_b32 v12, 2, v0          ; 4g + r  (= l>>2)
    v_bfe_u32 v13, v12, 1, 2
    v_lshlrev_b32 v13, 1, v13         ; swz
    v_lshlrev_b32 v12, 7, v12
    v_and_b32 v14, 1, v0
    v_lshlrev_b32 v14, 3, v14
    v_add_u32 v12, v12, v14
    s_mul_i32 s4, s3, 40960
    v_add_u32 v12, s4, v12
    v_bfe_u32 v14, v0, 1, 1
    """)
    for nt in range(3):
        a(f"""
        v_add_u32 v15, {2*nt}, v14
        v_xor_b32 v15, v15, v13
        v_lshlrev_b32 v15, 4, v15
        v_add_u32 v{vTrA+nt}, v12, v15
        """)

def w2_bload(a, KS, wptr, nrows):
    a(f"s_mul_i32 s13, s{sSl}, 96")
    srd(a, SB0, P[wptr], nrows*1152, add="s13")
    a(f"s_sub_u32 s{SB0+2}, s{SB0+2}, s13")
    NU = KS // 2
    NS = 5
    a(f"s_mul_i32 s12, s3, {KS*32*1152}")
    a(f"s_mul_i32 s11, s3, 40960")
    def issue(u):
        for jj in range(8):
            a(f"s_add_u32 m0, s11, {(u % NS)*8192 + jj*1024}")
            a(f"s_add_u32 s4, s12, {(64*u + 8*jj)*1152}")
            a(f"buffer_load_dwordx4 v{vDm}, s[{SB0}:{SB0+3}], s4 offen lds")
    for u in range(min(NS, NU)): issue(u)
    for u in range(NU):
        issued = min(u + NS - 1, NU - 1)
        a(f"s_waitcnt vmcnt({(issued - u)*8})")
        for k2 in range(2):
            ks = 2*u + k2
            for nt in range(3):
                b = B2(ks, nt, KS)
                for x in range(2):
                    a(f"ds_read_b64_tr_b16 {R(b+2*x,2)}, v{vTrA+nt} offset:{(u % NS)*8192 + (32*k2+16*x)*128}")
        a("s_waitcnt lgkmcnt(0)")
        if u + NS < NU: issue(u + NS)

RED = 0
def w2_gemm(a, KS, abase, segstride, D=5):
    a(f"""
    s_mul_i32 s{sAoff}, s{sSeg}, {segstride}
    s_mul_i32 s4, s3, {KS*2048}
    s_add_u32 s{sAoff}, s{sAoff}, s4
    s_add_u32 s{sAoff}, s{sAoff}, {abase}
    """)
    def aload(ks):
        buf = LAND + (ks % D)*8
        a(f"s_add_u32 s{sT0}, s{sAoff}, {ks*2048}")
        a(f"buffer_load_dwordx4 {vr(buf,4)}, v{vL16}, s[{SWS}:{SWS+3}], s{sT0} offen sc1")
        a(f"buffer_load_dwordx4 {vr(buf+4,4)}, v{vL16}, s[{SWS}:{SWS+3}], s{sT0} offen offset:1024 sc1")
    for ks in range(D - 1): aload(ks)
    for ks in range(KS):
        if ks + D - 1 < KS:
            aload(ks + D - 1)
            a(f"s_waitcnt vmcnt({2*(D-1)})")
        else:
            a(f"s_waitcnt vmcnt({2*(KS-1-ks)})")
        buf = LAND + (ks % D)*8
        for tt in range(2):
            for nt in range(3):
                acc = ACC2 + (tt*3+nt)*4
                c = "0" if ks == 0 else vr(acc,4)
                a(f"v_mfma_f32_16x16x32_bf16 {vr(acc,4)}, {R(B2(ks,nt,KS),4)}, {vr(buf+4*tt,4)}, {c}")
    a(f"s_mul_i32 s4, s3, 6144\nv_add_u32 v{vRed}, s4, v{vL16}")
    a.nop(8)
    for t in range(6):
        a(f"ds_write_b128 v{vRed}, {vr(ACC2+4*t,4)} offset:{RED + t*1024}")
    a("s_waitcnt lgkmcnt(0)\ns_barrier")
    a(f"s_lshl_b32 s4, s3, 10\nv_add_u32 v{vRed}, s4, v{vL16}")
    for p in range(4):
        a(f"ds_read_b128 {vr(LAND+4*p,4)}, v{vRed} offset:{RED + p*6144}")
    for p in range(4):
        a(f"ds_read_b128 {vr(LAND+16+4*p,4)}, v{vRed} offset:{RED + p*6144 + 4096}")
    a("s_waitcnt lgkmcnt(0)")
    for half in range(2):
        b = LAND + 16*half
        for r in range(4):
            a(f"v_add_f32 v{b+r}, v{b+r}, v{b+4+r}")
            a(f"v_add_f32 v{b+8+r}, v{b+8+r}, v{b+12+r}")
        for r in range(4):
            a(f"v_add_f32 v{ACC2+4*half+r}, v{b+r}, v{b+8+r}")
    a("s_barrier")

def ffn2_phase(a):
    w2_consts(a)
    w2_bload(a, 36, 'Wd', 4608)
    stamp(a, 3)
    a(f"s_mov_b32 s{sSeg}, s{sGrp}")
    a.lab("L_ffn2_loop")
    a(f"s_lshr_b32 s5, s{sSeg}, 1\ns_lshl_b32 s5, s5, 7\ns_add_u32 s{sT1}, s5, {F_H}")
    wg_wait_flag(a, sT1, 36)
    w2_gemm(a, 36, WS_H, 144*2048)
    a(f"""
    s_mul_i32 s4, s{sSeg}, 12
    s_add_u32 s4, s4, s{sSl}
    s_mul_i32 s4, s4, 6144
    s_lshl_b32 s5, s3, 10
    s_add_u32 s4, s4, s5
    s_add_u32 s{sT1}, s4, {WS_BB}
    buffer_store_dwordx4 {vr(ACC2,4)}, v{vL16}, s[{SWS}:{SWS+3}], s{sT1} offen sc1
    s_cmp_ge_u32 s3, 2
    s_cbranch_scc1 L_ffn2_ns
    s_add_u32 s{sT1}, s{sT1}, 4096
    buffer_store_dwordx4 {vr(ACC2+4,4)}, v{vL16}, s[{SWS}:{SWS+3}], s{sT1} offen sc1
    L_ffn2_ns:
    s_add_u32 s{sSeg}, s{sSeg}, 18
    s_cmp_lt_u32 s{sSeg}, 64
    s_cbranch_scc1 L_ffn2_loop
    s_waitcnt vmcnt(0)
    s_barrier
    """)

tQ=12
tK=44
tS=76
tKM=100
tVM=116
tT=124
C1 = (128 ** -0.5) * 1.4426950408889634
def t4_task(a, Ldone):
    sF=sT1
    a(f"""
    s_lshr_b32 s5, s{sSeg}, 1
    s_lshl_b32 s5, s5, 7
    s_add_u32 s{sF}, s5, {F_KV}
    """)
    wave_wait_flag(a, sF, 32, vt=tT)
    a(f"s_add_u32 s{sF}, s5, {F_Q}")
    wave_wait_flag(a, sF, 16, vt=tT)
    a(f"""
    s_lshl_b32 s4, s{sSeg}, 5
    s_add_u32 s4, s4, s15             ; s*32+h
    s_lshl_b32 s{sT0}, s4, 13         ; *8192
    s_add_u32 s{sT2}, s{sT0}, {WS_QX}
    """)
    for i in range(8):
        if i == 4: a(f"s_add_u32 s{sT2}, s{sT2}, 4096")
        a(f"buffer_load_dwordx4 {vr(tQ+4*i,4)}, v{vL16}, s[{SWS}:{SWS+3}], s{sT2} offen offset:{(i%4)*1024} sc1")
    a(f"s_add_u32 s{sT2}, s{sT0}, {WS_KX}")
    for i in range(8):
        if i == 4: a(f"s_add_u32 s{sT2}, s{sT2}, 4096")
        a(f"buffer_load_dwordx4 {vr(tK+4*i,4)}, v{vL16}, s[{SWS}:{SWS+3}], s{sT2} offen offset:{(i%4)*1024} sc1")
    a("s_waitcnt vmcnt(0)")
    for t in range(2):
        for tt in range(2):
            if t > tt: continue
            d = tS + ((1+t)*2+tt)*4
            for ks in range(4):
                c = "0" if ks == 0 else vr(d,4)
                a(f"v_mfma_f32_16x16x32_bf16 {vr(d,4)}, {vr(tK+(t*4+ks)*4,4)}, {vr(tQ+(tt*4+ks)*4,4)}, {c}")
    a(f"s_nop 7\ns_add_u32 s{sT2}, s{sT0}, {WS_VX}")
    for i in range(8):
        if i == 4: a(f"s_add_u32 s{sT2}, s{sT2}, 4096")
        a(f"buffer_load_dwordx4 {vr(tK+4*i,4)}, v{vL16}, s[{SWS}:{SWS+3}], s{sT2} offen offset:{(i%4)*1024} sc1")
    a(f"s_lshl_b32 s5, s15, 7\ns_add_u32 s{sF}, s5, {F_PROG}\ns_add_u32 s7, s{sSeg}, 1\nv_mov_b32 v{tT}, 0")
    Lw = a.uniq("L_pg"); Ld = a.uniq("L_pgd"); Ls = a.uniq("L_pgs")
    a.lab(Lw)
    a(f"buffer_load_dword v{tKM}, v{tT}, s[{SWS}:{SWS+3}], s{sF} offen sc1\ns_waitcnt vmcnt(0)")
    a(f"v_readfirstlane_b32 s4, v{tKM}\ns_nop 1")
    a(f"s_cmp_ge_u32 s4, s7\ns_cbranch_scc1 {Ld}")
    spin_check(a)
    a(f"s_sub_u32 s4, s7, s4\ns_cmp_le_u32 s4, 2\ns_cbranch_scc1 {Ls}\ns_sleep 48\ns_branch {Lw}")
    a.lab(Ls)
    a(f"s_sleep 1\ns_branch {Lw}")
    a.lab(Ld)
    stamp(a, 8, vd=tT, vz=tT+1)
    a(f"""
    s_lshl_b32 s4, s{sSeg}, 5
    s_add_u32 s4, s4, s15
    s_lshl_b32 s5, s4, 12
    s_add_u32 s{sT2}, s5, {WS_KM}
    """)
    for w_ in range(4):
        a(f"buffer_load_dwordx4 {vr(tKM+4*w_,4)}, v{vL16}, s[{SWS}:{SWS+3}], s{sT2} offen offset:{w_*1024} sc1")
    a(f"""
    s_lshl_b32 s5, s3, 12
    s_add_u32 s5, s5, 32768
    v_and_b32 v{tT}, 15, v0
    v_lshlrev_b32 v{tT}, 5, v{tT}
    v_lshrrev_b32 v{tT+1}, 4, v0
    v_lshlrev_b32 v{tT+1}, 3, v{tT+1}
    v_add3_u32 v{tT}, v{tT}, v{tT+1}, s5
    v_lshrrev_b32 v{tT+1}, 2, v0
    v_lshlrev_b32 v{tT+1}, 5, v{tT+1}
    v_and_b32 v{tT+2}, 3, v0
    v_lshlrev_b32 v{tT+2}, 3, v{tT+2}
    v_add3_u32 v{tT+1}, v{tT+1}, v{tT+2}, s5
    s_waitcnt vmcnt(0)
    """)
    for et in range(8): a(f"v_mov_b32 v{tVM+et}, v{tKM + 4*(et>>1) + 2*(et&1) + 1}")
    for w_ in range(4):
        a(f"ds_write_b64 v{tT}, {vr(tKM+4*w_,2)} offset:{w_*1024}\nds_write_b64 v{tT}, {vr(tKM+4*w_+2,2)} offset:{w_*1024+512}")
    a("s_waitcnt lgkmcnt(0)")
    for ks in range(4):
        for x2 in range(2):
            a(f"ds_read_b64_tr_b16 {vr(tKM+4*ks+2*x2,2)}, v{tT+1} offset:{(32*ks+16*x2)*32}")
    a("s_waitcnt lgkmcnt(0)")
    for tt in range(2):
        d = tS + tt*4
        for ks in range(4):
            c = "0" if ks == 0 else vr(d,4)
            a(f"v_mfma_f32_16x16x32_bf16 {vr(d,4)}, {vr(tKM+ks*4,4)}, {vr(tQ+(tt*4+ks)*4,4)}, {c}")
    a.nop(8)
    a(f"""
    v_lshrrev_b32 v{tT}, 4, v0
    v_lshlrev_b32 v{tT}, 2, v{tT}
    v_and_b32 v{tT+1}, 15, v0
    v_sub_u32 v{tT}, v{tT}, v{tT+1}
    v_mov_b32 v{tT+1}, 0xff800000
    """)
    for tt in range(2):
        d = tS + ((1+tt)*2+tt)*4
        for r in range(4):
            a(f"v_cmp_lt_i32 vcc, {-r}, v{tT}\ns_nop 1\nv_cndmask_b32 v{d+r}, v{d+r}, v{tT+1}, vcc")
    a(f"s_mov_b32 s6, {fb(C1)}")
    for tt in range(2):
        sm = tS + tt*4; s1 = tS + (2+tt)*4; s2 = tS + (4+tt)*4
        vals = [sm, sm+1, s1, s1+1, s1+2, s1+3] + ([s2, s2+1, s2+2, s2+3] if tt == 1 else [])
        mx = tT; t2 = tT+1
        a(f"v_max3_f32 v{mx}, v{vals[0]}, v{vals[1]}, v{vals[2]}")
        rest = vals[3:]
        while len(rest) >= 2:
            a(f"v_max3_f32 v{mx}, v{mx}, v{rest[0]}, v{rest[1]}"); rest = rest[2:]
        if rest: a(f"v_max_f32 v{mx}, v{mx}, v{rest[0]}")
        for sw in ("v_permlane16_swap_b32", "v_permlane32_swap_b32"):
            a(f"v_mov_b32 v{t2}, v{mx}\ns_nop 1\n{sw} v{mx}, v{t2}\ns_nop 1\nv_max_f32 v{mx}, v{mx}, v{t2}")
        a(f"v_mul_f32 v{mx}, s6, v{mx}")
        for v in vals: a(f"v_fma_f32 v{v}, v{v}, s6, -v{mx}")
        for v in vals: a(f"v_exp_f32 v{v}, v{v}")
        a("s_nop 0")
        p = tQ + tt*8
        a(f"v_cvt_pk_bf16_f32 v{p}, v{sm}, v{sm+1}\nv_mov_b32 v{p+1}, 0")
        a(f"v_cvt_pk_bf16_f32 v{p+4}, v{s1}, v{s1+1}\nv_cvt_pk_bf16_f32 v{p+5}, v{s1+2}, v{s1+3}")
        if tt == 1:
            a(f"v_cvt_pk_bf16_f32 v{p+6}, v{s2}, v{s2+1}\nv_cvt_pk_bf16_f32 v{p+7}, v{s2+2}, v{s2+3}")
        else:
            a(f"v_mov_b32 v{p+6}, 0\nv_mov_b32 v{p+7}, 0")
    for j in range(4): a(f"v_mov_b32 v{tKM+j}, 0x3f803f80")
    a("s_waitcnt vmcnt(0)")
    for et in range(8):
        a(f"v_mov_b32 v{tQ+16+2*et}, v{tVM+et}\nv_mov_b32 v{tQ+17+2*et}, 0")
    a("s_nop 1")
    a(f"""
    s_lshl_b32 s4, s{sSeg}, 7          ; s*128
    s_lshl_b32 s5, s15, 2              ; h*4
    s_add_u32 s4, s4, s5
    s_lshl_b32 s4, s4, 11              ; *2048
    s_add_u32 s{sT2}, s4, {WS_OX}
    """)
    for tt in range(2):
        p = tQ + tt*8
        lreg = tKM + 4
        a(f"v_mfma_f32_16x16x32_bf16 {vr(lreg,4)}, {vr(tKM,4)}, {vr(p+4,4)}, 0")
        for half in range(2):
            for e4 in range(4):
                et = 4*half + e4
                d = tS + 4*e4
                a(f"v_mfma_f32_16x16x32_bf16 {vr(d,4)}, {vr(tK+4*et,4)}, {vr(p+4,4)}, 0")
            if half == 0:
                a(f"v_mfma_f32_16x16x16_bf16 {vr(lreg,4)}, {vr(tKM,2)}, {vr(p,2)}, {vr(lreg,4)}")
            for e4 in range(4):
                et = 4*half + e4
                d = tS + 4*e4
                a(f"v_mfma_f32_16x16x16_bf16 {vr(d,4)}, {vr(tQ+16+2*et,2)}, {vr(p,2)}, {vr(d,4)}")
            a.nop(8)
            if half == 0:
                a(f"v_rcp_f32 v{tT}, v{lreg}\ns_nop 0")
            for j in range(16): a(f"v_mul_f32 v{tS+j}, v{tS+j}, v{tT}")
            for k2 in range(2):
                d = tS + 16 + 4*k2
                s = tS + 8*k2
                for j in range(4): a(f"v_cvt_pk_bf16_f32 v{d+j}, v{s+2*j}, v{s+2*j+1}")
                ksp = 2*half + k2
                off = ksp*2048 + tt*1024
                if off >= 4096:
                    a(f"s_add_u32 s{sT1}, s{sT2}, {off & ~4095}")
                    a(f"buffer_store_dwordx4 {vr(d,4)}, v{vL16}, s[{SWS}:{SWS+3}], s{sT1} offen offset:{off & 4095} sc1")
                else:
                    a(f"buffer_store_dwordx4 {vr(d,4)}, v{vL16}, s[{SWS}:{SWS+3}], s{sT2} offen offset:{off} sc1")
            a("s_nop 1")
    a("s_waitcnt vmcnt(0)")
    a(f"s_lshl_b32 s5, s{sSeg}, 7\ns_add_u32 s{sT1}, s5, {F_O}")
    wave_signal(a, sT1, tmp=tT)

def t5_phase(a):
    w2_consts(a)
    w2_bload(a, 32, 'Wo', 4096)
    stamp(a, 5)
    srd(a, SOUT, P['out'], 2048*1152)
    a("s_barrier")
    wg_wait_flag(a, str(F_G), 8)
    a(f"s_mov_b32 s{sSeg}, s{sGrp}")
    a.lab("L_t5_loop")
    a(f"""
    s_lshl_b32 s15, s{sSl}, 2
    s_add_u32 s15, s15, s3
    s_cmp_ge_u32 s15, 32
    s_cbranch_scc1 L_t4_skip
    """)
    t4_task(a, None)
    a.lab("L_t4_skip")
    stamp(a, 9, vd=76, vz=77)
    a(f"s_lshl_b32 s5, s{sSeg}, 7\ns_add_u32 s{sT1}, s5, {F_O}")
    wg_wait_flag(a, sT1, 32, vt=76)
    stamp(a, 10, vd=76, vz=77)
    w2_gemm(a, 32, WS_OX, 128*2048, D=11)
    stamp(a, 11, vd=76, vz=77)
    for which in range(2):
        Lsk = a.uniq("L_t5sk")
        if which == 1: a(f"s_cmp_ge_u32 s3, 2\ns_cbranch_scc1 {Lsk}")
        a(f"""
        s_add_u32 s5, s3, {4*which}        ; tile
        s_cmp_ge_u32 s5, 3
        s_cselect_b32 s6, 1, 0             ; tt
        s_mul_i32 s7, s6, 3
        s_sub_u32 s7, s5, s7               ; nt
        s_mul_i32 s4, s{sSeg}, 12
        s_add_u32 s4, s4, s{sSl}
        s_mul_i32 s4, s4, 6144
        s_lshl_b32 s9, s5, 10
        s_add_u32 s4, s4, s9
        s_add_u32 s{sT1}, s4, {WS_BB}
        buffer_load_dwordx4 {vr(LAND,4)}, v{vL16}, s[{SWS}:{SWS+3}], s{sT1} offen sc1
        s_lshl_b32 s4, s{sSeg}, 5
        s_lshl_b32 s9, s6, 4
        s_add_u32 s4, s4, s9
        s_lshl_b32 s9, s4, 2
        s_add_u32 s{sT2}, s9, {WS_G}
        v_and_b32 v{TMP}, 15, v0
        v_lshlrev_b32 v{TMP+1}, 2, v{TMP}
        buffer_load_dword v{TMP+2}, v{TMP+1}, s[{SWS}:{SWS+3}], s{sT2} offen sc1
        s_movk_i32 s9, 1152
        v_mul_lo_u32 v{TMP}, v{TMP}, s9
        v_lshrrev_b32 v{TMP+1}, 4, v0
        v_lshlrev_b32 v{TMP+1}, 3, v{TMP+1}   ; 4g*2 bytes
        v_add_u32 v{TMP}, v{TMP}, v{TMP+1}
        s_mul_i32 s4, s4, 1152
        s_mul_i32 s9, s{sSl}, 96
        s_add_u32 s4, s4, s9
        s_lshl_b32 s9, s7, 5
        s_add_u32 s{sT1}, s4, s9
        s_waitcnt vmcnt(0)
        """)
        ac = ACC2 + 4*which
        for r in range(4):
            a(f"v_sub_f32 v{ac+r}, v{ac+r}, v{LAND+r}\nv_fma_f32 v{ac+r}, v{ac+r}, v{TMP+2}, v{LAND+r}")
        a(f"v_cvt_pk_bf16_f32 v{ac}, v{ac}, v{ac+1}\nv_cvt_pk_bf16_f32 v{ac+1}, v{ac+2}, v{ac+3}")
        a(f"buffer_store_dwordx2 {vr(ac,2)}, v{TMP}, s[{SOUT}:{SOUT+3}], s{sT1} offen sc1")
        if which == 1: a.lab(Lsk)
    a(f"""
    s_add_u32 s{sSeg}, s{sSeg}, 18
    s_cmp_lt_u32 s{sSeg}, 64
    s_cbranch_scc1 L_t5_loop
    """)

def gate_task(a):
    srd(a, SA, P['x'], 2048*1152)
    a(f"""
    s_lshl_b32 s4, s15, 8
    s_lshl_b32 s5, s3, 6
    s_add_u32 s12, s4, s5
    v_add_u32 v2, s12, v0
    s_movk_i32 s4, 1152
    v_mul_lo_u32 v3, v2, s4
    v_mov_b32 v4, 0
    v_mov_b32 v7, 0
    """)
    for grp in range(9):
        a(f"s_load_dwordx16 s[68:83], s[{P['gw']}:{P['gw']+1}], {grp*128}\ns_load_dwordx16 s[84:99], s[{P['gw']}:{P['gw']+1}], {grp*128+64}")
        for c in range(8):
            a(f"buffer_load_dwordx4 {vr(8+4*c,4)}, v3, s[{SA}:{SA+3}], 0 offen offset:{grp*128 + c*16}")
        a("s_waitcnt vmcnt(0) lgkmcnt(0)")
        for c in range(8):
            for j in range(4):
                sg = 68+4*c+j; vx = 8+4*c+j
                a(f"s_lshl_b32 s4, s{sg}, 16\ns_and_b32 s5, s{sg}, 0xffff0000")
                a(f"v_lshlrev_b32 v5, 16, v{vx}\nv_and_b32 v6, 0xffff0000, v{vx}")
                a(f"v_fma_f32 v4, v5, s4, v4\nv_fma_f32 v7, v6, s5, v7")
    a("v_add_f32 v4, v4, v7")
    a(f"""
    v_mul_f32 v4, {fb(-1.4426950408889634)}, v4
    v_exp_f32 v4, v4
    s_nop 0
    v_add_f32 v4, 1.0, v4
    v_rcp_f32 v4, v4
    v_lshlrev_b32 v2, 2, v2
    s_mov_b32 s4, {WS_G}
    s_nop 0
    buffer_store_dword v4, v2, s[{SWS}:{SWS+3}], s4 offen sc1
    s_waitcnt vmcnt(0)
    s_barrier
    """)
    signal_flag(a, str(F_G))
```

```python
import sys
from asmlib import *
from layout import *
from common import *
import w1, w2, chain
from w1 import *

NAME = "gated_mix__memory_aug_recurrent_mem_tr__glu_gated_geglu__prompt"
HDR = open("cdna_kernels/%s.s.ref" % NAME).read().split("; @launch")[0].split("; Override launch")[0]

def workers(a):
    a("""
    s_lshr_b32 s15, s2, 3            ; b>>3
    s_and_b32 s4, s2, 7
    s_sub_u32 s4, s4, 1
    s_lshl_b32 s14, s4, 5
    s_add_u32 s14, s14, s15
    """)
    stamp(a, 0)
    if getattr(Cfg,'WSPIN',False):
        a('s_mov_b32 s70, 0\nL_wspin:\ns_sleep 32\ns_add_u32 s70, s70, 1\ns_cmp_lt_u32 s70, 160\ns_cbranch_scc1 L_wspin\ns_branch L_exit')
    w1_phase(a)
    stamp(a, 2)
    if getattr(Cfg,'W1ONLY',False): a('s_branch L_exit')
    a(f"""
    s_cmp_ge_u32 s14, 216
    s_cbranch_scc1 L_gate
    s_mul_hi_u32 s{w2.sGrp}, s14, 0x15555556      ; wid/12
    s_mul_i32 s4, s{w2.sGrp}, 12
    s_sub_u32 s{w2.sSl}, s14, s4
    """)
    w2.ffn2_phase(a)
    stamp(a, 4)
    w2.t5_phase(a)
    stamp(a, 6)
    a("s_branch L_exit")
    a.lab("L_gate")
    a("s_sub_u32 s15, s14, 216")
    w2.gate_task(a)

def build(parts):
    a = A()
    prologue(a)
    a("s_and_b32 s4, s2, 7\ns_cmp_eq_u32 s4, 0\ns_cbranch_scc1 L_chain")
    if Cfg.NOCOMM or getattr(Cfg,'WEXIT',False): a('s_branch L_exit')
    workers(a)
    a("s_branch L_exit")
    a.lab("L_chain")
    chain.chain(a)
    a.lab("L_exit")
    body = a.text()
    if Cfg.NOCOMM:
        import re
        body = re.sub(r's_cbranch_vccnz (L_\w+)', r's_nop 0', body)
    txt = HDR + f"""; @launch grid=(256,1,1) block=(256,1,1) lds=163840
.amdgcn_target "amdgcn-amd-amdhsa--gfx950"
.text
.globl {NAME}_kernel
.p2align 8
.type {NAME}_kernel,@function
{NAME}_kernel:
{body}  s_endpgm
.section .rodata,"a"
.p2align 6
.amdhsa_kernel {NAME}_kernel
  .amdhsa_next_free_vgpr 512
  .amdhsa_next_free_sgpr 102
  .amdhsa_accum_offset 256
  .amdhsa_group_segment_fixed_size 0
  .amdhsa_kernarg_size 120
  .amdhsa_user_sgpr_count 2
  .amdhsa_user_sgpr_kernarg_segment_ptr 1
  .amdhsa_system_sgpr_workgroup_id_x 1
.end_amdhsa_kernel
"""
    return txt

if __name__ == "__main__":
    if "stamps" in sys.argv: Cfg.STAMPS = True
    if "trace" in sys.argv: Cfg.TRACE = True
    if "nocomm" in sys.argv: Cfg.NOCOMM = True
    for a_ in sys.argv:
        if a_.startswith("late="): chain.LATE = int(a_[5:])
        if a_.startswith("backoff="): chain.BACKOFF = int(a_[8:])
        if a_.startswith("ne="): chain.NE = int(a_[3:])
        if a_.startswith("perload="): chain.PERLOAD = bool(int(a_[8:]))
        if a_.startswith("probe="): chain.PROBE = bool(int(a_[6:]))
        if a_.startswith("n2="): chain.N2 = int(a_[3:])
        if a_.startswith("pf2="): chain.PF2 = bool(int(a_[4:]))
        if a_.startswith("vspace="): chain.VSPACE = int(a_[7:])
        if a_.startswith("addq="): chain.ADDQ = int(a_[5:])
        if a_.startswith("addw="): chain.ADDW = int(a_[5:])
        if a_.startswith("skipsm="): chain.SKIPSM = True
        if a_.startswith("vs2="): chain.VSPACE2 = int(a_[4:])
        if a_.startswith("early="): chain.EARLY = bool(int(a_[6:]))
        if a_.startswith("xp="): chain.XP[a_[3:]] = True
        if a_.startswith("skipmax="): chain.SKIPMAX = bool(int(a_[8:]))
        if a_.startswith("kxearly="): chain.KXEARLY = bool(int(a_[8:]))
        if a_.startswith("simplew="): chain.SIMPLEW = bool(int(a_[8:]))
        if a_.startswith("probes="): chain.PROBES = True
        if a_.startswith("delay0="): chain.DELAY0 = int(a_[7:])
    if "nopub" in sys.argv: Cfg.NOPUB = True
    if "nopf" in sys.argv: Cfg.NOPF = True
    if "nocyc" in sys.argv: Cfg.CYC = False
    if "steplog" in sys.argv: Cfg.STEPLOG = True
    if "nokx" in sys.argv: Cfg.NOKX = True
    if "novx" in sys.argv: Cfg.NOVX = True
    if "nofl" in sys.argv: Cfg.NOFL = True
    if "wexit" in sys.argv: Cfg.WEXIT = True
    if "wspin" in sys.argv: Cfg.WSPIN = True; Cfg.NOWAIT = True
    if "w1only" in sys.argv: Cfg.W1ONLY = True
    if "slow" in sys.argv: Cfg.FORCE_SLOW = True
    out = sys.argv[1] if len(sys.argv) > 1 else "out.s"
    open(out, "w").write(build(None))
    print("wrote", out)
```

```python
from common import *

SLOT = 16384
RESO = 98304
MEMB = 139264
XQ   = MEMB + 9216
XO   = XQ + 4096
KXB  = XO + 2048
SEL  = KXB + 8192
assert SEL + 1024 == 163840
MEMSTRIDE = 65536
CS = 9472
OOB = 0x10000000
sH=68; sMode=69; sStep=70; sT0=71; sT1=72; sT2=73; sFirst=74; sRT=75; sHoff=76
sMask=84
sLo8=86
sC1=78
sRd=16; sRdX=17; sPst=18; sPstX=19; sMemOff=20; sM0=21; sM1=22; sM2=23; sKXo=24; sVXo=25; sPFo=26; sPub=27; sFlo=28; sProg=29; sW1k=30; sRa=41; sRb=42; sRm0=43; sRm1=31; sMB=77; sRaX=86; sRbX=87; sFlc=80; sReady=81; sPF2=82; sProgL=28
vFlag=0; vL16=1; vIdx=2; vResA=3; vResB=4; vResO=5; vTrX=6; vXQw=7; vXOw=8; vL4=9; vMst=10; vHi=11
vT=12
PB=16
AS=24
LD=32
ACC=48
HB=131072
WBASE=72
C1 = (128 ** -0.5) * 1.4426950408889634

RESQ_L = [('Q',0),('K',2),('V',3),('Q',5),('K',6),('V',8)]
RESO_L = [(1,1),(3,1),(5,1),(7,1),(8,1)]
def build_wmap():
    ops = []
    for c in range(9):
        for M in 'QKV':
            if (M,c) in RESQ_L: continue
            for x in range(2): ops.append((M,c,x))
    for j in range(9):
        for c2 in range(2):
            if (j,c2) in RESO_L: continue
            ops.append(('O',j,c2))
    assert len(ops) == 55, len(ops)
    return {o: WBASE + 8*i for i,o in enumerate(ops)}
WM = build_wmap()

def chain_init(a):
    a(f"""
    s_lshr_b32 s{sH}, s2, 3
    s_xor_b32 s{sH}, s{sH}, {XP.get('hx', 0) and 2 or 0}
    v_lshlrev_b32 v{vL16}, 4, v0
    v_lshlrev_b32 v{vL4}, 2, v0
    """)
    stamp(a, 0, 12, 13)
    if CODEPF2:
        Lc = a.uniq("L_cpf0")
        a(f"s_cmp_lg_u32 s3, 2\ns_cbranch_scc1 {Lc}")
        code_prefetch(a, "L_chain", 32768, vt=28)
        a.lab(Lc)
    a(f"""
    v_mov_b32 v12, 0
    v_mov_b32 v13, 0
    v_mov_b32 v14, 0
    v_mov_b32 v15, 0
    v_mov_b32 v16, -1
    v_mov_b32 v17, -1
    v_mov_b32 v18, -1
    v_mov_b32 v19, -1
    s_lshl_b32 s4, s3, 10
    v_add_u32 v20, s4, v{vL16}
    s_mul_i32 s5, s{sH}, 800
    v_cmp_gt_u32 vcc, 800, v20
    s_and_saveexec_b64 s[8:9], vcc
    s_cbranch_execz L_ci_nf
    buffer_store_dwordx4 v[12:15], v20, s[{SWS}:{SWS+3}], s5 offen sc1
    L_ci_nf:
    s_mov_b64 exec, s[8:9]
    s_mul_i32 s5, s{sH}, 18432
    s_add_u32 s5, s5, {CH_PART}
    """)
    for i in range(4):
        a(f"buffer_store_dwordx4 v[16:19], v20, s[{SWS}:{SWS+3}], s5 offen sc1\ns_add_u32 s5, s5, 4096")
    a(f"""
    v_cmp_gt_u32 vcc, 2048, v20
    s_and_saveexec_b64 s[8:9], vcc
    s_cbranch_execz L_ci_np
    buffer_store_dwordx4 v[16:19], v20, s[{SWS}:{SWS+3}], s5 offen sc1
    L_ci_np:
    s_mov_b64 exec, s[8:9]
    s_lshl_b32 s5, s{sH}, 2
    s_add_u32 s5, s5, s3                 ; wi = h*4+w
    s_cmp_ge_u32 s5, 108
    s_cbranch_scc1 L_ci_nm2
    s_mul_hi_u32 s6, s5, 0x1c71c71d      ; wi/9
    s_mul_i32 s7, s6, 9
    s_sub_u32 s7, s5, s7                 ; chunk
    s_lshr_b32 s5, s6, 2
    s_add_u32 s5, s5, 1                  ; idx
    s_lshl_b32 s5, s5, 16
    s_and_b32 s6, s6, 3
    s_mul_i32 s6, s6, {CS}
    s_add_u32 s5, s5, s6
    s_lshl_b32 s7, s7, 10
    s_add_u32 s5, s5, s7
    s_add_u32 s5, s5, {CH_MEM}
    buffer_store_dwordx4 v[16:19], v{vL16}, s[{SWS}:{SWS+3}], s5 offen sc1
    L_ci_nm2:
    """)
    srd(a, SA, P['mem0'], 8*1152)
    a(f"""
    s_cmp_ge_u32 s{sH}, 9
    s_cbranch_scc1 L_ci_m0e
    v_bfe_u32 v12, v0, 2, 2
    v_lshlrev_b32 v12, 1, v12
    v_and_b32 v13, 1, v0
    v_add_u32 v12, v12, v13
    s_movk_i32 s4, 1152
    v_mul_lo_u32 v12, v12, s4
    v_bfe_u32 v13, v0, 1, 1
    v_lshlrev_b32 v13, 6, v13
    v_add_u32 v12, v12, v13
    v_lshrrev_b32 v13, 5, v0
    v_lshlrev_b32 v13, 5, v13
    v_add_u32 v12, v12, v13
    v_bfe_u32 v13, v0, 4, 1
    v_lshlrev_b32 v13, 2, v13
    v_add_u32 v12, v12, v13
    s_lshl_b32 s4, s{sH}, 7
    """)
    for ea in range(8):
        off = (4*(ea&3) + (ea>>2))*2
        a(f"buffer_load_ushort v{32 + ea}, v12, s[{SA}:{SA+3}], s4 offen offset:{off}")
    a("s_waitcnt vmcnt(0)")
    for j in range(4): a(f"v_lshl_or_b32 v{24+j}, v{33+2*j}, 16, v{32+2*j}")
    a(f"""
    s_lshl_b32 s4, s{sH}, 10
    s_mul_i32 s5, s3, {CS}
    s_add_u32 s4, s4, s5
    s_add_u32 s4, s4, {CH_MEM}
    buffer_store_dwordx4 v[24:27], v{vL16}, s[{SWS}:{SWS+3}], s4 offen sc1
    s_nop 1
    L_ci_m0e:
    """)
    a(f"""
    v_lshrrev_b32 v12, 4, v0
    v_and_b32 v13, 1, v12
    s_lshr_b32 s4, s3, 1
    s_lshl_b32 s4, s4, 2
    v_or_b32 v13, s4, v13
    v_lshlrev_b32 v14, 1, v13
    v_and_b32 v21, 15, v0
    v_xor_b32 v22, v21, v14
    v_lshlrev_b32 v22, 4, v22
    v_lshlrev_b32 v12, 13, v12
    v_add_u32 v24, v12, v22
    v_xor_b32 v14, 4, v14
    v_xor_b32 v22, v21, v14
    v_lshlrev_b32 v22, 4, v22
    v_add_u32 v25, v12, v22
    v_lshrrev_b32 v12, 3, v0
    s_movk_i32 s4, 1152
    v_mul_lo_u32 v12, v12, s4
    v_lshrrev_b32 v13, 5, v0
    s_and_b32 s4, s3, 1
    s_lshl_b32 s4, s4, 1
    v_or_b32 v13, s4, v13
    v_lshlrev_b32 v13, 1, v13
    v_and_b32 v21, 7, v0
    v_xor_b32 v21, v21, v13
    v_lshlrev_b32 v21, 4, v21
    v_add_u32 v26, v12, v21
    v_lshrrev_b32 v12, 4, v0            ; gb
    v_bfe_u32 v13, v0, 2, 2             ; r
    v_lshrrev_b32 v14, 1, v13
    v_lshlrev_b32 v14, 5, v14
    v_and_b32 v21, 1, v13
    v_lshlrev_b32 v21, 2, v21
    v_add3_u32 v14, v14, v21, v12
    v_lshlrev_b32 v14, 8, v14
    v_and_b32 v21, 1, v0
    v_lshlrev_b32 v21, 3, v21
    v_add_u32 v14, v14, v21
    v_and_b32 v21, 1, v12
    v_lshlrev_b32 v21, 1, v21
    v_lshlrev_b32 v22, 2, v13
    v_add_u32 v21, v21, v22
    v_bfe_u32 v22, v0, 1, 1
    s_lshl_b32 s4, s3, 2
    v_add_u32 v22, s4, v22
    v_xor_b32 v23, v22, v21
    v_lshlrev_b32 v23, 4, v23
    v_add_u32 v28, v14, v23
    v_add_u32 v22, 2, v22
    v_xor_b32 v23, v22, v21
    v_lshlrev_b32 v23, 4, v23
    v_add_u32 v29, v14, v23
    v_lshrrev_b32 v14, 1, v13
    v_lshlrev_b32 v21, 5, v14
    v_lshrrev_b32 v22, 1, v12
    v_lshlrev_b32 v22, 3, v22
    v_add_u32 v21, v21, v22
    v_and_b32 v22, 1, v12
    v_lshlrev_b32 v23, 2, v22
    v_add_u32 v21, v21, v23
    v_and_b32 v23, 1, v13
    v_add_u32 v21, v21, v23
    v_lshlrev_b32 v21, 7, v21
    v_lshlrev_b32 v14, 1, v14
    v_or_b32 v22, v22, v14
    v_lshlrev_b32 v22, 1, v22
    v_bfe_u32 v23, v0, 1, 1
    s_lshl_b32 s4, s3, 1
    v_add_u32 v23, s4, v23
    v_xor_b32 v23, v23, v22
    v_lshlrev_b32 v23, 4, v23
    v_and_b32 v22, 1, v0
    v_lshlrev_b32 v22, 3, v22
    v_add3_u32 v27, v21, v23, v22
    """)
    srd(a, SA,  P['Wq'], 576*8192)
    srd(a, SB0, P['Wk'], 576*8192)
    srd(a, SB1, P['Wv'], 576*8192)
    srd(a, SOUT, P['Wo'], 4096*1152)
    SR = {'Q':SA, 'K':SB0, 'V':SB1, 'O':SOUT}
    regq = [(M,c) for c in range(9) for M in 'QKV' if (M,c) not in RESQ_L]
    ou = [('O',j) for j in range(9)]
    units = []
    qi = oi = 0
    for n_ in range(30):
        if n_ in OPOS: units.append(ou[oi]); oi += 1
        else: units.append(regq[qi]); qi += 1
    assert qi == 21 and oi == 9
    units += RESQ_L
    assert len(units) == 36
    a(f"""
    s_lshl_b32 s{sHoff}, s{sH}, 8
    s_mul_i32 s6, s3, {16*8192}
    s_add_u32 s6, s6, s{sHoff}
    s_mul_i32 s7, s{sH}, 147456
    s_mul_i32 s4, s3, {32*1152}
    s_add_u32 s7, s7, s4
    s_lshl_b32 s12, s3, 12
    """)
    NS = 10
    slot_of = lambda i: (i % NS) * SLOT
    def issue(i):
        M, c = units[i]
        for jj in range(4):
            a(f"s_add_u32 m0, s12, {slot_of(i) + jj*1024}")
            if M != 'O':
                a(f"s_add_u32 s4, s6, {(64*c + 4*jj)*8192}")
                a(f"buffer_load_dwordx4 v{24 + (jj&1)}, s[{SR[M]}:{SR[M]+3}], s4 offen lds")
            else:
                a(f"s_add_u32 s4, s7, {8*jj*1152 + c*128}")
                a(f"buffer_load_dwordx4 v26, s[{SR[M]}:{SR[M]+3}], s4 offen lds")
    a(f"s_and_b32 s13, s{sH}, 3")
    for i in range(NS): issue(i)
    a("s_waitcnt vmcnt(40)\ns_barrier")
    if CODEPF:
        Lc = a.uniq("L_cpf")
        a(f"s_cmp_lg_u32 s3, 3\ns_cbranch_scc1 {Lc}")
        code_prefetch(a, "L_common_f", 8192, vt=12)
        a.lab(Lc)
    a(f"""
    s_cmp_lg_u32 s3, 0
    s_cbranch_scc1 L_ci_hs
    s_getreg_b32 s4, hwreg(HW_REG_XCC_ID)
    s_and_b32 s4, s4, 7
    s_mul_i32 s4, s4, 7
    s_mov_b64 s[10:11], 1
    s_lshl_b64 s[10:11], s[10:11], s4
    s_mov_b64 s[8:9], exec
    s_mov_b64 exec, 1
    v_mov_b32 v12, 0
    v_mov_b32 v14, s10
    v_mov_b32 v15, s11
    v_mov_b32 v13, 1
    global_atomic_add_x2 v12, v[14:15], s[{P['dbg']}:{P['dbg']+1}]
    global_atomic_add v12, v13, s[{P['dbg']}:{P['dbg']+1}] offset:16
    s_mov_b64 exec, s[8:9]
    L_ci_hs:
    """)
    TO = 32
    a(f"""
    s_lshl_b32 s4, s3, 12
    v_add_u32 v{vResA}, s4, v{vL16}
    v_add_u32 v{vResB}, 0x10000, v{vResA}
    s_lshl_b32 s4, s3, 11
    s_add_u32 s4, s4, {RESO}
    v_add_u32 v{vResO}, s4, v{vL16}
    """)
    for i in range(36):
        M, c = units[i]
        issued = min(max(i + NS - 2, NS - 1), 35)
        a(f"s_waitcnt vmcnt({min((issued - i)*4, 63)}) lgkmcnt(0)")
        if THROT and (issued - i) > THROT and i < 27:
            Lt = a.uniq("L_thr")
            a(f"s_cmp_eq_u32 s13, 1\ns_cbranch_scc1 {Lt}\ns_waitcnt vmcnt({(issued - i - THROT)*4})")
            a.lab(Lt)
        a("s_barrier")
        if i > 0 and i - 1 + NS <= 35: issue(i - 1 + NS)
        if i == 33:
            a(f"""
            v_mov_b32 v12, 0
            global_load_dwordx2 v[14:15], v12, s[{P['dbg']}:{P['dbg']+1}] sc1
            """)
        base = slot_of(i)
        if i >= 30:
            if i == 30:
                for k in range(5):
                    a(f"ds_write_b128 v{vResO}, {vr(TO+8*k,4)} offset:{k*8192}\nds_write_b128 v{vResO}, {vr(TO+8*k+4,4)} offset:{k*8192+1024}")
                a("s_waitcnt lgkmcnt(0)")
            for x in range(2):
                a(f"v_add_u32 v30, {base}, v{28+x}")
                for j in range(4):
                    a(f"ds_read_b64_tr_b16 {vr(TO+8*x+2*j,2)}, v30 offset:{j*2048}")
            a("s_waitcnt lgkmcnt(0)\ns_barrier")
            rb, off = (vResA, base) if base < 65536 else (vResB, base - 65536)
            for x in range(2):
                a(f"ds_write_b128 v{rb}, {vr(TO+8*x,4)} offset:{off + x*2048}\nds_write_b128 v{rb}, {vr(TO+8*x+4,4)} offset:{off + x*2048 + 1024}")
            continue
        if M != 'O':
            for x in range(2):
                dst = WM[(M,c,x)]
                a(f"v_add_u32 v30, {base}, v{28+x}")
                for j in range(4):
                    a(f"ds_read_b64_tr_b16 {R(dst+2*j,2)}, v30 offset:{j*2048}")
        else:
            a(f"v_add_u32 v30, {base}, v27")
            for c2 in range(2):
                dst = WM[('O',c,c2)] if (c,c2) not in RESO_L else TO + 8*RESO_L.index((c,c2))
                for j in range(4):
                    a(f"ds_read_b64_tr_b16 {R(dst+2*j,2)}, v30 offset:{(64*c2 + 16*(j>>1) + 2*(j&1))*128}")
    a("s_waitcnt vmcnt(0) lgkmcnt(0)\ns_barrier")
    a(f"""
    v_readfirstlane_b32 s8, v14
    v_readfirstlane_b32 s9, v15
    """)
    stamp(a, 1, 12, 13)
    a(f"""
    v_mov_b32 v12, 0
    s_mov_b32 s4, s8
    s_mov_b32 s5, s9
    s_branch L_ci_w2
    L_ci_w:
    global_load_dwordx2 v[14:15], v12, s[{P['dbg']}:{P['dbg']+1}] sc1
    s_waitcnt vmcnt(0)
    v_readfirstlane_b32 s4, v14
    v_readfirstlane_b32 s5, v15
    L_ci_w2:
    s_mov_b32 s6, 0
    s_mov_b32 s7, 0
    """)
    for k in range(8):
        a(f"s_and_b32 s10, s4, 127\ns_add_u32 s6, s6, s10\ns_max_u32 s7, s7, s10\ns_lshr_b64 s[4:5], s[4:5], 7")
    a(f"""
    s_cmp_ge_u32 s6, 32
    s_cbranch_scc1 L_ci_go
    s_sleep 2
    """)
    spin_check(a)
    a(f"""
    s_branch L_ci_w
    L_ci_go:
    s_cmp_ge_u32 s7, 32
    s_cselect_b32 s{sMode}, 0, 1
    """)
    a(f"""
    v_lshlrev_b32 v71, 3, v{vL16}
    v_and_b32 v71, 0xf80, v71
    s_mov_b32 s4, {F_KV}
    buffer_load_dword v71, v71, s[{SWS}:{SWS+3}], s4 offen sc1
    """)
    a(f"""
    v_bfe_u32 v12, v0, 1, 1
    v_mov_b32 v{vIdx}, 0x4444
    v_mov_b32 v13, 0xeeee
    v_cmp_eq_u32 vcc, 1, v12
    s_nop 1
    v_cndmask_b32 v{vIdx}, v{vIdx}, v13, vcc
    v_lshrrev_b32 v12, 2, v0
    v_lshlrev_b32 v12, 5, v12
    v_and_b32 v13, 3, v0
    v_lshlrev_b32 v13, 3, v13
    v_add_u32 v12, v12, v13
    v_add_u32 v{vTrX}, {XQ}, v12
    v_and_b32 v12, 15, v0
    s_lshl_b32 s4, s3, 5
    v_add_u32 v12, s4, v12
    v_lshlrev_b32 v12, 5, v12
    v_lshrrev_b32 v13, 4, v0
    v_lshlrev_b32 v13, 3, v13
    v_add_u32 v12, v12, v13
    v_add_u32 v{vXQw}, {XQ}, v12
    v_bfe_u32 v12, v0, 2, 2
    v_lshlrev_b32 v12, 2, v12
    v_and_b32 v13, 1, v0
    s_and_b32 s4, s3, 1
    s_lshl_b32 s4, s4, 1
    v_add3_u32 v12, v12, v13, s4
    v_lshrrev_b32 v13, 5, v0
    v_lshlrev_b32 v13, 4, v13
    v_add_u32 v12, v12, v13
    v_lshlrev_b32 v12, 4, v12
    v_bfe_u32 v13, v0, 4, 1
    v_lshlrev_b32 v13, 3, v13
    v_add_u32 v12, v12, v13
    s_lshr_b32 s4, s3, 1
    s_lshl_b32 s4, s4, 10
    s_add_u32 s4, s4, {XO}
    v_add_u32 v{vXOw}, s4, v12
    s_mov_b32 s{sMask}, 0xcccccccc
    s_mov_b32 s{sMask+1}, 0xcccccccc
    s_mov_b32 s{sC1}, {fb(C1)}
    s_mov_b32 s{sRT}, -1
    s_cmp_eq_u32 s3, 0
    s_cselect_b32 s{sRT}, s{sH}, s{sRT}
    s_add_u32 s4, s{sH}, 32
    s_cmp_lt_u32 s{sH}, 4
    s_cselect_b32 s4, s4, -1
    s_cmp_eq_u32 s3, 1
    s_cselect_b32 s{sRT}, s4, s{sRT}
    """)
    a(f"""
    s_lshr_b32 s4, s{sRT}, 2
    s_lshl_b32 s4, s4, 10
    s_and_b32 s5, s{sRT}, 1
    s_lshl_b32 s5, s5, 9
    s_add_u32 s4, s4, s5
    s_bfe_u32 s5, s{sRT}, 0x10001
    s_lshl_b32 s5, s5, 5                ; 2*half*16
    s_add_u32 s4, s4, s5
    v_bfe_u32 v12, v0, 2, 1
    v_lshlrev_b32 v12, 8, v12
    v_lshrrev_b32 v13, 4, v0
    v_lshlrev_b32 v13, 6, v13
    v_add_u32 v12, v12, v13
    v_and_b32 v13, 1, v0
    v_lshlrev_b32 v13, 4, v13           ; (e'&1)*16
    v_add_u32 v12, v12, v13
    v_bfe_u32 v13, v0, 1, 1
    v_lshlrev_b32 v13, 3, v13
    v_add_u32 v12, v12, v13
    v_add_u32 v{vMst}, s4, v12
    v_bfe_u32 v13, v0, 3, 1
    v_mul_u32_u24 v13, {CS}, v13
    v_add_u32 v{vMst}, v{vMst}, v13
    v_and_b32 v12, 7, v0
    v_lshrrev_b32 v13, 1, v12
    v_and_b32 v16, 1, v12
    v_lshlrev_b32 v16, 4, v16
    v_mov_b32 v17, 0x3f80
    v_lshlrev_b32 v17, v16, v17
    """)
    for j in range(4):
        a(f"v_cmp_eq_u32 vcc, {j}, v13\ns_nop 1\nv_cndmask_b32 v{20+j}, 0, v17, vcc")
    a(f"v_add_u32 v16, {SEL}, v{vL16}\nds_write_b128 v16, v[20:23]")
    a("s_waitcnt lgkmcnt(0)")
    if Cfg.FORCE_SLOW: a(f"s_mov_b32 s{sMode}, 1")

def zero(a, base, n):
    for i in range(0, n, 2): a(f"v_mov_b64 {vr(base+i,2)}, 0")
def smf(a, acc, A, B):
    a(f"v_smfmac_f32_16x16x64_bf16 {vr(acc,4)}, {vr(A,4)}, {R(B,8)}, v{vIdx}")

class LQ:
    def __init__(s, a): s.a = a; s.p = []
    def add(s, tag, n=1): s.p.extend([tag]*n)
    def wait(s, tags):
        idx = [i for i,t in enumerate(s.p) if t in tags]
        if not idx: return
        last = max(idx); n = len(s.p) - 1 - last
        s.a(f"s_waitcnt lgkmcnt({min(n,15)})"); del s.p[:last+1]

VSPACE = 4
VSPACE2 = 2
class Sch:
    def __init__(s, a, lq): s.a = a; s.lq = lq; s.f = []; s.since = 99; s.vs = VSPACE
    def fill(s, instr, tag=None): s.f.append((instr, tag))
    def front(s, lst):
        k = 0
        while k < len(s.f) and (s.f[k][1] == 'W' or (isinstance(s.f[k][1], tuple) and s.f[k][1][0] == 'A')): k += 1
        s.f[k:k] = lst
    def pop(s, n=1, force=False):
        for _ in range(n):
            if not s.f: return
            k = 0
            s.since += 1
            if not force and s.vs:
                k = None
                for q, (ins, tag) in enumerate(s.f):
                    if ins.startswith("buffer_"):
                        if s.since >= s.vs and not any(x[0].startswith("buffer_") for x in s.f[:q]): k = q; break
                    else:
                        k = q; break
                if k is None: return
            ins, tag = s.f.pop(k)
            if ins.startswith("buffer_"): s.since = 0
            s.a(ins)
            if tag is not None: s.lq.add(tag)
    def flush(s): s.pop(len(s.f), force=True)

sPJ = 32
WSR = f"s[{SWS}:{SWS+3}]"
ST = 32*8192
res_at = {c: M for (M,c) in RESQ_L}
res_list = sorted(res_at)
def rq(c, x):
    slot = RESQ_L.index((res_at[c],c)) * SLOT
    rb, off = (vResA, slot) if slot < 65536 else (vResB, slot - 65536)
    return [f"ds_read_b128 {vr(LD+8*x+4*q,4)}, v{rb} offset:{off + x*2048 + q*1024}" for q in range(2)]
ACCS = [52,53,54,55,56,57,58,61,62,63,59,60]

def chain_state_init(a):
    a(f"""
    s_mov_b32 s{sStep}, -1
    v_add_u32 v{vHi}, {HB}, v{vL16}
    s_lshl_b32 s{sW1k}, s3, 10
    s_lshl_b32 s4, s{sH}, 13
    s_lshl_b32 s5, s3, 11
    s_add_u32 s4, s4, s5
    s_add_u32 s{sKXo}, s4, {WS_KX}
    s_add_u32 s{sVXo}, s4, {WS_VX - ST}
    s_mov_b32 s{sPFo}, s{sKXo}
    s_lshl_b32 s4, s{sH}, 12
    s_add_u32 s4, s4, s{sW1k}
    s_add_u32 s{sPub}, s4, {WS_KM}
    s_lshl_b32 s4, s{sH}, 7
    s_add_u32 s{sProg}, s4, {F_PROG}
    s_mov_b32 s{sProgL}, s{sProg}
    s_cmp_eq_u32 s3, 3
    s_cselect_b32 s{sProg}, s{sProg}, {OOB}
    s_lshl_b32 s4, s3, 13
    s_add_u32 s4, s4, s{sHoff}
    s_add_u32 s{sPst}, s4, {CH_PART + PART_SZ}
    s_add_u32 s5, s4, {CH_PART}
    s_xor_b32 s{sPstX}, s{sPst}, s5
    s_lshl_b32 s4, s{sRT}, 13
    s_add_u32 s{sRd}, s4, {CH_PART}
    s_add_u32 s5, s4, {CH_PART + PART_SZ}
    s_xor_b32 s{sRdX}, s{sRd}, s5
    s_mov_b32 s{sMemOff}, {-65536 & 0x3ffff}
    s_and_b32 s4, s{sH}, 3
    s_mul_i32 s4, s4, {CS}
    s_add_u32 s{sMB}, s4, {CH_MEM}
    s_lshl_b32 s4, s{sH}, 13
    s_lshl_b32 s5, s3, 11
    s_add_u32 s4, s4, s5
    s_add_u32 s{sRa}, s4, {CH_PART}
    s_add_u32 s5, s4, {CH_PART + PART_SZ}
    s_xor_b32 s{sRaX}, s{sRa}, s5
    s_add_u32 s{sRb}, s{sRa}, {32*8192}
    s_add_u32 s5, s5, {32*8192}
    s_xor_b32 s{sRbX}, s{sRb}, s5
    s_cmp_lt_u32 s{sH}, 4
    s_cselect_b32 s{sRb}, s{sRb}, {OOB}
    s_cselect_b32 s{sRbX}, s{sRbX}, 0
    s_mov_b32 s{sC1+1}, s{sC1}
    s_mov_b32 s{sThr}, {fb(60.0/C1)}
    """)
    a(f"s_mov_b32 s{sFlc}, 0")
    Lkv = a.uniq("L_kv0"); Lkd = a.uniq("L_kv0d")
    a(f"""
    s_waitcnt vmcnt(0)
    v_cmp_le_u32 vcc, 32, v71
    s_nop 1
    s_not_b32 s4, vcc_lo
    s_ff1_i32_b32 s4, s4
    s_cmp_eq_u32 s4, -1
    s_cselect_b32 s{sReady}, 32, s4
    s_cmp_gt_u32 s{sReady}, 0
    s_cbranch_scc1 {Lkd}
    """)
    a.lab(Lkv)
    kv_refresh(a, sFlc, 12)
    a.lab(Lkd)
    a(f"""
    s_add_u32 m0, s{sW1k}, s{sW1k}
    s_add_u32 m0, m0, {KXB}
    s_nop 0
    buffer_load_dwordx4 v{vL16}, {WSR}, s{sKXo} offen sc1 lds
    buffer_load_dwordx4 v{vL16}, {WSR}, s{sKXo} offen offset:1024 sc1 lds
    s_add_u32 s{sKXo}, s{sKXo}, {ST}
    """)
    book_salu(a)
    stamp(a, 2, 12, 13)
    if Cfg.STAMPS: a("\n".join(f"s_mov_b32 s{r}, 0" for r in ACCS))
    cyc(a)

def book_salu(a):
    a(f"""
    s_add_u32 s{sMemOff}, s{sMemOff}, 65536
    s_and_b32 s{sMemOff}, s{sMemOff}, 0x3ffff
    s_add_u32 s{sT0}, s{sMemOff}, s{sMB}
    s_add_u32 s{sM0}, s{sT0}, s{sW1k}
    s_add_u32 s{sStep}, s{sStep}, 1
    s_add_u32 s{sM1}, s{sM0}, 4096
    s_lshr_b32 s4, s{sW1k}, 2
    s_add_u32 s{sM2}, s{sT0}, s4
    s_add_u32 s{sM2}, s{sM2}, 8192
    s_add_u32 s{sT2}, s4, {MEMB + 8192}
    s_xor_b32 s{sPst}, s{sPst}, s{sPstX}
    s_mov_b32 s{sPJ}, s{sPst}
    """)
    for j in range(1, 9): a(f"s_add_u32 s{sPJ+j}, s{sPst}, {j*4*8192}")
    a(f"""
    s_xor_b32 s{sRa}, s{sRa}, s{sRaX}
    s_xor_b32 s{sRb}, s{sRb}, s{sRbX}
    s_add_u32 s{sVXo}, s{sVXo}, {ST}
    s_add_u32 s{sPFo}, s{sPFo}, {ST}
    s_add_u32 s{sPF2}, s{sPFo}, {WS_VX - WS_KX}
    s_add_u32 s4, s{sStep}, 1
    s_lshr_b32 s4, s4, 1
    s_min_u32 s{sFlc}, s4, 31
    """)

def kv_refresh(a, target_sgpr, vt):
    if Cfg.NOCOMM or getattr(Cfg,'WEXIT',False) or getattr(Cfg,'NOWAIT',False):
        a(f"s_mov_b32 s{sReady}, 32"); return
    L = a.uniq("L_kvr"); Ld = a.uniq("L_kvd")
    a.lab(L)
    a(f"""
    v_lshlrev_b32 v{vt}, 3, v{vL16}
    v_and_b32 v{vt}, 0xf80, v{vt}
    s_mov_b32 s4, {F_KV}
    buffer_load_dword v{vt}, v{vt}, {WSR}, s4 offen sc1
    s_waitcnt vmcnt(0)
    v_cmp_le_u32 vcc, 32, v{vt}
    s_nop 1
    s_not_b32 s4, vcc_lo
    s_ff1_i32_b32 s4, s4
    s_cmp_eq_u32 s4, -1
    s_cselect_b32 s{sReady}, 32, s4
    s_cmp_gt_u32 s{sReady}, s{target_sgpr}
    s_cbranch_scc1 {Ld}
    s_sleep 4
    """)
    spin_check(a)
    a(f"s_branch {L}")
    a.lab(Ld)

def probe(a, instr, sacc, smax):
    if Cfg.STAMPS and Cfg.CYC and PROBES:
        a("s_memtime s[90:91]\ns_waitcnt lgkmcnt(0)")
        a(instr)
        a(f"s_memtime s[92:93]\ns_waitcnt lgkmcnt(0)\ns_sub_u32 s92, s92, s90\ns_add_u32 s{sacc}, s{sacc}, s92\ns_max_u32 s{smax}, s{smax}, s92")
    else:
        a(instr)
PROBES = False

def chain_loop(a, slow):
    T0 = "s" if slow else "f"
    sfx = " sc1" if slow else ""
    q0,q1,k0,k1,v0_,v1_ = ACC, ACC+4, ACC+8, ACC+12, ACC+16, ACC+20
    accs = {('Q',0):q0,('Q',1):q1,('K',0):k0,('K',1):k1,('V',0):v0_,('V',1):v1_}
    RL = 16
    def loads1():
        for j in range(8):
            a(f"buffer_load_dwordx4 {vr(RL+4*j,4)}, v{vL16}, {WSR}, s{sRd if j < 4 else sT1} offen offset:{(j&3)*1024} sc1")
    def aread_i(c): return f"ds_read_b128 {vr(AS+4*(c&1),4)}, v{vHi} offset:{MEMB - HB + c*1024}"
    ool = []

    def emit(final):
        T = T0 + ("z" if final else "")
        def lb(n): return f"{n}_{T}"
        a.lab(lb("L_common"))
        if not final:
            cyc(a, 57); ev(a, 7, 31)
            a(f"s_cmp_eq_u32 s{sStep}, 63\ns_cbranch_scc1 L_common_{T0}z")
        a(f"""
        v_add_u32 v{vT+2}, s{sW1k}, v{vHi}
        v_add_u32 v{vT+3}, s{sT2}, v{vL4}
        v_mov_b32 v{vT+1}, -1
        s_cmp_ge_u32 s{sFlc}, s{sReady}
        s_cbranch_scc1 {lb('L_flslow')}
        """)
        a.lab(lb("L_fl_ok"))
        def chk(reg, fail):
            a(f"v_cmp_eq_u32 vcc, -1, v{reg}\ns_cbranch_vccnz {fail}")
        def okpath(reg):
            if not final: ev(a, 8, 31)
            a(f"ds_write_b128 v{vT+2}, {vr(reg,4)} offset:{MEMB-HB}")
            a(f"buffer_load_dwordx4 {vr(PB,4)}, v{vL16}, {WSR}, s{sM1} offen sc1\nbuffer_load_dword v{PB+4}, v{vL4}, {WSR}, s{sM2} offen sc1")
        a(f"buffer_load_dwordx4 {vr(AS+4,4)}, v{vL16}, {WSR}, s{sM0} offen sc1")
        a.lab(lb("L_pA0"))
        a("s_waitcnt vmcnt(1)")
        chk(AS, lb("L_pA0f"))
        okpath(AS)
        a.lab(lb("L_pAdone"))
        a("s_waitcnt vmcnt(2) lgkmcnt(0)\ns_barrier")
        if not final:
            cyc(a, 58); ev(a, 9, 31)
        def ool_poll():
            a.lab(lb("L_pA0f"))
            if Cfg.STAMPS: a("s_add_u32 s62, s62, 1")
            spin_check(a)
            a(f"buffer_load_dwordx4 {vr(AS,4)}, v{vL16}, {WSR}, s{sM0} offen sc1")
            a("s_waitcnt vmcnt(1)")
            chk(AS+4, lb("L_pA1f"))
            okpath(AS+4)
            a(f"s_branch {lb('L_pAdone')}")
            a.lab(lb("L_pA1f"))
            if Cfg.STAMPS: a("s_add_u32 s62, s62, 1")
            a(f"buffer_load_dwordx4 {vr(AS+4,4)}, v{vL16}, {WSR}, s{sM0} offen sc1")
            a(f"s_branch {lb('L_pA0')}")
            a.lab(lb("L_retryB"))
            if Cfg.STAMPS: a("s_add_u32 s63, s63, 1")
            spin_check(a)
            a(f"buffer_load_dwordx4 {vr(PB,4)}, v{vL16}, {WSR}, s{sM1} offen sc1\nbuffer_load_dword v{PB+4}, v{vL4}, {WSR}, s{sM2} offen sc1\ns_waitcnt vmcnt(0)\ns_branch {lb('L_chkB')}")
            a.lab(lb("L_flslow"))
            kv_refresh(a, sFlc, PB+6)
            a(f"s_branch {lb('L_fl_ok')}")
        ool.append(ool_poll)
        if not final:
            cyc(a); ev(a, 0)
            if Cfg.STEPLOG:
                L = a.uniq("L_sl")
                a(f"""
                s_cmp_lg_u32 s3, 3
                s_cbranch_scc1 {L}
                s_memrealtime s[94:95]
                s_memtime s[96:97]
                s_lshl_b32 s7, s{sH}, 10
                s_lshl_b32 s6, s{sStep}, 3
                s_add_u32 s7, s7, s6
                s_add_u32 s7, s7, {0x7300000}
                s_waitcnt lgkmcnt(0)
                v_mov_b32 v{PB+6}, s94
                v_mov_b32 v{PB+7}, s96
                v_mov_b32 v{vT}, 0
                buffer_store_dwordx2 {vr(PB+6,2)}, v{vT}, {WSR}, s7 offen
                """)
                a.lab(L)
        lq = LQ(a); sch = Sch(a, lq)
        a(aread_i(0)); lq.add(('A',0))
        a(aread_i(1)); lq.add(('A',1))
        nre = 0
        if not final:
            for sr_ in (sRa, sRb):
                for q in range(2):
                    sch.fill(f"buffer_store_dword v{vT+1}, v{vL16}, {WSR}, s{sr_} offen offset:{q*1024}{sfx}"); nre += 1
        mats = 'KV' if final else 'QKV'
        for c in range(9):
            A = AS + 4*(c&1)
            base = [(M,x) for M in mats for x in range(2)]
            if c in res_at and c != 8 and res_at[c] in mats:
                Mr = res_at[c]
                others = [o for o in base if o[0] != Mr]
                if len(others) == 4: order = [others[0], (Mr,0), others[1], others[2], (Mr,1), others[3]]
                else: order = [others[0], (Mr,0), others[1], (Mr,1)]
            else:
                order = base
            if c >= 7 and not final: order = [('Q',0),('K',0),('Q',1),('K',1)]
            if c >= 7 and final: order = [('K',0),('K',1)]
            if 1 <= c < 8: sch.front([(aread_i(c+1), ('A',c+1))])
            last = len(order) - 1
            for n_, (M,x) in enumerate(order):
                isres = (c in res_at and M == res_at[c])
                lq.wait([('A',c)] + ([('R',c,x)] if isres else []))
                B = (LD + 8*x) if isres else WM[(M,c,x)]
                smf(a, accs[(M,x)], A, B)
                if isres:
                    nx = [r for r in res_list if r > c and res_at[r] in mats]
                    if nx:
                        ins = rq(nx[0], x)
                        sch.front([(ins[0], ('R',nx[0],x)), (ins[1], ('R',nx[0],x))])
                if c == 1 and n_ == last:
                    sch.flush()
                    a(f"s_waitcnt vmcnt({nre})")
                    a.lab(lb("L_chkB"))
                    a(f"v_max_u32 v{PB+6}, v{PB}, v{PB+4}\nv_cmp_eq_u32 vcc, -1, v{PB+6}\ns_cbranch_vccnz {lb('L_retryB')}")
                    if not final: ev(a, 1)
                    sch.front([(f"ds_write_b128 v{vT+2}, {vr(PB,4)} offset:{MEMB-HB+4096}", 'W'), (f"ds_write_b32 v{vT+3}, v{PB+4}", 'W')])
                elif c == 2 and n_ == last:
                    sch.flush()
                    lq.wait(['W'])
                    a("s_barrier")
                    if not final:
                        if not Cfg.NOVX:
                            sch.fill(f"buffer_load_dwordx4 {vr(PB,4)}, v{vL16}, {WSR}, s{sVXo} offen sc1")
                            sch.fill(f"buffer_load_dwordx4 {vr(PB+4,4)}, v{vL16}, {WSR}, s{sVXo} offen offset:1024 sc1")
                        a(f"v_sub_u32 v{vT+2}, 0, v{vL16}\nv_mov_b32 v{vT+3}, s{sStep}")
                        if not Cfg.NOFL: sch.fill(f"buffer_store_dword v{vT+3}, v{vT+2}, {WSR}, s{sProg} offen sc1")
                else:
                    sch.pop(1)
                if final and c == 0 and n_ == last and 'Q' == res_at[0]:
                    nx = [r for r in res_list if res_at[r] in mats]
                    for x2 in range(2):
                        ins = rq(nx[0], x2)
                        sch.front([(ins[0], ('R',nx[0],x2)), (ins[1], ('R',nx[0],x2))])
        sch.flush()
        if not final:
            cyc(a, 52); ev(a, 2)
            for _ in range(ADDQ): a('s_nop 15')
        A7, A8 = AS+4, AS
        smf(a, v0_, A7, WM[('V',7,0)]); smf(a, v1_, A7, WM[('V',7,1)])
        a("s_nop 1")
        vp = v0_
        if final:
            lq.wait([('R',8,0),('R',8,1)])
            smf(a, v0_, A8, LD); smf(a, v1_, A8, LD+8)
            a.nop(8)
            a(f"v_pk_add_f32 {vr(k0,2)}, {vr(k0,2)}, {vr(k0+2,2)}\nv_pk_add_f32 {vr(k1,2)}, {vr(k1,2)}, {vr(k1+2,2)}")
            a(f"v_cvt_pk_bf16_f32 v{k0}, v{k0}, v{k0+1}\nv_cvt_pk_bf16_f32 v{k0+2}, v{k1}, v{k1+1}")
            a(f"v_pk_add_f32 {vr(v0_,2)}, {vr(v0_,2)}, {vr(v0_+2,2)}\nv_pk_add_f32 {vr(v1_,2)}, {vr(v1_,2)}, {vr(v1_+2,2)}")
            a(f"v_cvt_pk_bf16_f32 v{k0+1}, v{v0_}, v{v0_+1}\nv_cvt_pk_bf16_f32 v{k0+3}, v{v1_}, v{v1_+1}")
            a(f"buffer_store_dwordx4 {vr(k0,4)}, v{vL16}, {WSR}, s{sPub} offen sc1")
            a("s_branch L_chain_last")
            return
        a(f"v_pk_add_f32 {vr(q0,2)}, {vr(q0,2)}, {vr(q0+2,2)}\nv_pk_add_f32 {vr(k0,2)}, {vr(k0,2)}, {vr(k0+2,2)}")
        a(f"v_cvt_pk_bf16_f32 v{k0}, v{k0}, v{k0+1}\nv_cvt_pk_bf16_f32 v{k0+1}, v{q0}, v{q0+1}")
        a(f"ds_write_b64 v{vXQw}, {vr(k0,2)}")
        a(f"v_pk_add_f32 {vr(q1,2)}, {vr(q1,2)}, {vr(q1+2,2)}\nv_pk_add_f32 {vr(k1,2)}, {vr(k1,2)}, {vr(k1+2,2)}")
        a(f"v_cvt_pk_bf16_f32 v{k0+2}, v{k1}, v{k1+1}\nv_cvt_pk_bf16_f32 v{k0+3}, v{q1}, v{q1+1}")
        a(f"ds_write_b64 v{vXQw}, {vr(k0+2,2)} offset:512")
        lq.wait([('R',8,0),('R',8,1)])
        smf(a, v0_, A8, LD)
        smf(a, v1_, A8, LD+8)
        a("s_waitcnt lgkmcnt(0)\ns_barrier")
        sm, s1, s2 = q0, q1, k1
        KL = [24, 28, 12]
        for ks in range(4):
            for x2 in range(2):
                a(f"ds_read_b64_tr_b16 {vr(LD+4*ks+2*x2,2)}, v{vTrX} offset:{(32*ks+16*x2)*32}")
        def kxread(i): return f"ds_read_b128 {vr(KL[i%3],4)}, v{vHi} offset:{KXB - HB + i*1024}"
        for i in range(3): a(kxread(i))
        a(f"v_pk_add_f32 {vr(v0_,2)}, {vr(v0_,2)}, {vr(v0_+2,2)}\nv_pk_add_f32 {vr(v1_,2)}, {vr(v1_,2)}, {vr(v1_+2,2)}")
        a(f"v_cvt_pk_bf16_f32 v{k0+1}, v{v0_}, v{v0_+1}\nv_cvt_pk_bf16_f32 v{k0+3}, v{v1_}, v{v1_+1}")
        a(f"v_cvt_pk_bf16_f32 v{vp}, v{v0_}, v{v0_+1}\nv_cvt_pk_bf16_f32 v{vp+2}, v{v1_}, v{v1_+1}\nv_mov_b32 v{vp+1}, 0\nv_mov_b32 v{vp+3}, 0")
        cyc(a, 53)
        a("s_waitcnt lgkmcnt(3)")
        ones = v1_
        for ks in range(4):
            c = "0" if ks == 0 else vr(sm,4)
            a(f"v_mfma_f32_16x16x32_bf16 {vr(sm,4)}, {vr(LD+4*ks,4)}, {vr(LD+4*ks,4)}, {c}")
            a(f"v_mov_b32 v{ones+ks}, 0x3f803f80")
            if ks == 1 and not Cfg.NOPUB: a(f"buffer_store_dwordx4 {vr(k0,4)}, v{vL16}, {WSR}, s{sPub} offen sc1")
        for i in range(8):
            t, ks = i >> 2, i & 3
            d = s1 if t == 0 else s2
            a(f"s_waitcnt lgkmcnt({min(2, 7 - i)})")
            c = "0" if ks == 0 else vr(d,4)
            a(f"v_mfma_f32_16x16x32_bf16 {vr(d,4)}, {vr(KL[i%3],4)}, {vr(LD+4*ks,4)}, {c}")
            if i + 3 < 8: a(kxread(i + 3))
            if i == 6: a(f"s_add_u32 s{sPub}, s{sPub}, {32*4096}")
        a(f"ds_read_b128 {vr(LD+8,4)}, v{vResO} offset:0\nds_read_b128 {vr(LD+12,4)}, v{vResO} offset:1024")
        if KXEARLY:
            a(f"s_add_u32 m0, s{sW1k}, s{sW1k}\ns_add_u32 m0, m0, {KXB}\ns_barrier")
            if not Cfg.NOKX: a(f"buffer_load_dwordx4 v{vL16}, {WSR}, s{sKXo} offen sc1 lds\nbuffer_load_dwordx4 v{vL16}, {WSR}, s{sKXo} offen offset:1024 sc1 lds")
            a(f"s_add_u32 s{sKXo}, s{sKXo}, {ST}")
        else:
            a.nop(5)
        cyc(a, 54); ev(a, 3)
        vals = [sm, sm+1, s1, s1+1, s1+2, s1+3, s2, s2+1, s2+2, s2+3]
        mx, t2 = AS, AS+1
        pairs = (sm, s1, s1+2, s2, s2+2)
        def truemax():
            a(f"v_max3_f32 v{mx}, v{vals[0]}, v{vals[1]}, v{vals[2]}")
            a(f"v_max3_f32 v{t2}, v{vals[3]}, v{vals[4]}, v{vals[5]}")
            a(f"v_max3_f32 v{mx}, v{mx}, v{vals[6]}, v{vals[7]}")
            a(f"v_max3_f32 v{t2}, v{t2}, v{vals[8]}, v{vals[9]}")
            a(f"v_max_f32 v{mx}, v{mx}, v{t2}")
            a(f"v_mov_b32 v{t2}, v{mx}\ns_nop 1\nv_permlane16_swap_b32 v{mx}, v{t2}\ns_nop 0\nv_max_f32 v{mx}, v{mx}, v{t2}")
            a(f"v_mov_b32 v{t2}, v{mx}\ns_nop 1\nv_permlane32_swap_b32 v{mx}, v{t2}\ns_nop 0\nv_max_f32 v{mx}, v{mx}, v{t2}")
            a(f"v_mul_f32 v{mx}, s{sC1}, v{mx}")
            for b_ in pairs:
                a(f"v_pk_fma_f32 {vr(b_,2)}, {vr(b_,2)}, s[{sC1}:{sC1+1}], {vr(mx,2)} op_sel_hi:[1,1,0] neg_lo:[0,0,1] neg_hi:[0,0,1]")
        if SKIPMAX:
            a(f"v_max3_f32 v{mx}, |v{vals[0]}|, |v{vals[1]}|, |v{vals[2]}|")
            a(f"v_max3_f32 v{t2}, |v{vals[3]}|, |v{vals[4]}|, |v{vals[5]}|")
            a(f"v_max3_f32 v{mx}, v{mx}, |v{vals[6]}|, |v{vals[7]}|")
            a(f"v_max3_f32 v{t2}, v{t2}, |v{vals[8]}|, |v{vals[9]}|")
            a(f"v_max_f32 v{mx}, v{mx}, v{t2}")
            a(f"v_cmp_nle_f32 vcc, v{mx}, v{vThr}" if False else f"v_cmp_ngt_f32 vcc, s{sThr}, v{mx}")
            for b_ in pairs[:2]:
                pass
            a(f"s_and_b64 vcc, vcc, s[{sMask}:{sMask+1}]\ns_cbranch_scc1 {lb('L_tmax')}")
            for b_ in pairs:
                a(f"v_pk_mul_f32 {vr(b_,2)}, {vr(b_,2)}, s[{sC1}:{sC1+1}]")
            a.lab(lb("L_tmaxr"))
            def ool_tm():
                a.lab(lb("L_tmax"))
                truemax()
                a(f"s_branch {lb('L_tmaxr')}")
            ool.append(ool_tm)
        else:
            truemax()
        if not SKIPSM:
            for v in vals: a(f"v_exp_f32 v{v}, v{v}")
        pm, px, lr = LD, LD+4, AS+4
        a(f"v_mov_b32 v{pm+1}, 0")
        a(f"v_cvt_pk_bf16_f32 v{pm}, v{sm}, v{sm+1}")
        a(f"v_cvt_pk_bf16_f32 v{px}, v{s1}, v{s1+1}\nv_cvt_pk_bf16_f32 v{px+1}, v{s1+2}, v{s1+3}")
        a(f"v_cvt_pk_bf16_f32 v{px+2}, v{s2}, v{s2+1}\nv_cvt_pk_bf16_f32 v{px+3}, v{s2+2}, v{s2+3}")
        o0, o1 = sm, s1
        probe(a, f"s_waitcnt vmcnt({max(0, 2 + (2 if KXEARLY and not Cfg.NOKX else 0) - (1 if Cfg.NOPUB else 0) - (1 if Cfg.NOFL else 0))})", 59, 60)
        a("s_nop 0")
        a(f"v_mfma_f32_16x16x32_bf16 {vr(lr,4)}, {vr(ones,4)}, {vr(px,4)}, 0")
        a(f"v_mfma_f32_16x16x32_bf16 {vr(o0,4)}, {vr(PB,4)}, {vr(px,4)}, 0")
        a(f"ds_read_b128 v[56:59], v{vResO} offset:8192")
        a(f"v_mfma_f32_16x16x32_bf16 {vr(o1,4)}, {vr(PB+4,4)}, {vr(px,4)}, 0")
        a(f"ds_read_b128 v[60:63], v{vResO} offset:{8192+1024}")
        a(f"v_mfma_f32_16x16x16_bf16 {vr(lr,4)}, {vr(ones,2)}, {vr(pm,2)}, {vr(lr,4)}")
        a(f"v_mfma_f32_16x16x16_bf16 {vr(o0,4)}, {vr(vp,2)}, {vr(pm,2)}, {vr(o0,4)}")
        a(f"v_mfma_f32_16x16x16_bf16 {vr(o1,4)}, {vr(vp+2,2)}, {vr(pm,2)}, {vr(o1,4)}")
        zero(a, 12, 4); zero(a, PB, 4)
        a("s_nop 1")
        a(f"v_rcp_f32 v{AS}, v{lr}")
        zero(a, PB+4, 2)
        for j in range(0, 8, 2):
            a(f"v_pk_mul_f32 {vr(o0+j,2)}, {vr(o0+j,2)}, {vr(AS,2)} op_sel_hi:[1,0]")
        a(f"v_cvt_pk_bf16_f32 v{o0}, v{o0}, v{o0+1}\nv_cvt_pk_bf16_f32 v{o0+1}, v{o0+2}, v{o0+3}")
        a(f"s_mov_b64 exec, s[{sMask}:{sMask+1}]")
        a(f"ds_write_b64 v{vXOw}, {vr(o0,2)}")
        a(f"v_cvt_pk_bf16_f32 v{o1}, v{o1}, v{o1+1}\nv_cvt_pk_bf16_f32 v{o1+1}, v{o1+2}, v{o1+3}")
        a(f"ds_write_b64 v{vXOw}, {vr(o1,2)} offset:512")
        a("s_mov_b64 exec, -1")
        zero(a, PB+6, 2); zero(a, 24, 8); zero(a, 64, 8)
        if not KXEARLY: a(f"s_add_u32 m0, s{sW1k}, s{sW1k}\ns_add_u32 m0, m0, {KXB}")
        a("s_waitcnt lgkmcnt(0)\ns_barrier")
        a(f"ds_read_b128 {vr(LD,4)}, v{vHi} offset:{XO-HB}\nds_read_b128 {vr(LD+4,4)}, v{vHi} offset:{XO-HB+1024}")
        if not KXEARLY:
            if not Cfg.NOKX: a(f"buffer_load_dwordx4 v{vL16}, {WSR}, s{sKXo} offen sc1 lds\nbuffer_load_dwordx4 v{vL16}, {WSR}, s{sKXo} offen offset:1024 sc1 lds")
        zero(a, 48, 8)
        if not KXEARLY: a(f"s_add_u32 s{sKXo}, s{sKXo}, {ST}")
        a("s_waitcnt lgkmcnt(0)")
        cyc(a, 55); ev(a, 4)
        WA = [16, 20, 24, 28, 68, 64, 12, 48, 52]
        ROr = [LD+8, 56]
        lq2 = LQ(a); sc2 = Sch(a, lq2); sc2.vs = VSPACE2
        def post_(j):
            d = WA[j]
            a(f"v_pk_add_f32 {vr(d,2)}, {vr(d,2)}, {vr(d+2,2)}\nv_cvt_pk_bf16_f32 v{d}, v{d}, v{d+1}")
            sc2.front([(f"buffer_store_dword v{d}, v{vL4}, {WSR}, s{sPJ+j} offen{sfx}", None)])
        for j in range(9):
            smf(a, WA[j], LD, WM[('O',j,0)])
            sc2.pop(1)
            if (j,1) in RESO_L:
                k = RESO_L.index((j,1))
                lq2.wait([('O',k)])
                smf(a, WA[j], LD+4, ROr[k % 2])
                if k + 2 < 5:
                    d = ROr[k % 2]
                    sc2.fill(f"ds_read_b128 {vr(d,4)}, v{vResO} offset:{(k+2)*8192}", ('O',k+2))
                    sc2.fill(f"ds_read_b128 {vr(d+4,4)}, v{vResO} offset:{(k+2)*8192+1024}", ('O',k+2))
            else:
                smf(a, WA[j], LD+4, WM[('O',j,1)])
            sc2.pop(1)
            if j >= 2: post_(j - 2)
        sc2.flush()
        post_(7); sc2.flush()
        a("s_nop 1")
        post_(8); sc2.flush()
        for _ in range(ADDW): a('s_nop 15')
        cyc(a, 56); ev(a, 5)
        a(f"s_cmp_eq_u32 s{sRT}, -1\ns_cbranch_scc1 {lb('L_nonred')}")
        a(f"ds_read_b128 v[68:71], v{vHi} offset:{SEL-HB}\ns_add_u32 s{sT1}, s{sRd}, 4096")
        if not EARLY: book_salu(a)
        if SIMPLEW:
            a(f"s_cmp_lt_u32 s{sRT}, {LATE}\ns_cbranch_scc1 {lb('L_poll1')}\ns_waitcnt vmcnt({N2})")
        else:
            a(f"s_waitcnt vmcnt({NE})\ns_cmp_lt_u32 s{sRT}, 16\ns_cbranch_scc1 {lb('L_poll1')}\ns_waitcnt vmcnt({N2})\ns_cmp_lt_u32 s{sRT}, {LATE}\ns_cbranch_scc1 {lb('L_poll1')}\ns_waitcnt vmcnt(0)")
        a.lab(lb("L_poll1"))
        loads1()
        if EARLY: book_salu(a)
        a(f"s_add_u32 s5, s{sMemOff}, {CH_MEM}\ns_add_u32 s6, s5, {2*CS}\ns_xor_b32 s4, s{sMemOff}, 0x20000\ns_add_u32 s{sRm0}, s4, {CH_MEM}\ns_add_u32 s{sRm1}, s{sRm0}, {2*CS}")
        zero(a, ACC, 16)
        a(f"v_mov_b32 v{vT+1}, -1")
        a("s_waitcnt lgkmcnt(0)")
        a.lab(lb("L_w1"))
        for j in range(8):
            b = RL + 4*j
            a(f"s_waitcnt vmcnt({7-j})")
            a(f"v_mfma_f32_16x16x32_bf16 v[64:67], {vr(b,4)}, v[68:71], " + ("0" if j == 0 else "v[64:67]"))
            if j == 2: a(f"v_max3_u32 v{vT}, v{RL}, v{RL+4}, v{RL+8}")
            if j == 4: a(f"v_max3_u32 v{vT}, v{RL+12}, v{RL+16}, v{vT}")
            if j == 6: a(f"v_max3_u32 v{vT}, v{RL+20}, v{RL+24}, v{vT}")
        a(f"v_max_u32 v{vT}, v{vT}, v{RL+28}\nv_cmp_eq_u32 vcc, -1, v{vT}\ns_cbranch_vccnz {lb('L_retry1')}")
        ev(a, 6, 31)
        a(f"""
        s_xor_b32 s{sRd}, s{sRd}, s{sRdX}
        s_nop 3
        v_cvt_pk_bf16_f32 v64, v64, v65
        v_cvt_pk_bf16_f32 v65, v66, v67
        buffer_store_dwordx2 v[64:65], v{vMst}, {WSR}, s5 offen{sfx}
        buffer_store_dwordx2 v[64:65], v{vMst}, {WSR}, s6 offen{sfx}
        """)
        a(f"buffer_store_dword v{vT+1}, v{vMst}, {WSR}, s{sRm0} offen{sfx}\nbuffer_store_dword v{vT+1}, v{vMst}, {WSR}, s{sRm1} offen{sfx}")
        a(f"buffer_load_dwordx4 {vr(AS,4)}, v{vL16}, {WSR}, s{sM0} offen sc1")
        for x in range(2):
            for ins in rq(0, x): a(ins)
        zero(a, ACC+16, 8)
        a(f"s_branch {lb('L_common')}")
        a.lab(lb("L_nonred"))
        book_salu(a)
        a.lab(lb("L_book"))
        zero(a, ACC, 24)
        for x in range(2):
            for ins in rq(0, x): a(ins)
        if DELAY0: a(f"s_sleep {DELAY0}")
        a(f"buffer_load_dwordx4 {vr(AS,4)}, v{vL16}, {WSR}, s{sM0} offen sc1")
        a(f"s_branch {lb('L_common')}")
        def ool_r1():
            a.lab(lb("L_retry1"))
            if Cfg.STAMPS: a("s_add_u32 s61, s61, 1")
            spin_check(a)
            loads1()
            a(f"s_branch {lb('L_w1')}")
        ool.append(ool_r1)
    emit(False)
    emit(True)
    for f in ool: f()

SKIPMAX = True
SIMPLEW = False
KXEARLY = False
sThr = 83
BACKOFF = 0
DELAY0 = 0
XP = {}
EARLY = True
CODEPF = True
OPOS = (0,1,2,3,4,5,6,7,8)
THROT = 0
CODEPF2 = False
ADDQ = 0
ADDW = 0
SKIPSM = False
PF2 = False
PROBE = False
PERLOAD = False
NE = 6
N2 = 2
LATE = 24
def chain(a):
    chain_init(a)
    chain_state_init(a)
    a(f"s_cmp_lg_u32 s{sMode}, 0\ns_cbranch_scc1 L_book_s\ns_branch L_book_f")
    chain_loop(a, False)
    chain_loop(a, True)
    a.lab("L_chain_last")
    a(f"""
    s_waitcnt vmcnt(0)
    s_barrier
    v_sub_u32 v{vT}, 0, v{vL16}
    v_mov_b32 v{vT+1}, 64
    buffer_store_dword v{vT+1}, v{vT}, {WSR}, s{sProg} offen sc1
    """)
    stamp(a, 3, 12, 13)
    cyc_out(a, 16, ACCS+[S_SPIN], 12, 13)
    ev_dump(a, 10)
    a("s_waitcnt vmcnt(0)")
```

```python
from asmlib import *
from layout import *
import struct
def fb(f): return "0x%08x" % struct.unpack("<I", struct.pack("<f", f))[0]

P = dict(x=16, mem0=18, Wq=20, Wk=22, Wv=24, Wo=26, seg=28, xb=30, Wg=32, Wu=34, Wd=36, gw=38, out=40, dbg=42, ws=44)
SWS=48; SA=52; SB0=56; SB1=60; SOUT=64
S_SPIN=47
class Cfg:
    STAMPS = False
    FORCE_SLOW = False
    TRACE = False
    NOCOMM = False
    NOPUB = False
    NOPF = True
    CYC = True
    NOKX = False
    NOVX = False
    NOFL = False
    STEPLOG = False
WS_STAMP = 0x7000000

def srd(a, dst, ptr, size, add=None):
    if add is None:
        a(f"s_mov_b32 s{dst}, s{ptr}\ns_mov_b32 s{dst+1}, s{ptr+1}")
    else:
        a(f"s_add_u32 s{dst}, s{ptr}, {add}\ns_addc_u32 s{dst+1}, s{ptr+1}, 0")
    a(f"s_mov_b32 s{dst+2}, {size}\ns_mov_b32 s{dst+3}, 0x20000")

def stamp(a, i, vd=1, vz=30):
    if not Cfg.STAMPS: return
    L = a.uniq("L_st")
    a(f"""
    s_cmp_lg_u32 s3, 0
    s_cbranch_scc1 {L}
    s_memrealtime s[96:97]
    s_lshl_b32 s98, s2, 8
    s_add_u32 s98, s98, {WS_STAMP + 4*i}
    s_waitcnt lgkmcnt(0)
    v_mov_b32 v{vd}, s96
    v_mov_b32 v{vz}, 0
    s_mov_b64 s[96:97], exec
    s_mov_b64 exec, 1
    buffer_store_dword v{vd}, v{vz}, s[{SWS}:{SWS+3}], s98 offen
    s_mov_b64 exec, s[96:97]
    """)
    a.lab(L)
def cyc(a, acc=None):
    if not Cfg.STAMPS or not Cfg.CYC: return
    a("s_memtime s[94:95]\ns_waitcnt lgkmcnt(0)")
    if acc is not None:
        a(f"s_sub_u32 s93, s94, s89\ns_add_u32 s{acc}, s{acc}, s93")
    a("s_mov_b32 s89, s94")
def cyc_out(a, idx, regs, vd=1, vz=30):
    if not Cfg.STAMPS: return
    L = a.uniq("L_co")
    a(f"s_cmp_lg_u32 s3, 0\ns_cbranch_scc1 {L}\ns_lshl_b32 s98, s2, 8\ns_add_u32 s98, s98, {WS_STAMP + 4*idx}\nv_mov_b32 v{vz}, 0\ns_mov_b64 s[96:97], exec\ns_mov_b64 exec, 1")
    for i, r in enumerate(regs):
        a(f"v_mov_b32 v{vd}, s{r}\nbuffer_store_dword v{vd}, v{vz}, s[{SWS}:{SWS+3}], s98 offen offset:{4*i}\ns_nop 1")
    a("s_mov_b64 exec, s[96:97]")
    a.lab(L)

def prologue(a):
    a("""
    s_cmp_ge_u32 s2, 256
    s_cbranch_scc1 L_exit
    s_load_dwordx16 s[16:31], s[0:1], 0
    s_load_dwordx8 s[32:39], s[0:1], 64
    s_load_dwordx4 s[40:43], s[0:1], 96
    s_load_dwordx2 s[44:45], s[0:1], 112
    v_lshrrev_b32 v1, 6, v0
    v_and_b32 v0, 63, v0
    s_mov_b32 s47, 0
    v_readfirstlane_b32 s3, v1
    s_waitcnt lgkmcnt(0)
    """)
    srd(a, SWS, P['ws'], 0x10000000)

SPIN_MAX = 0x20000
def spin_check(a):
    a(f"s_add_u32 s{S_SPIN}, s{S_SPIN}, 1\ns_cmp_gt_u32 s{S_SPIN}, {SPIN_MAX}\ns_cbranch_scc1 L_exit")

def wave_wait_flag(a, soff, target, vt=28, sleep=True, cmp="ge"):
    if Cfg.NOCOMM or getattr(Cfg,'WEXIT',False): return
    L = a.uniq("L_wf")
    if isinstance(soff, int): so = f"s{soff}"
    else:
        a(f"s_mov_b32 s46, {soff}"); so = "s46"
    a(f"v_mov_b32 v{vt}, 0")
    a.lab(L)
    a(f"buffer_load_dword v{vt+1}, v{vt}, s[{SWS}:{SWS+3}], {so} offen sc1")
    a("s_waitcnt vmcnt(0)")
    a(f"v_readfirstlane_b32 s4, v{vt+1}\ns_nop 1")
    Ld = a.uniq("L_wfd")
    a(f"s_cmp_ge_u32 s4, {target}\ns_cbranch_scc1 {Ld}")
    if sleep: a(f"s_sleep {3 if sleep is True else sleep}")
    spin_check(a)
    a(f"s_branch {L}")
    a.lab(Ld)

def wg_wait_flag(a, soff, target, vt=28, sleep=True):
    L = a.uniq("L_wg")
    a(f"s_cmp_lg_u32 s3, 0\ns_cbranch_scc1 {L}")
    wave_wait_flag(a, soff, target, vt, sleep=sleep)
    a.lab(L)
    a("s_barrier")

def wave_signal(a, soff, tmp=28):
    if isinstance(soff, int): so = f"s{soff}"
    else:
        a(f"s_mov_b32 s46, {soff}"); so = "s46"
    a(f"""
    s_mov_b64 s[8:9], exec
    s_mov_b64 exec, 1
    v_mov_b32 v{tmp}, 0
    v_mov_b32 v{tmp+1}, 1
    buffer_atomic_add v{tmp+1}, v{tmp}, s[{SWS}:{SWS+3}], {so} offen
    s_mov_b64 exec, s[8:9]
    """)
def signal_flag(a, soff, tmp=28):
    L = a.uniq("L_sig")
    a(f"s_cmp_lg_u32 s3, 0\ns_cbranch_scc1 {L}")
    wave_signal(a, soff, tmp)
    a.lab(L)

def init_wait(a, vt=28):
    L = a.uniq("L_iw"); Ld = a.uniq("L_iwd")
    a(f"s_cmp_lg_u32 s3, 0\ns_cbranch_scc1 {Ld}\nv_mov_b32 v{vt}, 0")
    a.lab(L)
    a(f"global_load_dword v{vt+1}, v{vt}, s[{P['dbg']}:{P['dbg']+1}] offset:16 sc1\ns_waitcnt vmcnt(0)\nv_readfirstlane_b32 s4, v{vt+1}\ns_nop 1\ns_cmp_ge_u32 s4, 32\ns_cbranch_scc1 {Ld}\ns_sleep 4")
    spin_check(a)
    a(f"s_branch {L}")
    a.lab(Ld)

def ev(a, e, val=30, sstep=70):
    if not Cfg.TRACE: return
    L = a.uniq("L_ev")
    a(f"""
    s_cmp_lg_u32 s{sstep}, {val}
    s_cbranch_scc1 {L}
    s_memrealtime s[94:95]
    s_waitcnt lgkmcnt(0)
    s_mov_b32 s{52+e}, s94
    """)
    a.lab(L)
def ev_dump(a, n, sh=68, vd=12, vz=13):
    if not Cfg.TRACE: return
    a(f"""
    s_lshl_b32 s7, s{sh}, 2
    s_add_u32 s7, s7, s3
    s_lshl_b32 s7, s7, 6
    s_add_u32 s7, s7, {0x7200000}
    v_mov_b32 v{vz}, 0
    s_mov_b64 exec, 1
    """)
    for e in range(n):
        a(f"v_mov_b32 v{vd}, s{52+e}\nbuffer_store_dword v{vd}, v{vz}, s[{SWS}:{SWS+3}], s7 offen offset:{4*e}\ns_nop 1")
    a("s_mov_b64 exec, -1")

def code_prefetch(a, label, nbytes, vt=12, end="L_exit"):
    L = a.uniq("L_pc")
    a(f"s_getpc_b64 s[10:11]")
    a.lab(L)
    a(f"""
    s_add_u32 s10, s10, {label}-{L}
    s_addc_u32 s11, s11, 0
    v_lshlrev_b32 v{vt}, 7, v0
    """) if False else None
    a(f"""
    s_add_u32 s10, s10, ({label}-{L})&0xffffffff
    s_addc_u32 s11, s11, (({label}-{L})>>32)&0xffffffff
    v_lshlrev_b32 v{vt}, 7, v0
    """)
    n = (nbytes + 8191)//8192
    for i in range(n):
        a(f"v_min_u32 v{vt+2}, {end}-{label}, v{vt}")
        a(f"global_load_dword v{vt+1}, v{vt+2}, s[10:11]")
        if i + 1 < n: a(f"v_add_u32 v{vt}, 8192, v{vt}")
```

```python
from common import *

sTB=68; sTBend=69; sXBcur=70; sXBnxt=71; sTokOff=72; sT0=73; sT1=74; sTBstep=75; sEbase=76; sPrevTB=77; sFlag=78; sRowStride=79; sColOff0=80; sColOff1=81; sEtt=82; sFlagBase=83; sWSbase=84; sJobSlice=85; sJob2Slice=86; sJob2TB=87; sJob2End=88
XB0=0; XB1=73728
W1SLEEP = 0
vTr0=2; vTr1=3; vXo0=4; vXo1=5; vAq=6
vE=10; vT=12
ACC=32; AF=96; ET=120
def Breg(kk, nt):
    i = (kk*2+nt)*4
    return 256+i if i < 256 else 224 + (i-256)

def w1_bload(a, kind, rowstride):
    a(f"""
    v_lshrrev_b32 v12, 4, v0
    v_and_b32 v13, 15, v0
    v_lshlrev_b32 v14, 2, v12
    v_xor_b32 v13, v13, v14
    v_lshlrev_b32 v13, 4, v13
    s_mov_b32 s4, {rowstride}
    v_mul_lo_u32 v12, v12, s4
    v_add_u32 v11, v12, v13
    """)
    a(f"""
    v_lshrrev_b32 v12, 5, v0         ; hi
    v_lshlrev_b32 v12, 3, v12        ; 8*hi
    v_bfe_u32 v13, v0, 2, 2          ; r
    v_add_u32 v12, v12, v13
    v_lshlrev_b32 v12, 8, v12        ; (8hi+r)*256
    v_bfe_u32 v14, v0, 4, 1          ; colhalf
    v_lshlrev_b32 v14, 1, v14
    v_bfe_u32 v15, v0, 1, 1          ; cq>>1
    v_add_u32 v14, v14, v15
    v_lshlrev_b32 v13, 2, v13        ; 4r
    v_and_b32 v15, 1, v0
    v_lshlrev_b32 v15, 3, v15        ; (cq&1)*8
    v_add_u32 v12, v12, v15
    """)
    if kind in ('KQ', 'V'):
        a(f"""
        s_and_b32 s4, s3, 1
        s_lshl_b32 s4, s4, 3
        s_lshr_b32 s5, s3, 1
        s_lshl_b32 s5, s5, 14        ; sub*16384
        v_add_u32 v16, s4, v14
        v_xor_b32 v17, v16, v13
        v_lshlrev_b32 v17, 4, v17
        v_add3_u32 v{vTr0}, v17, v12, s5
        v_add_u32 v16, 4, v16
        v_xor_b32 v17, v16, v13
        v_lshlrev_b32 v17, 4, v17
        v_add3_u32 v{vTr1}, v17, v12, s5
        """)
    else:
        a(f"""
        s_lshl_b32 s4, s3, 2
        v_add_u32 v16, s4, v14
        v_xor_b32 v17, v16, v13
        v_lshlrev_b32 v17, 4, v17
        v_add_u32 v{vTr0}, v17, v12
        v_add_u32 v{vTr1}, 16384, v{vTr0}
        """)
    NS = 5
    def issue(u):
        slot = (u % NS) * 32768
        for sub in range(2):
            for jj in range(4):
                a(f"s_lshl_b32 s5, s3, 12")
                a(f"s_add_u32 m0, s5, {slot + sub*16384 + jj*1024}")
                a(f"s_mul_i32 s4, s3, {16*rowstride}")
                a(f"s_add_u32 s4, s4, {(64*u+4*jj)*rowstride}")
                a(f"buffer_load_dwordx4 v11, s[{SB0 if sub==0 else SB1}:{(SB0 if sub==0 else SB1)+3}], s4 offen lds")
    for u in range(NS): issue(u)
    for u in range(9):
        issued = min(max(u + NS - 2, NS - 1), 8)
        n_after = (issued - u) * 8
        a(f"s_waitcnt vmcnt({n_after})")
        a("s_barrier")
        if u > 0 and u - 1 + NS <= 8:
            issue(u - 1 + NS)
        slot = (u % NS) * 32768
        a(f"v_add_u32 v18, {slot}, v{vTr0}\nv_add_u32 v19, {slot}, v{vTr1}")
        for k4 in range(4):
            kk = 4*u + k4
            for nt in range(2):
                b = Breg(kk, nt)
                for x in range(2):
                    a(f"ds_read_b64_tr_b16 {R(b+2*x,2)}, v{18+nt} offset:{(16*k4+4*x)*256}")
        a("s_waitcnt lgkmcnt(0)")
    a("s_barrier")

def w1_setup_x(a):
    a(f"""
    v_lshrrev_b32 v12, 3, v0
    s_movk_i32 s4, 1152
    v_mul_lo_u32 v12, v12, s4
    v_and_b32 v13, 7, v0              ; slot
    v_lshrrev_b32 v14, 4, v0
    v_xor_b32 v15, v13, v14
    v_lshlrev_b32 v15, 4, v15
    v_add_u32 v{vXo0}, v12, v15
    v_add_u32 v14, 4, v14
    v_xor_b32 v15, v13, v14
    v_lshlrev_b32 v15, 4, v15
    v_add_u32 v{vXo1}, v12, v15
    """)
    a(f"""
    v_and_b32 v12, 31, v0             ; i
    v_lshrrev_b32 v13, 5, v0          ; hi
    v_bfe_u32 v14, v0, 1, 3           ; f=(i>>1)&7
    v_lshlrev_b32 v12, 7, v12
    """)
    for q in range(4):
        a(f"""
        v_add_u32 v15, {2*q}, v13
        v_xor_b32 v15, v15, v14
        v_lshlrev_b32 v15, 4, v15
        v_add_u32 v{vAq+q}, v12, v15
        """)

def x_dma(a, idx):
    kc, o = idx >> 1, idx & 1
    a(f"s_add_u32 m0, s{sXBnxt}, {kc*8192 + o*1024}")
    a(f"s_add_u32 s{sT0}, s{sTokOff}, {kc*128 + o*8*1152}")
    a(f"buffer_load_dwordx4 v{vXo0+o}, s[{SA}:{SA+3}], s{sT0} offen lds")

def w1_epilogue(a, kind):
    a.nop(12)
    def store(regs4, off_s, x):
        a(f"buffer_store_dwordx4 {vr(regs4,4)}, v{vE}, s[{SWS}:{SWS+3}], s{off_s} offen offset:{x*512} sc1")
    if kind in ('KQ','V'):
        fstep = 1024 if kind == 'KQ' else 2048
        t = 0
        for tt in range(2):
            for nt in range(2):
                base = ACC + (tt*2+nt)*16
                a(f"s_add_u32 s{sT1}, s{sEbase}, {nt*fstep}")
                if tt: a(f"s_add_u32 s{sT1}, s{sT1}, s{sEtt}")
                for x in range(2):
                    d = ET + (t % 4)*4; t += 1
                    for j,rr in enumerate([base+4*x, base+4*x+2, base+8+4*x, base+8+4*x+2]):
                        a(f"v_cvt_pk_bf16_f32 v{d+j}, v{rr}, v{rr+1}")
                    store(d, sT1, x)
    else:
        t = 0
        c1 = -2.0*0.7978845608028654*1.4426950408889634
        c2 = c1*0.044715
        a(f"s_mov_b32 s6, {fb(c2)}\ns_mov_b32 s7, {fb(c1)}\nv_mov_b32 v{ET+16}, s7")
        for tt in range(2):
            g = ACC + (tt*2+0)*16; u = ACC + (tt*2+1)*16
            a(f"s_mov_b32 s{sT1}, s{sEbase}")
            if tt: a(f"s_add_u32 s{sT1}, s{sT1}, s{sEtt}")
            for grp in range(4):
                rs = [4*grp+j for j in range(4)]
                tm = [ET+20+j for j in range(4)]
                for j,rr in enumerate(rs): a(f"v_mul_f32 v{tm[j]}, v{g+rr}, v{g+rr}")
                for j,rr in enumerate(rs): a(f"v_fma_f32 v{tm[j]}, v{tm[j]}, s6, v{ET+16}")
                for j,rr in enumerate(rs): a(f"v_mul_f32 v{tm[j]}, v{tm[j]}, v{g+rr}")
                for j,rr in enumerate(rs): a(f"v_exp_f32 v{tm[j]}, v{tm[j]}")
                for j,rr in enumerate(rs): a(f"v_mul_f32 v{g+rr}, v{g+rr}, v{u+rr}")
                for j,rr in enumerate(rs): a(f"v_add_f32 v{tm[j]}, 1.0, v{tm[j]}")
                for j,rr in enumerate(rs): a(f"v_rcp_f32 v{tm[j]}, v{tm[j]}")
                a("s_nop 0")
                for j,rr in enumerate(rs): a(f"v_mul_f32 v{g+rr}, v{g+rr}, v{tm[j]}")
            for x in range(2):
                d = ET + (t % 4)*4; t += 1
                for j,rr in enumerate([g+4*x, g+4*x+2, g+8+4*x, g+8+4*x+2]):
                    a(f"v_cvt_pk_bf16_f32 v{d+j}, v{rr}, v{rr+1}")
                store(d, sT1, x)
    return 8 if kind != 'H' else 4

def w1_main(a, kind, ebase_code):
    nst = 8 if kind != 'H' else 4
    fragmul = 4096 if kind == 'KQ' else 1024
    a(f"""
    v_lshrrev_b32 v12, 5, v0
    v_lshlrev_b32 v12, 8, v12          ; hi*256
    v_and_b32 v13, 15, v0
    v_lshlrev_b32 v13, 4, v13
    v_add_u32 v12, v12, v13
    v_bfe_u32 v13, v0, 4, 1
    v_mul_u32_u24 v13, {fragmul}, v13
    v_add_u32 v{vE}, v12, v13
    """)
    w1_setup_x(a)
    init_wait(a)
    a(f"""
    s_mov_b32 s{sXBnxt}, {XB0}
    s_lshl_b32 s4, s3, 11
    s_add_u32 s{sXBnxt}, s{sXBnxt}, s4
    s_mul_i32 s{sTokOff}, s{sTB}, {64*1152}
    s_mul_i32 s5, s3, {16*1152}
    s_add_u32 s{sTokOff}, s{sTokOff}, s5
    """)
    for i in range(18): x_dma(a, i)
    a(f"""
    s_mov_b32 s{sXBcur}, {XB0}
    s_mov_b32 s{sPrevTB}, -1
    s_waitcnt vmcnt(0)
    s_barrier
    """)
    Lloop = a.uniq("L_w1loop"); Lnodma = a.uniq("L_w1x"); Ldone = a.uniq("L_w1done")
    if Cfg.STAMPS: a("s_mov_b32 s90, 0\ns_mov_b32 s91, 0\ns_mov_b32 s92, 0")
    a.lab(Lloop)
    cyc(a)
    a(f"""
    s_add_u32 s10, s{sTB}, s{sTBstep}
    s_xor_b32 s{sXBnxt}, s{sXBcur}, {XB0 ^ XB1}
    s_lshl_b32 s4, s3, 11
    s_mul_i32 s{sTokOff}, s10, {64*1152}
    s_mul_i32 s5, s3, {16*1152}
    s_add_u32 s{sTokOff}, s{sTokOff}, s5
    s_mov_b32 s11, s{sXBnxt}
    s_add_u32 s{sXBnxt}, s{sXBnxt}, s4
    """)
    for q in range(4): a(f"v_add_u32 v{ET+q}, s{sXBcur}, v{vAq+q}")
    def aread(kk):
        kc, q = kk >> 2, kk & 3
        buf = AF + (kk % 3)*8
        for tt in range(2):
            off = kc*8192 + tt*4096
            if kc >= 4: off -= 32768
            a(f"ds_read_b128 {vr(buf+4*tt,4)}, v{ET+q} offset:{off}")
    aread(0); aread(1)
    dma_i = 0
    for kk in range(36):
        if kk + 2 < 36:
            if (kk + 2) == 16:
                for q in range(4): a(f"v_add_u32 v{ET+q}, 0x8000, v{ET+q}")
            aread(kk + 2)
            a("s_waitcnt lgkmcnt(4)")
        elif kk + 1 < 36:
            a("s_waitcnt lgkmcnt(2)")
        else:
            a("s_waitcnt lgkmcnt(0)")
        buf = AF + (kk % 3)*8
        for tt in range(2):
            for nt in range(2):
                acc = ACC + (tt*2+nt)*16
                c = "0" if kk == 0 else vr(acc,16)
                if kind == 'V':
                    a(f"v_mfma_f32_32x32x16_bf16 {vr(acc,16)}, {vr(buf+4*tt,4)}, {R(Breg(kk,nt),4)}, {c}")
                else:
                    a(f"v_mfma_f32_32x32x16_bf16 {vr(acc,16)}, {R(Breg(kk,nt),4)}, {vr(buf+4*tt,4)}, {c}")
            if kk % 2 == 0 and tt == 0 and dma_i < 18:
                x_dma(a, dma_i); dma_i += 1
    assert dma_i == 18
    cyc(a, 90)
    ebase_code(a)
    w1_epilogue(a, kind)
    cyc(a, 91)
    a(f"s_waitcnt vmcnt({nst})")
    a("s_barrier")
    cyc(a, 92)
    if W1SLEEP and getattr(a, '_w1job2', True): a(f's_sleep {W1SLEEP}')
    Lns = a.uniq("L_ns")
    a(f"s_cmp_eq_u32 s{sPrevTB}, -1\ns_cbranch_scc1 {Lns}")
    a(f"s_lshl_b32 s{sFlag}, s{sPrevTB}, 7\ns_add_u32 s{sFlag}, s{sFlag}, s{sFlagBase}")
    signal_flag(a, sFlag)
    a.lab(Lns)
    a(f"""
    s_mov_b32 s{sPrevTB}, s{sTB}
    s_mov_b32 s{sTB}, s10
    s_mov_b32 s{sXBcur}, s11
    s_cmp_lt_u32 s{sTB}, s{sTBend}
    s_cbranch_scc1 {Lloop}
    s_waitcnt vmcnt(0)
    s_barrier
    s_lshl_b32 s{sFlag}, s{sPrevTB}, 7
    s_add_u32 s{sFlag}, s{sFlag}, s{sFlagBase}
    """)
    signal_flag(a, sFlag)
    a("s_waitcnt vmcnt(0)")
    cyc_out(a, 16, [90,91,92])


def w1_variant(a, kind):
    if kind in ('KQ','V'):
        a(f"s_lshl_b32 s13, s12, 9")
        srd(a, SB0, 10, 576*8192, add="s13")
        a(f"s_add_u32 s13, s13, 256")
        srd(a, SB1, 10, 576*8192, add="s13")
        srd(a, SA, P['x'], 2048*1152)
        w1_bload(a, kind, 8192)
        stamp(a, 1)
        def eb(a):
            sh = 1 if kind == 'KQ' else 2
            a(f"""
            s_lshl_b32 s4, s{sTB}, 6
            s_lshl_b32 s5, s12, 1
            s_add_u32 s4, s4, s5
            s_lshr_b32 s5, s3, 1
            s_add_u32 s4, s4, s5
            s_lshl_b32 s4, s4, 3
            s_and_b32 s5, s3, 1
            s_lshl_b32 s5, s5, {sh}
            s_add_u32 s4, s4, s5
            s_lshl_b32 s4, s4, 10
            s_add_u32 s{sEbase}, s4, s{sWSbase}
            s_mov_b32 s{sEtt}, {32*8*1024}
            """)
        w1_main(a, kind, eb)
    else:
        a(f"s_lshl_b32 s13, s12, 8")
        srd(a, SB0, P['Wg'], 576*9216, add="s13")
        srd(a, SB1, P['Wu'], 576*9216, add="s13")
        srd(a, SA, P['x'], 2048*1152)
        w1_bload(a, 'H', 9216)
        stamp(a, 1)
        def eb(a):
            a(f"""
            s_mul_i32 s4, s{sTB}, {2*144}
            s_lshl_b32 s5, s12, 2
            s_add_u32 s4, s4, s5
            s_add_u32 s4, s4, s3
            s_lshl_b32 s4, s4, 11
            s_add_u32 s{sEbase}, s4, {WS_H}
            s_mov_b32 s{sEtt}, {144*2*1024}
            """)
        w1_main(a, 'H', eb)

def w1_phase(a):
    a(f"""
    s_mul_hi_u32 s4, s14, 0x24924925
    s_mul_i32 s5, s4, 7
    s_sub_u32 s5, s14, s5
    s_mov_b32 s{sJobSlice}, s4
    s_mov_b32 s{sTB}, s5
    s_mov_b32 s{sTBend}, 32
    s_mov_b32 s{sTBstep}, 7
    s_lshr_b32 s4, s14, 2
    s_add_u32 s4, s4, 32
    s_cmp_lt_u32 s14, 208
    s_cselect_b32 s{sJob2Slice}, s4, -1
    s_and_b32 s{sJob2TB}, s14, 3
    s_mov_b32 s{sJob2End}, 32
    L_w1_disp:
    s_cmp_ge_u32 s{sJobSlice}, 68
    s_cbranch_scc1 L_w1_q
    s_cmp_ge_u32 s{sJobSlice}, 32
    s_cbranch_scc1 L_w1_h
    s_lshr_b32 s12, s{sJobSlice}, 1
    s_mov_b32 s{sFlagBase}, {F_KV}
    s_and_b32 s4, s{sJobSlice}, 1
    s_cmp_eq_u32 s4, 1
    s_cbranch_scc1 L_w1_v
    s_mov_b32 s10, s{P['Wk']}
    s_mov_b32 s11, s{P['Wk']+1}
    s_mov_b32 s{sWSbase}, {WS_KX}
    s_branch L_w1_kq
    L_w1_q:
    s_sub_u32 s12, s{sJobSlice}, 68
    s_mov_b32 s10, s{P['Wq']}
    s_mov_b32 s11, s{P['Wq']+1}
    s_mov_b32 s{sWSbase}, {WS_QX}
    s_mov_b32 s{sFlagBase}, {F_Q}
    L_w1_kq:
    """)
    w1_variant(a, 'KQ')
    a("s_branch L_w1_next")
    a.lab("L_w1_v")
    a(f"s_mov_b32 s10, s{P['Wv']}\ns_mov_b32 s11, s{P['Wv']+1}\ns_mov_b32 s{sWSbase}, {WS_VX}")
    w1_variant(a, 'V')
    a("s_branch L_w1_next")
    a.lab("L_w1_h")
    a(f"s_sub_u32 s12, s{sJobSlice}, 32\ns_mov_b32 s{sFlagBase}, {F_H}")
    w1_variant(a, 'H')
    a.lab("L_w1_next")
    a(f"""
    s_barrier
    s_cmp_eq_u32 s{sJob2Slice}, -1
    s_cbranch_scc1 L_w1_done
    s_mov_b32 s{sJobSlice}, s{sJob2Slice}
    s_mov_b32 s{sTB}, s{sJob2TB}
    s_mov_b32 s{sTBend}, s{sJob2End}
    s_mov_b32 s{sTBstep}, 4
    s_mov_b32 s{sJob2Slice}, -1
    s_branch L_w1_disp
    L_w1_done:
    """)
```

```python
from common import *

sGrp=68; sSl=69; sSeg=70; sAoff=71; sT0=72; sT1=73; sT2=74
vL16=2; vTrA=3
vDm=6; vRed=7; vOutOff=8; vGoff=9
ACC2=12
LAND=36
TMP=76
def B2(ks, nt, KS):
    i = (ks*3+nt)*4
    return 256+i if i < 256 else (512 - KS*12) + (i-256)

def w2_consts(a):
    a(f"""
    v_lshlrev_b32 v{vL16}, 4, v0
    v_lshrrev_b32 v12, 3, v0
    v_and_b32 v13, 7, v0
    v_bfe_u32 v14, v0, 4, 2
    v_lshlrev_b32 v14, 1, v14
    v_xor_b32 v13, v13, v14
    v_lshlrev_b32 v13, 4, v13
    s_movk_i32 s4, 1152
    v_mul_lo_u32 v12, v12, s4
    v_add_u32 v{vDm}, v12, v13
    v_lshrrev_b32 v12, 2, v0          ; 4g + r  (= l>>2)
    v_bfe_u32 v13, v12, 1, 2
    v_lshlrev_b32 v13, 1, v13         ; swz
    v_lshlrev_b32 v12, 7, v12
    v_and_b32 v14, 1, v0
    v_lshlrev_b32 v14, 3, v14
    v_add_u32 v12, v12, v14
    s_mul_i32 s4, s3, 40960
    v_add_u32 v12, s4, v12
    v_bfe_u32 v14, v0, 1, 1
    """)
    for nt in range(3):
        a(f"""
        v_add_u32 v15, {2*nt}, v14
        v_xor_b32 v15, v15, v13
        v_lshlrev_b32 v15, 4, v15
        v_add_u32 v{vTrA+nt}, v12, v15
        """)

def w2_bload(a, KS, wptr, nrows):
    a(f"s_mul_i32 s13, s{sSl}, 96")
    srd(a, SB0, P[wptr], nrows*1152, add="s13")
    a(f"s_sub_u32 s{SB0+2}, s{SB0+2}, s13")
    NU = KS // 2
    NS = 5
    a(f"s_mul_i32 s12, s3, {KS*32*1152}")
    a(f"s_mul_i32 s11, s3, 40960")
    def issue(u):
        for jj in range(8):
            a(f"s_add_u32 m0, s11, {(u % NS)*8192 + jj*1024}")
            a(f"s_add_u32 s4, s12, {(64*u + 8*jj)*1152}")
            a(f"buffer_load_dwordx4 v{vDm}, s[{SB0}:{SB0+3}], s4 offen lds")
    for u in range(min(NS, NU)): issue(u)
    for u in range(NU):
        issued = min(u + NS - 1, NU - 1)
        a(f"s_waitcnt vmcnt({(issued - u)*8})")
        for k2 in range(2):
            ks = 2*u + k2
            for nt in range(3):
                b = B2(ks, nt, KS)
                for x in range(2):
                    a(f"ds_read_b64_tr_b16 {R(b+2*x,2)}, v{vTrA+nt} offset:{(u % NS)*8192 + (32*k2+16*x)*128}")
        a("s_waitcnt lgkmcnt(0)")
        if u + NS < NU: issue(u + NS)

DEEP = False
RED = 0
def w2_gemm(a, KS, abase, segstride, D=5, deep=False):
    a(f"""
    s_mul_i32 s{sAoff}, s{sSeg}, {segstride}
    s_mul_i32 s4, s3, {KS*2048}
    s_add_u32 s{sAoff}, s{sAoff}, s4
    s_add_u32 s{sAoff}, s{sAoff}, {abase}
    """)
    def aload(ks):
        buf = LAND + (ks % D)*8
        a(f"s_add_u32 s{sT0}, s{sAoff}, {ks*2048}")
        a(f"buffer_load_dwordx4 {vr(buf,4)}, v{vL16}, s[{SWS}:{SWS+3}], s{sT0} offen sc1")
        a(f"buffer_load_dwordx4 {vr(buf+4,4)}, v{vL16}, s[{SWS}:{SWS+3}], s{sT0} offen offset:1024 sc1")
    def mfmas(ks, buf):
        for tt in range(2):
            for nt in range(3):
                acc = ACC2 + (tt*3+nt)*4
                c = "0" if ks == 0 else vr(acc,4)
                a(f"v_mfma_f32_16x16x32_bf16 {vr(acc,4)}, {R(B2(ks,nt,KS),4)}, {vr(buf+4*tt,4)}, {c}")
    if deep:
        NR = 11; NL = 20
        assert KS == 32 and D == 11
        for ks in range(NR): aload(ks)
        a(f"s_mul_i32 s5, s3, 40960\nv_add_u32 v{vRed}, s5, v{vL16}")
        for ks in range(NR, NR + NL):
            a(f"s_add_u32 m0, s5, {(ks-NR)*2048}\ns_add_u32 s{sT0}, s{sAoff}, {ks*2048}")
            a(f"buffer_load_dwordx4 v{vL16}, s[{SWS}:{SWS+3}], s{sT0} offen sc1 lds\nbuffer_load_dwordx4 v{vL16}, s[{SWS}:{SWS+3}], s{sT0} offen offset:1024 sc1 lds")
        for ks in range(NR):
            extra = 2 if ks > 0 else 0
            a(f"s_waitcnt vmcnt({(NR-1-ks)*2 + NL*2 + extra})")
            mfmas(ks, LAND + ks*8)
            if ks == 0:
                a(f"s_add_u32 s{sT0}, s{sAoff}, {31*2048}")
                a(f"buffer_load_dwordx4 {vr(LAND,4)}, v{vL16}, s[{SWS}:{SWS+3}], s{sT0} offen sc1\nbuffer_load_dwordx4 {vr(LAND+4,4)}, v{vL16}, s[{SWS}:{SWS+3}], s{sT0} offen offset:1024 sc1")
        def lread(ks):
            buf = LAND + 8 + ((ks - NR) % 4)*8
            a(f"ds_read_b128 {vr(buf,4)}, v{vRed} offset:{(ks-NR)*2048}\nds_read_b128 {vr(buf+4,4)}, v{vRed} offset:{(ks-NR)*2048+1024}")
        for ks in range(NR, NR + NL):
            a(f"s_waitcnt vmcnt({(NR+NL-1-ks)*2 + 2})")
            lread(ks)
            if ks > NR:
                a("s_waitcnt lgkmcnt(2)")
                mfmas(ks - 1, LAND + 8 + ((ks - 1 - NR) % 4)*8)
        a("s_waitcnt lgkmcnt(0)")
        mfmas(NR + NL - 1, LAND + 8 + ((NL - 1) % 4)*8)
        a("s_waitcnt vmcnt(0)")
        mfmas(31, LAND)
        a("s_barrier")
    else:
        for ks in range(D - 1): aload(ks)
        for ks in range(KS):
            if ks + D - 1 < KS:
                aload(ks + D - 1)
                a(f"s_waitcnt vmcnt({2*(D-1)})")
            else:
                a(f"s_waitcnt vmcnt({2*(KS-1-ks)})")
            mfmas(ks, LAND + (ks % D)*8)
    a(f"s_mul_i32 s4, s3, 6144\nv_add_u32 v{vRed}, s4, v{vL16}")
    a.nop(8)
    for t in range(6):
        a(f"ds_write_b128 v{vRed}, {vr(ACC2+4*t,4)} offset:{RED + t*1024}")
    a("s_waitcnt lgkmcnt(0)\ns_barrier")
    a(f"s_lshl_b32 s4, s3, 10\nv_add_u32 v{vRed}, s4, v{vL16}")
    for p in range(4):
        a(f"ds_read_b128 {vr(LAND+4*p,4)}, v{vRed} offset:{RED + p*6144}")
    for p in range(4):
        a(f"ds_read_b128 {vr(LAND+16+4*p,4)}, v{vRed} offset:{RED + p*6144 + 4096}")
    a("s_waitcnt lgkmcnt(0)")
    for half in range(2):
        b = LAND + 16*half
        for r in range(4):
            a(f"v_add_f32 v{b+r}, v{b+r}, v{b+4+r}")
            a(f"v_add_f32 v{b+8+r}, v{b+8+r}, v{b+12+r}")
        for r in range(4):
            a(f"v_add_f32 v{ACC2+4*half+r}, v{b+r}, v{b+8+r}")
    a("s_barrier")

def ffn2_phase(a):
    w2_consts(a)
    w2_bload(a, 36, 'Wd', 4608)
    stamp(a, 3)
    a(f"s_mov_b32 s{sSeg}, s{sGrp}")
    a.lab("L_ffn2_loop")
    a(f"s_lshr_b32 s5, s{sSeg}, 1\ns_lshl_b32 s5, s5, 7\ns_add_u32 s{sT1}, s5, {F_H}")
    wg_wait_flag(a, sT1, 36)
    w2_gemm(a, 36, WS_H, 144*2048)
    a(f"""
    s_mul_i32 s4, s{sSeg}, 12
    s_add_u32 s4, s4, s{sSl}
    s_mul_i32 s4, s4, 6144
    s_lshl_b32 s5, s3, 10
    s_add_u32 s4, s4, s5
    s_add_u32 s{sT1}, s4, {WS_BB}
    buffer_store_dwordx4 {vr(ACC2,4)}, v{vL16}, s[{SWS}:{SWS+3}], s{sT1} offen sc1
    s_cmp_ge_u32 s3, 2
    s_cbranch_scc1 L_ffn2_ns
    s_add_u32 s{sT1}, s{sT1}, 4096
    buffer_store_dwordx4 {vr(ACC2+4,4)}, v{vL16}, s[{SWS}:{SWS+3}], s{sT1} offen sc1
    L_ffn2_ns:
    s_add_u32 s{sSeg}, s{sSeg}, 18
    s_cmp_lt_u32 s{sSeg}, 64
    s_cbranch_scc1 L_ffn2_loop
    s_waitcnt vmcnt(0)
    s_barrier
    """)

tQ=12
tK=44
tS=76
tKM=100
tVM=116
tT=124
C1 = (128 ** -0.5) * 1.4426950408889634
def t4_task(a, Ldone):
    sF=sT1
    a(f"""
    s_lshr_b32 s5, s{sSeg}, 1
    s_lshl_b32 s5, s5, 7
    s_add_u32 s{sF}, s5, {F_KV}
    """)
    wave_wait_flag(a, sF, 32, vt=tT)
    a(f"s_add_u32 s{sF}, s5, {F_Q}")
    wave_wait_flag(a, sF, 16, vt=tT)
    a(f"""
    s_lshl_b32 s4, s{sSeg}, 5
    s_add_u32 s4, s4, s15             ; s*32+h
    s_lshl_b32 s{sT0}, s4, 13         ; *8192
    s_add_u32 s{sT2}, s{sT0}, {WS_QX}
    """)
    for i in range(8):
        if i == 4: a(f"s_add_u32 s{sT2}, s{sT2}, 4096")
        a(f"buffer_load_dwordx4 {vr(tQ+4*i,4)}, v{vL16}, s[{SWS}:{SWS+3}], s{sT2} offen offset:{(i%4)*1024} sc1")
    a(f"s_add_u32 s{sT2}, s{sT0}, {WS_KX}")
    for i in range(8):
        if i == 4: a(f"s_add_u32 s{sT2}, s{sT2}, 4096")
        a(f"buffer_load_dwordx4 {vr(tK+4*i,4)}, v{vL16}, s[{SWS}:{SWS+3}], s{sT2} offen offset:{(i%4)*1024} sc1")
    a("s_waitcnt vmcnt(0)")
    for t in range(2):
        for tt in range(2):
            if t > tt: continue
            d = tS + ((1+t)*2+tt)*4
            for ks in range(4):
                c = "0" if ks == 0 else vr(d,4)
                a(f"v_mfma_f32_16x16x32_bf16 {vr(d,4)}, {vr(tK+(t*4+ks)*4,4)}, {vr(tQ+(tt*4+ks)*4,4)}, {c}")
    a(f"s_nop 7\ns_add_u32 s{sT2}, s{sT0}, {WS_VX}")
    for i in range(8):
        if i == 4: a(f"s_add_u32 s{sT2}, s{sT2}, 4096")
        a(f"buffer_load_dwordx4 {vr(tK+4*i,4)}, v{vL16}, s[{SWS}:{SWS+3}], s{sT2} offen offset:{(i%4)*1024} sc1")
    a(f"s_lshl_b32 s5, s15, 7\ns_add_u32 s{sF}, s5, {F_PROG}\ns_add_u32 s7, s{sSeg}, 1\nv_mov_b32 v{tT}, 0")
    Lw = a.uniq("L_pg"); Ld = a.uniq("L_pgd"); Ls = a.uniq("L_pgs")
    a.lab(Lw)
    a(f"buffer_load_dword v{tKM}, v{tT}, s[{SWS}:{SWS+3}], s{sF} offen sc1\ns_waitcnt vmcnt(0)")
    a(f"v_readfirstlane_b32 s4, v{tKM}\ns_nop 1")
    a(f"s_cmp_ge_u32 s4, s7\ns_cbranch_scc1 {Ld}")
    spin_check(a)
    a(f"s_sub_u32 s4, s7, s4\ns_cmp_le_u32 s4, 2\ns_cbranch_scc1 {Ls}\ns_sleep 48\ns_branch {Lw}")
    a.lab(Ls)
    a(f"s_sleep 1\ns_branch {Lw}")
    a.lab(Ld)
    stamp(a, 8, vd=tT, vz=tT+1)
    a(f"""
    s_lshl_b32 s4, s{sSeg}, 5
    s_add_u32 s4, s4, s15
    s_lshl_b32 s5, s4, 12
    s_add_u32 s{sT2}, s5, {WS_KM}
    """)
    for w_ in range(4):
        a(f"buffer_load_dwordx4 {vr(tKM+4*w_,4)}, v{vL16}, s[{SWS}:{SWS+3}], s{sT2} offen offset:{w_*1024} sc1")
    a(f"""
    s_lshl_b32 s5, s3, 12
    s_add_u32 s5, s5, 32768
    v_and_b32 v{tT}, 15, v0
    v_lshlrev_b32 v{tT}, 5, v{tT}
    v_lshrrev_b32 v{tT+1}, 4, v0
    v_lshlrev_b32 v{tT+1}, 3, v{tT+1}
    v_add3_u32 v{tT}, v{tT}, v{tT+1}, s5
    v_lshrrev_b32 v{tT+1}, 2, v0
    v_lshlrev_b32 v{tT+1}, 5, v{tT+1}
    v_and_b32 v{tT+2}, 3, v0
    v_lshlrev_b32 v{tT+2}, 3, v{tT+2}
    v_add3_u32 v{tT+1}, v{tT+1}, v{tT+2}, s5
    s_waitcnt vmcnt(0)
    """)
    for et in range(8): a(f"v_mov_b32 v{tVM+et}, v{tKM + 4*(et>>1) + 2*(et&1) + 1}")
    for w_ in range(4):
        a(f"ds_write_b64 v{tT}, {vr(tKM+4*w_,2)} offset:{w_*1024}\nds_write_b64 v{tT}, {vr(tKM+4*w_+2,2)} offset:{w_*1024+512}")
    a("s_waitcnt lgkmcnt(0)")
    for ks in range(4):
        for x2 in range(2):
            a(f"ds_read_b64_tr_b16 {vr(tKM+4*ks+2*x2,2)}, v{tT+1} offset:{(32*ks+16*x2)*32}")
    a("s_waitcnt lgkmcnt(0)")
    for tt in range(2):
        d = tS + tt*4
        for ks in range(4):
            c = "0" if ks == 0 else vr(d,4)
            a(f"v_mfma_f32_16x16x32_bf16 {vr(d,4)}, {vr(tKM+ks*4,4)}, {vr(tQ+(tt*4+ks)*4,4)}, {c}")
    a.nop(8)
    a(f"""
    v_lshrrev_b32 v{tT}, 4, v0
    v_lshlrev_b32 v{tT}, 2, v{tT}
    v_and_b32 v{tT+1}, 15, v0
    v_sub_u32 v{tT}, v{tT}, v{tT+1}
    v_mov_b32 v{tT+1}, 0xff800000
    """)
    for tt in range(2):
        d = tS + ((1+tt)*2+tt)*4
        for r in range(4):
            a(f"v_cmp_lt_i32 vcc, {-r}, v{tT}\ns_nop 1\nv_cndmask_b32 v{d+r}, v{d+r}, v{tT+1}, vcc")
    a(f"s_mov_b32 s6, {fb(C1)}")
    for tt in range(2):
        sm = tS + tt*4; s1 = tS + (2+tt)*4; s2 = tS + (4+tt)*4
        vals = [sm, sm+1, s1, s1+1, s1+2, s1+3] + ([s2, s2+1, s2+2, s2+3] if tt == 1 else [])
        mx = tT; t2 = tT+1
        a(f"v_max3_f32 v{mx}, v{vals[0]}, v{vals[1]}, v{vals[2]}")
        rest = vals[3:]
        while len(rest) >= 2:
            a(f"v_max3_f32 v{mx}, v{mx}, v{rest[0]}, v{rest[1]}"); rest = rest[2:]
        if rest: a(f"v_max_f32 v{mx}, v{mx}, v{rest[0]}")
        for sw in ("v_permlane16_swap_b32", "v_permlane32_swap_b32"):
            a(f"v_mov_b32 v{t2}, v{mx}\ns_nop 1\n{sw} v{mx}, v{t2}\ns_nop 1\nv_max_f32 v{mx}, v{mx}, v{t2}")
        a(f"v_mul_f32 v{mx}, s6, v{mx}")
        for v in vals: a(f"v_fma_f32 v{v}, v{v}, s6, -v{mx}")
        for v in vals: a(f"v_exp_f32 v{v}, v{v}")
        a("s_nop 0")
        p = tQ + tt*8
        a(f"v_cvt_pk_bf16_f32 v{p}, v{sm}, v{sm+1}\nv_mov_b32 v{p+1}, 0")
        a(f"v_cvt_pk_bf16_f32 v{p+4}, v{s1}, v{s1+1}\nv_cvt_pk_bf16_f32 v{p+5}, v{s1+2}, v{s1+3}")
        if tt == 1:
            a(f"v_cvt_pk_bf16_f32 v{p+6}, v{s2}, v{s2+1}\nv_cvt_pk_bf16_f32 v{p+7}, v{s2+2}, v{s2+3}")
        else:
            a(f"v_mov_b32 v{p+6}, 0\nv_mov_b32 v{p+7}, 0")
    for j in range(4): a(f"v_mov_b32 v{tKM+j}, 0x3f803f80")
    a("s_waitcnt vmcnt(0)")
    for et in range(8):
        a(f"v_mov_b32 v{tQ+16+2*et}, v{tVM+et}\nv_mov_b32 v{tQ+17+2*et}, 0")
    a("s_nop 1")
    a(f"""
    s_lshl_b32 s4, s{sSeg}, 7          ; s*128
    s_lshl_b32 s5, s15, 2              ; h*4
    s_add_u32 s4, s4, s5
    s_lshl_b32 s4, s4, 11              ; *2048
    s_add_u32 s{sT2}, s4, {WS_OX}
    """)
    for tt in range(2):
        p = tQ + tt*8
        lreg = tKM + 4
        a(f"v_mfma_f32_16x16x32_bf16 {vr(lreg,4)}, {vr(tKM,4)}, {vr(p+4,4)}, 0")
        for half in range(2):
            for e4 in range(4):
                et = 4*half + e4
                d = tS + 4*e4
                a(f"v_mfma_f32_16x16x32_bf16 {vr(d,4)}, {vr(tK+4*et,4)}, {vr(p+4,4)}, 0")
            if half == 0:
                a(f"v_mfma_f32_16x16x16_bf16 {vr(lreg,4)}, {vr(tKM,2)}, {vr(p,2)}, {vr(lreg,4)}")
            for e4 in range(4):
                et = 4*half + e4
                d = tS + 4*e4
                a(f"v_mfma_f32_16x16x16_bf16 {vr(d,4)}, {vr(tQ+16+2*et,2)}, {vr(p,2)}, {vr(d,4)}")
            a.nop(8)
            if half == 0:
                a(f"v_rcp_f32 v{tT}, v{lreg}\ns_nop 0")
            for j in range(16): a(f"v_mul_f32 v{tS+j}, v{tS+j}, v{tT}")
            for k2 in range(2):
                d = tS + 16 + 4*k2
                s = tS + 8*k2
                for j in range(4): a(f"v_cvt_pk_bf16_f32 v{d+j}, v{s+2*j}, v{s+2*j+1}")
                ksp = 2*half + k2
                off = ksp*2048 + tt*1024
                if off >= 4096:
                    a(f"s_add_u32 s{sT1}, s{sT2}, {off & ~4095}")
                    a(f"buffer_store_dwordx4 {vr(d,4)}, v{vL16}, s[{SWS}:{SWS+3}], s{sT1} offen offset:{off & 4095} sc1")
                else:
                    a(f"buffer_store_dwordx4 {vr(d,4)}, v{vL16}, s[{SWS}:{SWS+3}], s{sT2} offen offset:{off} sc1")
            a("s_nop 1")
    a("s_waitcnt vmcnt(0)")
    a(f"s_lshl_b32 s5, s{sSeg}, 7\ns_add_u32 s{sT1}, s5, {F_O}")
    wave_signal(a, sT1, tmp=tT)

def t5_phase(a):
    w2_consts(a)
    w2_bload(a, 32, 'Wo', 4096)
    stamp(a, 5)
    srd(a, SOUT, P['out'], 2048*1152)
    a("s_barrier")
    wg_wait_flag(a, str(F_G), 8)
    a(f"s_mov_b32 s{sSeg}, s{sGrp}")
    a.lab("L_t5_loop")
    a(f"""
    s_lshl_b32 s15, s{sSl}, 2
    s_add_u32 s15, s15, s3
    s_cmp_ge_u32 s15, 32
    s_cbranch_scc1 L_t4_skip
    """)
    t4_task(a, None)
    a.lab("L_t4_skip")
    stamp(a, 9, vd=76, vz=77)
    a(f"s_lshl_b32 s5, s{sSeg}, 7\ns_add_u32 s{sT1}, s5, {F_O}")
    wg_wait_flag(a, sT1, 32, vt=76)
    stamp(a, 10, vd=76, vz=77)
    w2_gemm(a, 32, WS_OX, 128*2048, D=11, deep=DEEP)
    stamp(a, 11, vd=76, vz=77)
    for which in range(2):
        Lsk = a.uniq("L_t5sk")
        if which == 1: a(f"s_cmp_ge_u32 s3, 2\ns_cbranch_scc1 {Lsk}")
        a(f"""
        s_add_u32 s5, s3, {4*which}        ; tile
        s_cmp_ge_u32 s5, 3
        s_cselect_b32 s6, 1, 0             ; tt
        s_mul_i32 s7, s6, 3
        s_sub_u32 s7, s5, s7               ; nt
        s_mul_i32 s4, s{sSeg}, 12
        s_add_u32 s4, s4, s{sSl}
        s_mul_i32 s4, s4, 6144
        s_lshl_b32 s9, s5, 10
        s_add_u32 s4, s4, s9
        s_add_u32 s{sT1}, s4, {WS_BB}
        buffer_load_dwordx4 {vr(LAND,4)}, v{vL16}, s[{SWS}:{SWS+3}], s{sT1} offen sc1
        s_lshl_b32 s4, s{sSeg}, 5
        s_lshl_b32 s9, s6, 4
        s_add_u32 s4, s4, s9
        s_lshl_b32 s9, s4, 2
        s_add_u32 s{sT2}, s9, {WS_G}
        v_and_b32 v{TMP}, 15, v0
        v_lshlrev_b32 v{TMP+1}, 2, v{TMP}
        buffer_load_dword v{TMP+2}, v{TMP+1}, s[{SWS}:{SWS+3}], s{sT2} offen sc1
        s_movk_i32 s9, 1152
        v_mul_lo_u32 v{TMP}, v{TMP}, s9
        v_lshrrev_b32 v{TMP+1}, 4, v0
        v_lshlrev_b32 v{TMP+1}, 3, v{TMP+1}   ; 4g*2 bytes
        v_add_u32 v{TMP}, v{TMP}, v{TMP+1}
        s_mul_i32 s4, s4, 1152
        s_mul_i32 s9, s{sSl}, 96
        s_add_u32 s4, s4, s9
        s_lshl_b32 s9, s7, 5
        s_add_u32 s{sT1}, s4, s9
        s_waitcnt vmcnt(0)
        """)
        ac = ACC2 + 4*which
        for r in range(4):
            a(f"v_sub_f32 v{ac+r}, v{ac+r}, v{LAND+r}\nv_fma_f32 v{ac+r}, v{ac+r}, v{TMP+2}, v{LAND+r}")
        a(f"v_cvt_pk_bf16_f32 v{ac}, v{ac}, v{ac+1}\nv_cvt_pk_bf16_f32 v{ac+1}, v{ac+2}, v{ac+3}")
        a(f"buffer_store_dwordx2 {vr(ac,2)}, v{TMP}, s[{SOUT}:{SOUT+3}], s{sT1} offen sc1")
        if which == 1: a.lab(Lsk)
    a(f"""
    s_add_u32 s{sSeg}, s{sSeg}, 18
    s_cmp_lt_u32 s{sSeg}, 64
    s_cbranch_scc1 L_t5_loop
    """)

def gate_task(a):
    srd(a, SA, P['x'], 2048*1152)
    a(f"""
    s_lshl_b32 s4, s15, 8
    s_lshl_b32 s5, s3, 6
    s_add_u32 s12, s4, s5
    v_add_u32 v2, s12, v0
    s_movk_i32 s4, 1152
    v_mul_lo_u32 v3, v2, s4
    v_mov_b32 v4, 0
    v_mov_b32 v7, 0
    """)
    for grp in range(9):
        a(f"s_load_dwordx16 s[68:83], s[{P['gw']}:{P['gw']+1}], {grp*128}\ns_load_dwordx16 s[84:99], s[{P['gw']}:{P['gw']+1}], {grp*128+64}")
        for c in range(8):
            a(f"buffer_load_dwordx4 {vr(8+4*c,4)}, v3, s[{SA}:{SA+3}], 0 offen offset:{grp*128 + c*16}")
        a("s_waitcnt vmcnt(0) lgkmcnt(0)")
        for c in range(8):
            for j in range(4):
                sg = 68+4*c+j; vx = 8+4*c+j
                a(f"s_lshl_b32 s4, s{sg}, 16\ns_and_b32 s5, s{sg}, 0xffff0000")
                a(f"v_lshlrev_b32 v5, 16, v{vx}\nv_and_b32 v6, 0xffff0000, v{vx}")
                a(f"v_fma_f32 v4, v5, s4, v4\nv_fma_f32 v7, v6, s5, v7")
    a("v_add_f32 v4, v4, v7")
    a(f"""
    v_mul_f32 v4, {fb(-1.4426950408889634)}, v4
    v_exp_f32 v4, v4
    s_nop 0
    v_add_f32 v4, 1.0, v4
    v_rcp_f32 v4, v4
    v_lshlrev_b32 v2, 2, v2
    s_mov_b32 s4, {WS_G}
    s_nop 0
    buffer_store_dword v4, v2, s[{SWS}:{SWS+3}], s4 offen sc1
    s_waitcnt vmcnt(0)
    s_barrier
    """)
    signal_flag(a, str(F_G))
```

```python
import sys
from asmlib import *
from layout import *
from common import *
import w1, w2, chain
from w1 import *

NAME = "gated_mix__memory_aug_recurrent_mem_tr__glu_gated_geglu__prompt"
HDR = open("cdna_kernels/%s.s.ref" % NAME).read().split("; @launch")[0].split("; Override launch")[0]

WPF = [('Wq', 576*8192)]
def workers(a):
    a.lab('L_wstart')
    a("""
    s_lshr_b32 s15, s2, 3            ; b>>3
    s_and_b32 s4, s2, 7
    s_sub_u32 s4, s4, 1
    s_lshl_b32 s14, s4, 5
    s_add_u32 s14, s14, s15
    """)
    stamp(a, 0)
    if WPF:
        from common import srd, P, SA
        for nm, size in WPF:
            srd(a, SA, P[nm], size)
            per = (size // 224 + 4095) // 4096 * 4096
            a(f"s_mul_i32 s4, s14, {per}\ns_lshl_b32 s5, s3, 10\ns_add_u32 s4, s4, s5\nv_lshlrev_b32 v28, 4, v0")
            for k in range(per // 4096):
                a(f"buffer_load_dword v29, v28, s[{SA}:{SA+3}], s4 offen\ns_add_u32 s4, s4, 4096")
    if chain.CODEPF2:
        Lc = a.uniq("L_cpfw")
        a(f"s_cmp_lg_u32 s3, 3\ns_cbranch_scc1 {Lc}")
        code_prefetch(a, "L_wstart", 65536, vt=28, end="L_chain")
        a.lab(Lc)
    if getattr(Cfg,'WSPIN',False):
        a('s_mov_b32 s70, 0\nL_wspin:\ns_sleep 32\ns_add_u32 s70, s70, 1\ns_cmp_lt_u32 s70, 160\ns_cbranch_scc1 L_wspin\ns_branch L_exit')
    w1_phase(a)
    stamp(a, 2)
    if getattr(Cfg,'W1ONLY',False): a('s_branch L_exit')
    a(f"""
    s_cmp_ge_u32 s14, 216
    s_cbranch_scc1 L_gate
    s_mul_hi_u32 s{w2.sGrp}, s14, 0x15555556      ; wid/12
    s_mul_i32 s4, s{w2.sGrp}, 12
    s_sub_u32 s{w2.sSl}, s14, s4
    """)
    w2.ffn2_phase(a)
    stamp(a, 4)
    w2.t5_phase(a)
    stamp(a, 6)
    a("s_branch L_exit")
    a.lab("L_gate")
    a("s_sub_u32 s15, s14, 216")
    w2.gate_task(a)

def build(parts):
    a = A()
    prologue(a)
    a("s_and_b32 s4, s2, 7\ns_cmp_eq_u32 s4, 0\ns_cbranch_scc1 L_chain")
    if Cfg.NOCOMM or getattr(Cfg,'WEXIT',False): a('s_branch L_exit')
    workers(a)
    a("s_branch L_exit")
    a.lab("L_chain")
    chain.chain(a)
    a.lab("L_exit")
    body = a.text()
    if Cfg.NOCOMM:
        import re
        body = re.sub(r's_cbranch_vccnz (L_\w+)', r's_nop 0', body)
    txt = HDR + f"""; @launch grid=(256,1,1) block=(256,1,1) lds=163840
.amdgcn_target "amdgcn-amd-amdhsa--gfx950"
.text
.globl {NAME}_kernel
.p2align 8
.type {NAME}_kernel,@function
{NAME}_kernel:
{body}  s_endpgm
.section .rodata,"a"
.p2align 6
.amdhsa_kernel {NAME}_kernel
  .amdhsa_next_free_vgpr 512
  .amdhsa_next_free_sgpr 102
  .amdhsa_accum_offset 256
  .amdhsa_group_segment_fixed_size 0
  .amdhsa_kernarg_size 120
  .amdhsa_user_sgpr_count 2
  .amdhsa_user_sgpr_kernarg_segment_ptr 1
  .amdhsa_system_sgpr_workgroup_id_x 1
.end_amdhsa_kernel
"""
    return txt

if __name__ == "__main__":
    if "stamps" in sys.argv: Cfg.STAMPS = True
    if "trace" in sys.argv: Cfg.TRACE = True
    if "nocomm" in sys.argv: Cfg.NOCOMM = True
    for a_ in sys.argv:
        if a_.startswith("late="): chain.LATE = int(a_[5:])
        if a_.startswith("backoff="): chain.BACKOFF = int(a_[8:])
        if a_.startswith("ne="): chain.NE = int(a_[3:])
        if a_.startswith("perload="): chain.PERLOAD = bool(int(a_[8:]))
        if a_.startswith("probe="): chain.PROBE = bool(int(a_[6:]))
        if a_.startswith("n2="): chain.N2 = int(a_[3:])
        if a_.startswith("pf2="): chain.PF2 = bool(int(a_[4:]))
        if a_.startswith("vspace="): chain.VSPACE = int(a_[7:])
        if a_.startswith("addq="): chain.ADDQ = int(a_[5:])
        if a_.startswith("addw="): chain.ADDW = int(a_[5:])
        if a_.startswith("skipsm="): chain.SKIPSM = True
        if a_.startswith("vs2="): chain.VSPACE2 = int(a_[4:])
        if a_.startswith("early="): chain.EARLY = bool(int(a_[6:]))
        if a_.startswith("xp="): chain.XP[a_[3:]] = True
        if a_.startswith("skipmax="): chain.SKIPMAX = bool(int(a_[8:]))
        if a_.startswith("kxearly="): chain.KXEARLY = bool(int(a_[8:]))
        if a_.startswith("simplew="): chain.SIMPLEW = bool(int(a_[8:]))
        if a_.startswith("probes="): chain.PROBES = True
        if a_.startswith("codepf2="): chain.CODEPF2 = bool(int(a_[8:]))
        if a_.startswith("throt="): chain.THROT = int(a_[6:])
        if a_.startswith("opos="): chain.OPOS = tuple(int(x) for x in a_[5:].split(","))
        if a_ == "wpf=0": WPF.clear()
        if a_ == "wpf=2": WPF.append(("Wo", 4096*1152))
        if a_ == "wpf=3": WPF.extend([("Wo", 4096*1152), ("Wk", 576*8192), ("Wv", 576*8192)])
        if a_.startswith("delay0="): chain.DELAY0 = int(a_[7:])
    if "nopub" in sys.argv: Cfg.NOPUB = True
    if "nopf" in sys.argv: Cfg.NOPF = True
    if "nocyc" in sys.argv: Cfg.CYC = False
    if "steplog" in sys.argv: Cfg.STEPLOG = True
    if "nokx" in sys.argv: Cfg.NOKX = True
    if "novx" in sys.argv: Cfg.NOVX = True
    if "nofl" in sys.argv: Cfg.NOFL = True
    if "wexit" in sys.argv: Cfg.WEXIT = True
    if "wspin" in sys.argv: Cfg.WSPIN = True; Cfg.NOWAIT = True
    if "w1only" in sys.argv: Cfg.W1ONLY = True
    if "slow" in sys.argv: Cfg.FORCE_SLOW = True
    out = sys.argv[1] if len(sys.argv) > 1 else "out.s"
    open(out, "w").write(build(None))
    print("wrote", out)
```

```python
from common import *

SLOT = 16384
RESO = 98304
MEMB = 139264
XQ   = MEMB + 9216
XO   = XQ + 4096
KXB  = XO + 2048
SEL  = KXB + 8192
assert SEL + 1024 == 163840
MEMSTRIDE = 65536
CS = 9472
OOB = 0x10000000
sH=68; sMode=69; sStep=70; sT0=71; sT1=72; sT2=73; sFirst=74; sRT=75; sHoff=76
sMask=84
sLo8=86
sC1=78
sRd=16; sRdX=17; sPst=18; sPstX=19; sMemOff=20; sM0=21; sM1=22; sM2=23; sKXo=24; sVXo=25; sPFo=26; sPub=27; sFlo=28; sProg=29; sW1k=30; sRa=41; sRb=42; sRm0=43; sRm1=31; sMB=77; sRaX=86; sRbX=87; sFlc=80; sReady=81; sPF2=82; sProgL=28; sMZ=26
vFlag=0; vL16=1; vIdx=2; vResA=3; vResB=4; vResO=5; vTrX=6; vXQw=7; vXOw=8; vL4=9; vMst=10; vHi=11
vT=12
PB=16
AS=24
LD=32
ACC=48
HB=131072
WBASE=72
C1 = (128 ** -0.5) * 1.4426950408889634

RESQ_L = [('Q',0),('K',2),('V',3),('Q',5),('K',6),('V',8)]
RESO_L = [(1,1),(3,1),(5,1),(7,1),(8,1)]
def build_wmap():
    ops = []
    for c in range(9):
        for M in 'QKV':
            if (M,c) in RESQ_L: continue
            for x in range(2): ops.append((M,c,x))
    for j in range(9):
        for c2 in range(2):
            if (j,c2) in RESO_L: continue
            ops.append(('O',j,c2))
    assert len(ops) == 55, len(ops)
    return {o: WBASE + 8*i for i,o in enumerate(ops)}
WM = build_wmap()

def chain_init(a):
    a(f"""
    s_lshr_b32 s{sH}, s2, 3
    s_xor_b32 s{sH}, s{sH}, {XP.get('hx', 0) and 2 or 0}
    v_lshlrev_b32 v{vL16}, 4, v0
    v_lshlrev_b32 v{vL4}, 2, v0
    """)
    stamp(a, 0, 12, 13)
    dbgt(a, 8, cond_wg=0)
    if CODEPF2:
        Lc = a.uniq("L_cpf0")
        a(f"s_cmp_lg_u32 s3, 2\ns_cbranch_scc1 {Lc}")
        code_prefetch(a, "L_chain", 32768, vt=28)
        a.lab(Lc)
    a(f"""
    v_mov_b32 v12, 0
    v_mov_b32 v13, 0
    v_mov_b32 v14, 0
    v_mov_b32 v15, 0
    v_mov_b32 v16, -1
    v_mov_b32 v17, -1
    v_mov_b32 v18, -1
    v_mov_b32 v19, -1
    s_lshl_b32 s4, s3, 10
    v_add_u32 v20, s4, v{vL16}
    s_mul_i32 s5, s{sH}, 800
    v_cmp_gt_u32 vcc, 800, v20
    s_and_saveexec_b64 s[8:9], vcc
    s_cbranch_execz L_ci_nf
    buffer_store_dwordx4 v[12:15], v20, s[{SWS}:{SWS+3}], s5 offen sc1
    L_ci_nf:
    s_mov_b64 exec, s[8:9]
    s_mul_i32 s5, s{sH}, 18432
    s_add_u32 s5, s5, {CH_PART}
    """)
    for i in range(4):
        a(f"buffer_store_dwordx4 v[16:19], v20, s[{SWS}:{SWS+3}], s5 offen sc1\ns_add_u32 s5, s5, 4096")
    a(f"""
    v_cmp_gt_u32 vcc, 2048, v20
    s_and_saveexec_b64 s[8:9], vcc
    s_cbranch_execz L_ci_np
    buffer_store_dwordx4 v[16:19], v20, s[{SWS}:{SWS+3}], s5 offen sc1
    L_ci_np:
    s_mov_b64 exec, s[8:9]
    s_lshl_b32 s5, s{sH}, 2
    s_add_u32 s5, s5, s3                 ; wi = h*4+w
    s_cmp_ge_u32 s5, 108
    s_cbranch_scc1 L_ci_nm2
    s_mul_hi_u32 s6, s5, 0x1c71c71d      ; wi/9
    s_mul_i32 s7, s6, 9
    s_sub_u32 s7, s5, s7                 ; chunk
    s_lshr_b32 s5, s6, 2
    s_add_u32 s5, s5, 1                  ; idx
    s_lshl_b32 s5, s5, 16
    s_and_b32 s6, s6, 3
    s_mul_i32 s6, s6, {CS}
    s_add_u32 s5, s5, s6
    s_lshl_b32 s7, s7, 10
    s_add_u32 s5, s5, s7
    s_add_u32 s5, s5, {CH_MEM}
    buffer_store_dwordx4 v[16:19], v{vL16}, s[{SWS}:{SWS+3}], s5 offen sc1
    L_ci_nm2:
    """)
    a(f"""
    s_lshl_b32 s5, s{sH}, 12
    s_lshl_b32 s6, s3, 10
    s_add_u32 s5, s5, s6
    s_add_u32 s5, s5, {WS_KM + 63*32*4096}
    buffer_store_dwordx4 v[16:19], v{vL16}, s[{SWS}:{SWS+3}], s5 offen sc1
    """)
    a(f"""
    s_lshl_b32 s5, s{sH}, 13
    s_lshl_b32 s6, s3, 11
    s_add_u32 s5, s5, s6
    s_add_u32 s5, s5, {WS_OX + 63*128*2048}
    buffer_store_dwordx4 v[16:19], v{vL16}, s[{SWS}:{SWS+3}], s5 offen sc1
    buffer_store_dwordx4 v[16:19], v{vL16}, s[{SWS}:{SWS+3}], s5 offen offset:1024 sc1
    """)
    srd(a, SA, P['mem0'], 8*1152)
    a(f"""
    s_cmp_ge_u32 s{sH}, 9
    s_cbranch_scc1 L_ci_m0e
    v_bfe_u32 v12, v0, 2, 2
    v_lshlrev_b32 v12, 1, v12
    v_and_b32 v13, 1, v0
    v_add_u32 v12, v12, v13
    s_movk_i32 s4, 1152
    v_mul_lo_u32 v12, v12, s4
    v_bfe_u32 v13, v0, 1, 1
    v_lshlrev_b32 v13, 6, v13
    v_add_u32 v12, v12, v13
    v_lshrrev_b32 v13, 5, v0
    v_lshlrev_b32 v13, 5, v13
    v_add_u32 v12, v12, v13
    v_bfe_u32 v13, v0, 4, 1
    v_lshlrev_b32 v13, 2, v13
    v_add_u32 v12, v12, v13
    s_lshl_b32 s4, s{sH}, 7
    """)
    for ea in range(8):
        off = (4*(ea&3) + (ea>>2))*2
        a(f"buffer_load_ushort v{32 + ea}, v12, s[{SA}:{SA+3}], s4 offen offset:{off}")
    a("s_waitcnt vmcnt(0)")
    for j in range(4): a(f"v_lshl_or_b32 v{24+j}, v{33+2*j}, 16, v{32+2*j}")
    a(f"""
    s_lshl_b32 s4, s{sH}, 10
    s_mul_i32 s5, s3, {CS}
    s_add_u32 s4, s4, s5
    s_add_u32 s4, s4, {CH_MEM}
    buffer_store_dwordx4 v[24:27], v{vL16}, s[{SWS}:{SWS+3}], s4 offen sc1
    s_nop 1
    L_ci_m0e:
    """)
    a(f"""
    v_lshrrev_b32 v12, 4, v0
    v_and_b32 v13, 1, v12
    s_lshr_b32 s4, s3, 1
    s_lshl_b32 s4, s4, 2
    v_or_b32 v13, s4, v13
    v_lshlrev_b32 v14, 1, v13
    v_and_b32 v21, 15, v0
    v_xor_b32 v22, v21, v14
    v_lshlrev_b32 v22, 4, v22
    v_lshlrev_b32 v12, 13, v12
    v_add_u32 v24, v12, v22
    v_xor_b32 v14, 4, v14
    v_xor_b32 v22, v21, v14
    v_lshlrev_b32 v22, 4, v22
    v_add_u32 v25, v12, v22
    v_lshrrev_b32 v12, 3, v0
    s_movk_i32 s4, 1152
    v_mul_lo_u32 v12, v12, s4
    v_lshrrev_b32 v13, 5, v0
    s_and_b32 s4, s3, 1
    s_lshl_b32 s4, s4, 1
    v_or_b32 v13, s4, v13
    v_lshlrev_b32 v13, 1, v13
    v_and_b32 v21, 7, v0
    v_xor_b32 v21, v21, v13
    v_lshlrev_b32 v21, 4, v21
    v_add_u32 v26, v12, v21
    v_lshrrev_b32 v12, 4, v0            ; gb
    v_bfe_u32 v13, v0, 2, 2             ; r
    v_lshrrev_b32 v14, 1, v13
    v_lshlrev_b32 v14, 5, v14
    v_and_b32 v21, 1, v13
    v_lshlrev_b32 v21, 2, v21
    v_add3_u32 v14, v14, v21, v12
    v_lshlrev_b32 v14, 8, v14
    v_and_b32 v21, 1, v0
    v_lshlrev_b32 v21, 3, v21
    v_add_u32 v14, v14, v21
    v_and_b32 v21, 1, v12
    v_lshlrev_b32 v21, 1, v21
    v_lshlrev_b32 v22, 2, v13
    v_add_u32 v21, v21, v22
    v_bfe_u32 v22, v0, 1, 1
    s_lshl_b32 s4, s3, 2
    v_add_u32 v22, s4, v22
    v_xor_b32 v23, v22, v21
    v_lshlrev_b32 v23, 4, v23
    v_add_u32 v28, v14, v23
    v_add_u32 v22, 2, v22
    v_xor_b32 v23, v22, v21
    v_lshlrev_b32 v23, 4, v23
    v_add_u32 v29, v14, v23
    v_lshrrev_b32 v14, 1, v13
    v_lshlrev_b32 v21, 5, v14
    v_lshrrev_b32 v22, 1, v12
    v_lshlrev_b32 v22, 3, v22
    v_add_u32 v21, v21, v22
    v_and_b32 v22, 1, v12
    v_lshlrev_b32 v23, 2, v22
    v_add_u32 v21, v21, v23
    v_and_b32 v23, 1, v13
    v_add_u32 v21, v21, v23
    v_lshlrev_b32 v21, 7, v21
    v_lshlrev_b32 v14, 1, v14
    v_or_b32 v22, v22, v14
    v_lshlrev_b32 v22, 1, v22
    v_bfe_u32 v23, v0, 1, 1
    s_lshl_b32 s4, s3, 1
    v_add_u32 v23, s4, v23
    v_xor_b32 v23, v23, v22
    v_lshlrev_b32 v23, 4, v23
    v_and_b32 v22, 1, v0
    v_lshlrev_b32 v22, 3, v22
    v_add3_u32 v27, v21, v23, v22
    """)
    srd(a, SA,  P['Wq'], 576*8192)
    srd(a, SB0, P['Wk'], 576*8192)
    srd(a, SB1, P['Wv'], 576*8192)
    srd(a, SOUT, P['Wo'], 4096*1152)
    SR = {'Q':SA, 'K':SB0, 'V':SB1, 'O':SOUT}
    regq = [(M,c) for c in range(9) for M in 'QKV' if (M,c) not in RESQ_L]
    ou = [('O',j) for j in range(9)]
    units = []
    qi = oi = 0
    for n_ in range(30):
        if n_ in OPOS: units.append(ou[oi]); oi += 1
        else: units.append(regq[qi]); qi += 1
    assert qi == 21 and oi == 9
    units += RESQ_L
    assert len(units) == 36
    a(f"""
    s_lshl_b32 s{sHoff}, s{sH}, 8
    s_mul_i32 s6, s3, {16*8192}
    s_add_u32 s6, s6, s{sHoff}
    s_mul_i32 s7, s{sH}, 147456
    s_mul_i32 s4, s3, {32*1152}
    s_add_u32 s7, s7, s4
    s_lshl_b32 s12, s3, 12
    """)
    NS = 10
    slot_of = lambda i: (i % NS) * SLOT
    def issue(i):
        M, c = units[i]
        for jj in range(4):
            a(f"s_add_u32 m0, s12, {slot_of(i) + jj*1024}")
            if M != 'O':
                a(f"s_add_u32 s4, s6, {(64*c + 4*jj)*8192}")
                a(f"buffer_load_dwordx4 v{24 + (jj&1)}, s[{SR[M]}:{SR[M]+3}], s4 offen lds")
            else:
                a(f"s_add_u32 s4, s7, {8*jj*1152 + c*128}")
                a(f"buffer_load_dwordx4 v26, s[{SR[M]}:{SR[M]+3}], s4 offen lds")
    a(f"s_and_b32 s13, s{sH}, 3")
    for i in range(NS): issue(i)
    a("s_waitcnt vmcnt(40)\ns_barrier")
    if CODEPF:
        Lc = a.uniq("L_cpf")
        a(f"s_cmp_lg_u32 s3, 3\ns_cbranch_scc1 {Lc}")
        code_prefetch(a, "L_common_f", 8192, vt=12)
        a.lab(Lc)
    a(f"""
    s_cmp_lg_u32 s3, 0
    s_cbranch_scc1 L_ci_hs
    s_getreg_b32 s4, hwreg(HW_REG_XCC_ID)
    s_and_b32 s4, s4, 7
    s_mul_i32 s4, s4, 7
    s_mov_b64 s[10:11], 1
    s_lshl_b64 s[10:11], s[10:11], s4
    s_mov_b64 s[8:9], exec
    s_mov_b64 exec, 1
    v_mov_b32 v12, 0
    v_mov_b32 v14, s10
    v_mov_b32 v15, s11
    v_mov_b32 v13, 1
    global_atomic_add_x2 v12, v[14:15], s[{P['dbg']}:{P['dbg']+1}]
    global_atomic_add v12, v13, s[{P['dbg']}:{P['dbg']+1}] offset:16
    s_mov_b64 exec, s[8:9]
    L_ci_hs:
    """)
    TO = 32
    a(f"""
    s_lshl_b32 s4, s3, 12
    v_add_u32 v{vResA}, s4, v{vL16}
    v_add_u32 v{vResB}, 0x10000, v{vResA}
    s_lshl_b32 s4, s3, 11
    s_add_u32 s4, s4, {RESO}
    v_add_u32 v{vResO}, s4, v{vL16}
    """)
    for i in range(36):
        M, c = units[i]
        issued = min(max(i + NS - 2, NS - 1), 35)
        a(f"s_waitcnt vmcnt({min((issued - i)*4, 63)}) lgkmcnt(0)")
        if THROT and (issued - i) > THROT and i < 27:
            Lt = a.uniq("L_thr")
            a(f"s_cmp_eq_u32 s13, 1\ns_cbranch_scc1 {Lt}\ns_waitcnt vmcnt({(issued - i - THROT)*4})")
            a.lab(Lt)
        a("s_barrier")
        if i > 0 and i - 1 + NS <= 35: issue(i - 1 + NS)
        if i == 33:
            a(f"""
            v_mov_b32 v12, 0
            global_load_dwordx2 v[14:15], v12, s[{P['dbg']}:{P['dbg']+1}] sc1
            """)
        base = slot_of(i)
        if i >= 30:
            if i == 30:
                for k in range(5):
                    a(f"ds_write_b128 v{vResO}, {vr(TO+8*k,4)} offset:{k*8192}\nds_write_b128 v{vResO}, {vr(TO+8*k+4,4)} offset:{k*8192+1024}")
                a("s_waitcnt lgkmcnt(0)")
            for x in range(2):
                a(f"v_add_u32 v30, {base}, v{28+x}")
                for j in range(4):
                    a(f"ds_read_b64_tr_b16 {vr(TO+8*x+2*j,2)}, v30 offset:{j*2048}")
            a("s_waitcnt lgkmcnt(0)\ns_barrier")
            rb, off = (vResA, base) if base < 65536 else (vResB, base - 65536)
            for x in range(2):
                a(f"ds_write_b128 v{rb}, {vr(TO+8*x,4)} offset:{off + x*2048}\nds_write_b128 v{rb}, {vr(TO+8*x+4,4)} offset:{off + x*2048 + 1024}")
            continue
        if M != 'O':
            for x in range(2):
                dst = WM[(M,c,x)]
                a(f"v_add_u32 v30, {base}, v{28+x}")
                for j in range(4):
                    a(f"ds_read_b64_tr_b16 {R(dst+2*j,2)}, v30 offset:{j*2048}")
        else:
            a(f"v_add_u32 v30, {base}, v27")
            for c2 in range(2):
                dst = WM[('O',c,c2)] if (c,c2) not in RESO_L else TO + 8*RESO_L.index((c,c2))
                for j in range(4):
                    a(f"ds_read_b64_tr_b16 {R(dst+2*j,2)}, v30 offset:{(64*c2 + 16*(j>>1) + 2*(j&1))*128}")
    a("s_waitcnt vmcnt(0) lgkmcnt(0)\ns_barrier")
    a(f"""
    v_readfirstlane_b32 s8, v14
    v_readfirstlane_b32 s9, v15
    """)
    stamp(a, 1, 12, 13)
    a(f"""
    v_mov_b32 v12, 0
    s_mov_b32 s4, s8
    s_mov_b32 s5, s9
    s_branch L_ci_w2
    L_ci_w:
    global_load_dwordx2 v[14:15], v12, s[{P['dbg']}:{P['dbg']+1}] sc1
    s_waitcnt vmcnt(0)
    v_readfirstlane_b32 s4, v14
    v_readfirstlane_b32 s5, v15
    L_ci_w2:
    s_mov_b32 s6, 0
    s_mov_b32 s7, 0
    """)
    for k in range(8):
        a(f"s_and_b32 s10, s4, 127\ns_add_u32 s6, s6, s10\ns_max_u32 s7, s7, s10\ns_lshr_b64 s[4:5], s[4:5], 7")
    a(f"""
    s_cmp_ge_u32 s6, 32
    s_cbranch_scc1 L_ci_go
    s_sleep 2
    """)
    spin_check(a)
    a(f"""
    s_branch L_ci_w
    L_ci_go:
    s_cmp_ge_u32 s7, 32
    s_cselect_b32 s{sMode}, 0, 1
    """)
    a(f"""
    v_lshlrev_b32 v71, 3, v{vL16}
    v_and_b32 v71, 0xf80, v71
    s_mov_b32 s4, {F_KV}
    buffer_load_dword v71, v71, s[{SWS}:{SWS+3}], s4 offen sc1
    """)
    a(f"""
    v_bfe_u32 v12, v0, 1, 1
    v_mov_b32 v{vIdx}, 0x4444
    v_mov_b32 v13, 0xeeee
    v_cmp_eq_u32 vcc, 1, v12
    s_nop 1
    v_cndmask_b32 v{vIdx}, v{vIdx}, v13, vcc
    v_lshrrev_b32 v12, 2, v0
    v_lshlrev_b32 v12, 5, v12
    v_and_b32 v13, 3, v0
    v_lshlrev_b32 v13, 3, v13
    v_add_u32 v12, v12, v13
    v_add_u32 v{vTrX}, {XQ}, v12
    v_and_b32 v12, 15, v0
    s_lshl_b32 s4, s3, 5
    v_add_u32 v12, s4, v12
    v_lshlrev_b32 v12, 5, v12
    v_lshrrev_b32 v13, 4, v0
    v_lshlrev_b32 v13, 3, v13
    v_add_u32 v12, v12, v13
    v_add_u32 v{vXQw}, {XQ}, v12
    v_bfe_u32 v12, v0, 2, 2
    v_lshlrev_b32 v12, 2, v12
    v_and_b32 v13, 1, v0
    s_and_b32 s4, s3, 1
    s_lshl_b32 s4, s4, 1
    v_add3_u32 v12, v12, v13, s4
    v_lshrrev_b32 v13, 5, v0
    v_lshlrev_b32 v13, 4, v13
    v_add_u32 v12, v12, v13
    v_lshlrev_b32 v12, 4, v12
    v_bfe_u32 v13, v0, 4, 1
    v_lshlrev_b32 v13, 3, v13
    v_add_u32 v12, v12, v13
    s_lshr_b32 s4, s3, 1
    s_lshl_b32 s4, s4, 10
    s_add_u32 s4, s4, {XO}
    v_add_u32 v{vXOw}, s4, v12
    v_lshlrev_b32 v12, 3, v0
    v_add_u32 v12, {MEMB}, v12
    v_bfe_u32 v13, v0, 1, 1
    v_cmp_eq_u32 vcc, 0, v13
    s_nop 1
    v_cndmask_b32 v{vXOw}, v{vXOw}, v12, vcc
    s_mov_b32 s{sMask}, 0xcccccccc
    s_mov_b32 s{sMask+1}, 0xcccccccc
    s_mov_b32 s{sC1}, {fb(C1)}
    s_mov_b32 s{sRT}, -1
    s_cmp_eq_u32 s3, 0
    s_cselect_b32 s{sRT}, s{sH}, s{sRT}
    s_add_u32 s4, s{sH}, 32
    s_cmp_lt_u32 s{sH}, 4
    s_cselect_b32 s4, s4, -1
    s_cmp_eq_u32 s3, 1
    s_cselect_b32 s{sRT}, s4, s{sRT}
    """)
    a(f"""
    s_lshr_b32 s4, s{sRT}, 2
    s_lshl_b32 s4, s4, 10
    s_and_b32 s5, s{sRT}, 1
    s_lshl_b32 s5, s5, 9
    s_add_u32 s4, s4, s5
    s_bfe_u32 s5, s{sRT}, 0x10001
    s_lshl_b32 s5, s5, 5                ; 2*half*16
    s_add_u32 s4, s4, s5
    v_bfe_u32 v12, v0, 2, 1
    v_lshlrev_b32 v12, 8, v12
    v_lshrrev_b32 v13, 4, v0
    v_lshlrev_b32 v13, 6, v13
    v_add_u32 v12, v12, v13
    v_and_b32 v13, 1, v0
    v_lshlrev_b32 v13, 4, v13           ; (e'&1)*16
    v_add_u32 v12, v12, v13
    v_bfe_u32 v13, v0, 1, 1
    v_lshlrev_b32 v13, 3, v13
    v_add_u32 v12, v12, v13
    v_add_u32 v{vMst}, s4, v12
    v_bfe_u32 v13, v0, 3, 1
    v_mul_u32_u24 v13, {CS}, v13
    v_add_u32 v{vMst}, v{vMst}, v13
    v_and_b32 v12, 7, v0
    v_lshrrev_b32 v13, 1, v12
    v_and_b32 v16, 1, v12
    v_lshlrev_b32 v16, 4, v16
    v_mov_b32 v17, 0x3f80
    v_lshlrev_b32 v17, v16, v17
    """)
    for j in range(4):
        a(f"v_cmp_eq_u32 vcc, {j}, v13\ns_nop 1\nv_cndmask_b32 v{20+j}, 0, v17, vcc")
    a(f"v_add_u32 v16, {SEL}, v{vL16}\nds_write_b128 v16, v[20:23]")
    a("s_waitcnt lgkmcnt(0)")
    if Cfg.FORCE_SLOW: a(f"s_mov_b32 s{sMode}, 1")

def zero(a, base, n):
    for i in range(0, n, 2): a(f"v_mov_b64 {vr(base+i,2)}, 0")
def smf(a, acc, A, B):
    a(f"v_smfmac_f32_16x16x64_bf16 {vr(acc,4)}, {vr(A,4)}, {R(B,8)}, v{vIdx}")

class LQ:
    def __init__(s, a): s.a = a; s.p = []
    def add(s, tag, n=1): s.p.extend([tag]*n)
    def wait(s, tags):
        idx = [i for i,t in enumerate(s.p) if t in tags]
        if not idx: return
        last = max(idx); n = len(s.p) - 1 - last
        s.a(f"s_waitcnt lgkmcnt({min(n,15)})"); del s.p[:last+1]

VSPACE = 4
VSPACE2 = 2
class Sch:
    def __init__(s, a, lq): s.a = a; s.lq = lq; s.f = []; s.since = 99; s.vs = VSPACE; s.nvm = 0
    def fill(s, instr, tag=None): s.f.append((instr, tag))
    def front(s, lst):
        k = 0
        while k < len(s.f) and (s.f[k][1] == 'W' or (isinstance(s.f[k][1], tuple) and s.f[k][1][0] == 'A')): k += 1
        s.f[k:k] = lst
    def pop(s, n=1, force=False):
        for _ in range(n):
            if not s.f: return
            k = 0
            s.since += 1
            if not force and s.vs:
                k = None
                for q, (ins, tag) in enumerate(s.f):
                    if ins.startswith("buffer_"):
                        if s.since >= s.vs and not any(x[0].startswith("buffer_") for x in s.f[:q]): k = q; break
                    else:
                        k = q; break
                if k is None: return
            ins, tag = s.f.pop(k)
            if ins.startswith("buffer_"): s.since = 0; s.nvm += 1
            s.a(ins)
            if tag is not None: s.lq.add(tag)
    def flush(s): s.pop(len(s.f), force=True)

sPJ = 32
WSR = f"s[{SWS}:{SWS+3}]"
ST = 32*8192
res_at = {c: M for (M,c) in RESQ_L}
res_list = sorted(res_at)
def rq(c, x):
    slot = RESQ_L.index((res_at[c],c)) * SLOT
    rb, off = (vResA, slot) if slot < 65536 else (vResB, slot - 65536)
    return [f"ds_read_b128 {vr(LD+8*x+4*q,4)}, v{rb} offset:{off + x*2048 + q*1024}" for q in range(2)]
ACCS = [52,53,54,55,56,57,58,61,62,63,59,60]

def chain_state_init(a):
    a(f"""
    s_mov_b32 s{sStep}, -1
    v_add_u32 v{vHi}, {HB}, v{vL16}
    s_lshl_b32 s{sW1k}, s3, 10
    s_lshl_b32 s4, s{sH}, 13
    s_lshl_b32 s5, s3, 11
    s_add_u32 s4, s4, s5
    s_add_u32 s{sKXo}, s4, {WS_KX}
    s_add_u32 s{sVXo}, s4, {WS_VX - ST}
    s_lshl_b32 s4, s{sH}, 12
    s_add_u32 s4, s4, s{sW1k}
    s_add_u32 s{sPub}, s4, {WS_KM}
    s_lshl_b32 s4, s{sH}, 7
    s_add_u32 s{sProg}, s4, {F_PROG}
    s_mov_b32 s{sProgL}, s{sProg}
    s_cmp_eq_u32 s3, 3
    s_cselect_b32 s{sProg}, s{sProg}, {OOB}
    s_lshl_b32 s4, s3, 13
    s_add_u32 s4, s4, s{sHoff}
    s_add_u32 s{sPst}, s4, {CH_PART + PART_SZ}
    s_add_u32 s5, s4, {CH_PART}
    s_xor_b32 s{sPstX}, s{sPst}, s5
    s_lshl_b32 s4, s{sRT}, 13
    s_add_u32 s{sRd}, s4, {CH_PART}
    s_add_u32 s5, s4, {CH_PART + PART_SZ}
    s_xor_b32 s{sRdX}, s{sRd}, s5
    s_mov_b32 s{sMemOff}, {-65536 & 0x3ffff}
    s_and_b32 s4, s{sH}, 3
    s_mul_i32 s4, s4, {CS}
    s_add_u32 s{sMB}, s4, {CH_MEM}
    s_lshl_b32 s4, s{sH}, 13
    s_lshl_b32 s5, s3, 11
    s_add_u32 s4, s4, s5
    s_add_u32 s{sRa}, s4, {CH_PART}
    s_add_u32 s5, s4, {CH_PART + PART_SZ}
    s_xor_b32 s{sRaX}, s{sRa}, s5
    s_add_u32 s{sRb}, s{sRa}, {32*8192}
    s_add_u32 s5, s5, {32*8192}
    s_xor_b32 s{sRbX}, s{sRb}, s5
    s_cmp_lt_u32 s{sH}, 4
    s_cselect_b32 s{sRb}, s{sRb}, {OOB}
    s_cselect_b32 s{sRbX}, s{sRbX}, 0
    s_mov_b32 s{sC1+1}, s{sC1}
    s_mov_b32 s{sThr}, {fb(60.0/C1)}
    """)
    a(f"s_mov_b32 s{sFlc}, 0")
    Lkv = a.uniq("L_kv0"); Lkd = a.uniq("L_kv0d")
    a(f"""
    s_waitcnt vmcnt(0)
    v_cmp_le_u32 vcc, 32, v71
    s_nop 1
    s_not_b32 s4, vcc_lo
    s_ff1_i32_b32 s4, s4
    s_cmp_eq_u32 s4, -1
    s_cselect_b32 s{sReady}, 32, s4
    s_cmp_gt_u32 s{sReady}, 0
    s_cbranch_scc1 {Lkd}
    """)
    a.lab(Lkv)
    kv_refresh(a, sFlc, 12)
    a.lab(Lkd)
    a(f"""
    s_add_u32 m0, s{sW1k}, s{sW1k}
    s_add_u32 m0, m0, {KXB}
    s_nop 0
    buffer_load_dwordx4 v{vL16}, {WSR}, s{sKXo} offen sc1 lds
    buffer_load_dwordx4 v{vL16}, {WSR}, s{sKXo} offen offset:1024 sc1 lds
    s_add_u32 s{sKXo}, s{sKXo}, {ST}
    """)
    book_salu(a)
    stamp(a, 2, 12, 13)
    dbgt(a, 9, 'umax')
    if Cfg.STAMPS: a("\n".join(f"s_mov_b32 s{r}, 0" for r in ACCS))
    cyc(a)

def book_salu(a):
    a(f"""
    s_add_u32 s{sMemOff}, s{sMemOff}, 65536
    s_and_b32 s{sMemOff}, s{sMemOff}, 0x3ffff
    s_add_u32 s{sT0}, s{sMemOff}, s{sMB}
    s_add_u32 s{sM0}, s{sT0}, s{sW1k}
    s_mov_b32 s{sMZ}, s{sT0}
    s_add_u32 s{sStep}, s{sStep}, 1
    s_add_u32 s{sM1}, s{sM0}, 4096
    s_lshr_b32 s4, s{sW1k}, 2
    s_add_u32 s{sM2}, s{sT0}, s4
    s_add_u32 s{sM2}, s{sM2}, 8192
    s_add_u32 s{sT2}, s4, {MEMB + 8192}
    s_xor_b32 s{sPst}, s{sPst}, s{sPstX}
    s_mov_b32 s{sPJ}, s{sPst}
    """)
    for j in range(1, 9): a(f"s_add_u32 s{sPJ+j}, s{sPst}, {j*4*8192}")
    a(f"""
    s_xor_b32 s{sRa}, s{sRa}, s{sRaX}
    s_xor_b32 s{sRb}, s{sRb}, s{sRbX}
    s_add_u32 s{sVXo}, s{sVXo}, {ST}
    s_add_u32 s4, s{sStep}, 1
    s_lshr_b32 s4, s4, 1
    s_min_u32 s{sFlc}, s4, 31
    """)

def kv_refresh(a, target_sgpr, vt):
    if Cfg.NOCOMM or getattr(Cfg,'WEXIT',False) or getattr(Cfg,'NOWAIT',False):
        a(f"s_mov_b32 s{sReady}, 32"); return
    L = a.uniq("L_kvr"); Ld = a.uniq("L_kvd")
    a.lab(L)
    a(f"""
    v_lshlrev_b32 v{vt}, 3, v{vL16}
    v_and_b32 v{vt}, 0xf80, v{vt}
    s_mov_b32 s4, {F_KV}
    buffer_load_dword v{vt}, v{vt}, {WSR}, s4 offen sc1
    s_waitcnt vmcnt(0)
    v_cmp_le_u32 vcc, 32, v{vt}
    s_nop 1
    s_not_b32 s4, vcc_lo
    s_ff1_i32_b32 s4, s4
    s_cmp_eq_u32 s4, -1
    s_cselect_b32 s{sReady}, 32, s4
    s_cmp_gt_u32 s{sReady}, s{target_sgpr}
    s_cbranch_scc1 {Ld}
    s_sleep 4
    """)
    spin_check(a)
    a(f"s_branch {L}")
    a.lab(Ld)

def probe(a, instr, sacc, smax):
    if Cfg.STAMPS and Cfg.CYC and PROBES:
        a("s_memtime s[90:91]\ns_waitcnt lgkmcnt(0)")
        a(instr)
        a(f"s_memtime s[92:93]\ns_waitcnt lgkmcnt(0)\ns_sub_u32 s92, s92, s90\ns_add_u32 s{sacc}, s{sacc}, s92\ns_max_u32 s{smax}, s{smax}, s92")
    else:
        a(instr)
PROBES = False

def chain_loop(a, slow):
    T0 = "s" if slow else "f"
    sfx = " sc1" if slow else ""
    q0,q1,k0,k1,v0_,v1_ = ACC, ACC+4, ACC+8, ACC+12, ACC+16, ACC+20
    accs = {('Q',0):q0,('Q',1):q1,('K',0):k0,('K',1):k1,('V',0):v0_,('V',1):v1_}
    RL = 16
    def loads1():
        for j in range(8):
            a(f"buffer_load_dwordx4 {vr(RL+4*j,4)}, v{vL16}, {WSR}, s{sRd if j < 4 else sT1} offen offset:{(j&3)*1024} sc1")
    def aread_i(c): return f"ds_read_b128 {vr(AS+4*(c&1),4)}, v{vHi} offset:{MEMB - HB + c*1024}"
    ool = []
    def first_poll():
        if D0: a(f"buffer_load_dwordx4 {vr(AS,4)}, v{vL16}, {WSR}, s{sMZ} offen sc1\nbuffer_load_dwordx4 {vr(AS+4,4)}, v{vL16}, {WSR}, s{sM0} offen sc1")
        else: a(f"buffer_load_dwordx4 {vr(AS,4)}, v{vL16}, {WSR}, s{sM0} offen sc1")

    def emit(final):
        T = T0 + ("z" if final else "")
        def lb(n): return f"{n}_{T}"
        a.lab(lb("L_common"))
        if not final:
            cyc(a, 57); ev(a, 7, 31)
            a(f"s_cmp_eq_u32 s{sStep}, 63\ns_cbranch_scc1 L_common_{T0}z")
        a(f"""
        v_add_u32 v{vT+2}, s{sW1k}, v{vHi}
        v_add_u32 v{vT+3}, s{sT2}, v{vL4}
        v_mov_b32 v{vT+1}, -1
        s_cmp_ge_u32 s{sFlc}, s{sReady}
        s_cbranch_scc1 {lb('L_flslow')}
        """)
        a.lab(lb("L_fl_ok"))
        def chk(reg, fail):
            a(f"v_cmp_eq_u32 vcc, -1, v{reg}\ns_cbranch_vccnz {fail}")
        def chk2(r0, r1, fail):
            a(f"v_max_u32 v{vT}, v{r0}, v{r1}\nv_cmp_eq_u32 vcc, -1, v{vT}\ns_cbranch_vccnz {fail}")
        def okpath(reg):
            if not final: ev(a, 8, 31)
            a(f"ds_write_b128 v{vT+2}, {vr(reg,4)} offset:{MEMB-HB}")
            a(f"buffer_load_dwordx4 {vr(PB,4)}, v{vL16}, {WSR}, s{sM1} offen sc1\nbuffer_load_dword v{PB+4}, v{vL4}, {WSR}, s{sM2} offen sc1")
        def ldX(): a(f"buffer_load_dwordx4 {vr(AS,4)}, v{vL16}, {WSR}, s{sMZ} offen sc1\nbuffer_load_dwordx4 {vr(AS+4,4)}, v{vL16}, {WSR}, s{sM0} offen sc1")
        def ldY(): a(f"buffer_load_dwordx4 {vr(PB,4)}, v{vL16}, {WSR}, s{sMZ} offen sc1\nbuffer_load_dwordx4 {vr(PB+4,4)}, v{vL16}, {WSR}, s{sM0} offen sc1")
        if D0:
            ldY()
            a.lab(lb("L_pA0"))
            a("s_waitcnt vmcnt(2)")
            chk2(AS, AS+4, lb("L_pA0f"))
            if not final: ev(a, 8, 31)
            a(f"ds_write_b128 v{vT+2}, {vr(AS+4,4)} offset:{MEMB-HB}")
            a.lab(lb("L_pAdone"))
            a(f"buffer_load_dwordx4 {vr(PB,4)}, v{vL16}, {WSR}, s{sM1} offen sc1\nbuffer_load_dword v{PB+4}, v{vL4}, {WSR}, s{sM2} offen sc1")
            if not final:
                cyc(a, 58); ev(a, 9, 31)
        elif not PIPE:
            a.lab(lb("L_pA0"))
            a("s_waitcnt vmcnt(0)")
            chk(AS, lb("L_pA0f"))
            okpath(AS)
            a.lab(lb("L_pAdone"))
            a("s_waitcnt lgkmcnt(0)\ns_barrier")
            if not final:
                cyc(a, 58); ev(a, 9, 31)
        if not D0 and PIPE:
            a(f"buffer_load_dwordx4 {vr(AS+4,4)}, v{vL16}, {WSR}, s{sM0} offen sc1")
            a.lab(lb("L_pA0"))
            a("s_waitcnt vmcnt(1)")
            chk(AS, lb("L_pA0f"))
            okpath(AS)
            a.lab(lb("L_pAdone"))
            a("s_waitcnt vmcnt(2) lgkmcnt(0)\ns_barrier")
            if not final:
                cyc(a, 58); ev(a, 9, 31)
        def ool_poll():
            a.lab(lb("L_pA0f"))
            if Cfg.STAMPS: a("s_add_u32 s62, s62, 1")
            spin_check(a)
            if D0:
                ldX()
                a("s_waitcnt vmcnt(2)")
                chk2(PB, PB+4, lb("L_pA1f"))
                a(f"ds_write_b128 v{vT+2}, {vr(PB+4,4)} offset:{MEMB-HB}")
                a(f"v_mov_b64 {vr(AS,2)}, {vr(PB,2)}\nv_mov_b64 {vr(AS+2,2)}, {vr(PB+2,2)}")
                a(f"s_nop 0\ns_branch {lb('L_pAdone')}")
                a.lab(lb("L_pA1f"))
                if Cfg.STAMPS: a("s_add_u32 s62, s62, 1")
                ldY()
                a(f"s_branch {lb('L_pA0')}")
            elif not PIPE:
                if BACKOFF: a(f"s_sleep {BACKOFF}")
                a(f"buffer_load_dwordx4 {vr(AS,4)}, v{vL16}, {WSR}, s{sM0} offen sc1")
                a(f"s_branch {lb('L_pA0')}")
            else:
                a(f"buffer_load_dwordx4 {vr(AS,4)}, v{vL16}, {WSR}, s{sM0} offen sc1")
                a("s_waitcnt vmcnt(1)")
                chk(AS+4, lb("L_pA1f"))
                okpath(AS+4)
                a(f"s_branch {lb('L_pAdone')}")
                a.lab(lb("L_pA1f"))
                if Cfg.STAMPS: a("s_add_u32 s62, s62, 1")
                a(f"buffer_load_dwordx4 {vr(AS+4,4)}, v{vL16}, {WSR}, s{sM0} offen sc1")
                a(f"s_branch {lb('L_pA0')}")
            a.lab(lb("L_retryB"))
            if Cfg.STAMPS: a("s_add_u32 s63, s63, 1")
            spin_check(a)
            a(f"buffer_load_dwordx4 {vr(PB,4)}, v{vL16}, {WSR}, s{sM1} offen sc1\nbuffer_load_dword v{PB+4}, v{vL4}, {WSR}, s{sM2} offen sc1\ns_waitcnt vmcnt(0)\ns_branch {lb('L_chkB')}")
            a.lab(lb("L_flslow"))
            kv_refresh(a, sFlc, PB+6)
            a(f"s_branch {lb('L_fl_ok')}")
        ool.append(ool_poll)
        if not final:
            cyc(a); ev(a, 0)
            if Cfg.STEPLOG:
                L = a.uniq("L_sl")
                a(f"""
                s_cmp_lg_u32 s3, 3
                s_cbranch_scc1 {L}
                s_memrealtime s[94:95]
                s_memtime s[96:97]
                s_lshl_b32 s7, s{sH}, 10
                s_lshl_b32 s6, s{sStep}, 3
                s_add_u32 s7, s7, s6
                s_add_u32 s7, s7, {0x7300000}
                s_waitcnt lgkmcnt(0)
                v_mov_b32 v{PB+6}, s94
                v_mov_b32 v{PB+7}, s96
                v_mov_b32 v{vT}, 0
                buffer_store_dwordx2 {vr(PB+6,2)}, v{vT}, {WSR}, s7 offen
                """)
                a.lab(L)
        lq = LQ(a); sch = Sch(a, lq)
        if D0:
            lq.add('W0')
        else:
            a(aread_i(0)); lq.add(('A',0))
            a(aread_i(1)); lq.add(('A',1))
        nre = 4 if not final else 0
        def add_rearm():
            if not final:
                for sr_ in (sRa, sRb):
                    for q in range(2):
                        sch.fill(f"buffer_store_dword v{vT+1}, v{vL16}, {WSR}, s{sr_} offen offset:{q*1024}{sfx}")
        if not D0: add_rearm()
        else: a("s_waitcnt lgkmcnt(1)")
        mats = 'KV' if final else 'QKV'
        for c in range(9):
            A = AS + 4*(c&1)
            base = [(M,x) for M in mats for x in range(2)]
            if c in res_at and c != 8 and res_at[c] in mats:
                Mr = res_at[c]
                others = [o for o in base if o[0] != Mr]
                if len(others) == 4: order = [others[0], (Mr,0), others[1], others[2], (Mr,1), others[3]]
                else: order = [others[0], (Mr,0), others[1], (Mr,1)]
            else:
                order = base
            if c >= 7 and not final: order = [('Q',0),('K',0),('Q',1),('K',1)]
            if c >= 7 and final: order = [('K',0),('K',1)]
            if 1 <= c < 8: sch.front([(aread_i(c+1), ('A',c+1))])
            last = len(order) - 1
            for n_, (M,x) in enumerate(order):
                isres = (c in res_at and M == res_at[c])
                lq.wait([('A',c)] + ([('R',c,x)] if isres else []))
                B = (LD + 8*x) if isres else WM[(M,c,x)]
                smf(a, accs[(M,x)], A, B)
                if isres:
                    nx = [r for r in res_list if r > c and res_at[r] in mats]
                    if nx:
                        ins = rq(nx[0], x)
                        sch.front([(ins[0], ('R',nx[0],x)), (ins[1], ('R',nx[0],x))])
                if D0 and c == 0 and n_ == (len(order) // 2 - 1):
                    lq.wait(['W0'])
                    a(f"s_waitcnt vmcnt({2 + sch.nvm})\ns_barrier")
                    a(aread_i(1)); lq.add(('A',1))
                    add_rearm()
                elif c == 1 and n_ == last:
                    sch.flush()
                    a(f"s_waitcnt vmcnt({nre})")
                    a.lab(lb("L_chkB"))
                    a(f"v_max_u32 v{PB+6}, v{PB}, v{PB+4}\nv_cmp_eq_u32 vcc, -1, v{PB+6}\ns_cbranch_vccnz {lb('L_retryB')}")
                    if not final: ev(a, 1)
                    sch.front([(f"ds_write_b128 v{vT+2}, {vr(PB,4)} offset:{MEMB-HB+4096}", 'W'), (f"ds_write_b32 v{vT+3}, v{PB+4}", 'W')])
                elif c == 2 and n_ == last:
                    sch.flush()
                    lq.wait(['W'])
                    a("s_barrier")
                    if not final:
                        if not Cfg.NOVX:
                            sch.fill(f"buffer_load_dwordx4 {vr(PB,4)}, v{vL16}, {WSR}, s{sVXo} offen sc1")
                            sch.fill(f"buffer_load_dwordx4 {vr(PB+4,4)}, v{vL16}, {WSR}, s{sVXo} offen offset:1024 sc1")
                    a(f"v_sub_u32 v{vT+2}, 0, v{vL16}\nv_mov_b32 v{vT+3}, s{sStep}")
                    if not Cfg.NOFL: sch.fill(f"buffer_store_dword v{vT+3}, v{vT+2}, {WSR}, s{sProg} offen sc1")
                else:
                    sch.pop(1)
                if final and c == 0 and n_ == last and 'Q' == res_at[0]:
                    nx = [r for r in res_list if res_at[r] in mats]
                    for x2 in range(2):
                        ins = rq(nx[0], x2)
                        sch.front([(ins[0], ('R',nx[0],x2)), (ins[1], ('R',nx[0],x2))])
        sch.flush()
        if not final:
            cyc(a, 52); ev(a, 2)
            for _ in range(ADDQ): a('s_nop 15')
        A7, A8 = AS+4, AS
        if final or not POSTFIRST:
            smf(a, v0_, A7, WM[('V',7,0)]); smf(a, v1_, A7, WM[('V',7,1)])
            a("s_nop 1")
        vp = v0_
        if final:
            lq.wait([('R',8,0),('R',8,1)])
            smf(a, v0_, A8, LD); smf(a, v1_, A8, LD+8)
            a.nop(8)
            a(f"v_pk_add_f32 {vr(k0,2)}, {vr(k0,2)}, {vr(k0+2,2)}\nv_pk_add_f32 {vr(k1,2)}, {vr(k1,2)}, {vr(k1+2,2)}")
            a(f"v_cvt_pk_bf16_f32 v{k0}, v{k0}, v{k0+1}\nv_cvt_pk_bf16_f32 v{k0+2}, v{k1}, v{k1+1}")
            a(f"v_pk_add_f32 {vr(v0_,2)}, {vr(v0_,2)}, {vr(v0_+2,2)}\nv_pk_add_f32 {vr(v1_,2)}, {vr(v1_,2)}, {vr(v1_+2,2)}")
            a(f"v_cvt_pk_bf16_f32 v{k0+1}, v{v0_}, v{v0_+1}\nv_cvt_pk_bf16_f32 v{k0+3}, v{v1_}, v{v1_+1}")
            a(f"buffer_store_dwordx4 {vr(k0,4)}, v{vL16}, {WSR}, s{sPub} offen sc1")
            a("s_branch L_chain_last")
            return
        a(f"v_pk_add_f32 {vr(q0,2)}, {vr(q0,2)}, {vr(q0+2,2)}\nv_pk_add_f32 {vr(k0,2)}, {vr(k0,2)}, {vr(k0+2,2)}")
        a(f"v_cvt_pk_bf16_f32 v{k0}, v{k0}, v{k0+1}\nv_cvt_pk_bf16_f32 v{k0+1}, v{q0}, v{q0+1}")
        a(f"ds_write_b64 v{vXQw}, {vr(k0,2)}")
        a(f"v_pk_add_f32 {vr(q1,2)}, {vr(q1,2)}, {vr(q1+2,2)}\nv_pk_add_f32 {vr(k1,2)}, {vr(k1,2)}, {vr(k1+2,2)}")
        a(f"v_cvt_pk_bf16_f32 v{k0+2}, v{k1}, v{k1+1}\nv_cvt_pk_bf16_f32 v{k0+3}, v{q1}, v{q1+1}")
        a(f"ds_write_b64 v{vXQw}, {vr(k0+2,2)} offset:512")
        lq.add('XW', 2)
        if POSTFIRST:
            smf(a, v0_, A7, WM[('V',7,0)]); smf(a, v1_, A7, WM[('V',7,1)])
        lq.wait([('R',8,0),('R',8,1)])
        smf(a, v0_, A8, LD)
        smf(a, v1_, A8, LD+8)
        a("s_waitcnt lgkmcnt(0)\ns_barrier")
        sm, s1, s2 = q0, q1, k1
        KL = [24, 28, 12]
        for ks in range(4):
            for x2 in range(2):
                a(f"ds_read_b64_tr_b16 {vr(LD+4*ks+2*x2,2)}, v{vTrX} offset:{(32*ks+16*x2)*32}")
        def kxread(i): return f"ds_read_b128 {vr(KL[i%3],4)}, v{vHi} offset:{KXB - HB + i*1024}"
        for i in range(3): a(kxread(i))
        a(f"v_pk_add_f32 {vr(v0_,2)}, {vr(v0_,2)}, {vr(v0_+2,2)}\nv_pk_add_f32 {vr(v1_,2)}, {vr(v1_,2)}, {vr(v1_+2,2)}")
        a(f"v_cvt_pk_bf16_f32 v{k0+1}, v{v0_}, v{v0_+1}\nv_cvt_pk_bf16_f32 v{k0+3}, v{v1_}, v{v1_+1}")
        a(f"v_cvt_pk_bf16_f32 v{vp}, v{v0_}, v{v0_+1}\nv_cvt_pk_bf16_f32 v{vp+2}, v{v1_}, v{v1_+1}\nv_mov_b32 v{vp+1}, 0\nv_mov_b32 v{vp+3}, 0")
        cyc(a, 53)
        a("s_waitcnt lgkmcnt(3)")
        ones = v1_
        for ks in range(4):
            c = "0" if ks == 0 else vr(sm,4)
            a(f"v_mfma_f32_16x16x32_bf16 {vr(sm,4)}, {vr(LD+4*ks,4)}, {vr(LD+4*ks,4)}, {c}")
            a(f"v_mov_b32 v{ones+ks}, 0x3f803f80")
            if ks == 1 and not Cfg.NOPUB: a(f"buffer_store_dwordx4 {vr(k0,4)}, v{vL16}, {WSR}, s{sPub} offen sc1")
        for i in range(8):
            t, ks = i >> 2, i & 3
            d = s1 if t == 0 else s2
            a(f"s_waitcnt lgkmcnt({min(2, 7 - i)})")
            c = "0" if ks == 0 else vr(d,4)
            a(f"v_mfma_f32_16x16x32_bf16 {vr(d,4)}, {vr(KL[i%3],4)}, {vr(LD+4*ks,4)}, {c}")
            if i + 3 < 8: a(kxread(i + 3))
            if i == 6: a(f"s_add_u32 s{sPub}, s{sPub}, {32*4096}")
        a(f"ds_read_b128 {vr(LD+8,4)}, v{vResO} offset:0\nds_read_b128 {vr(LD+12,4)}, v{vResO} offset:1024")
        if KXEARLY:
            a(f"s_add_u32 m0, s{sW1k}, s{sW1k}\ns_add_u32 m0, m0, {KXB}\ns_barrier")
            if not Cfg.NOKX: a(f"buffer_load_dwordx4 v{vL16}, {WSR}, s{sKXo} offen sc1 lds\nbuffer_load_dwordx4 v{vL16}, {WSR}, s{sKXo} offen offset:1024 sc1 lds")
            a(f"s_add_u32 s{sKXo}, s{sKXo}, {ST}")
        else:
            a.nop(5)
        cyc(a, 54); ev(a, 3)
        vals = [sm, sm+1, s1, s1+1, s1+2, s1+3, s2, s2+1, s2+2, s2+3]
        mx, t2 = AS, AS+1
        pairs = (sm, s1, s1+2, s2, s2+2)
        def truemax():
            a(f"v_max3_f32 v{mx}, v{vals[0]}, v{vals[1]}, v{vals[2]}")
            a(f"v_max3_f32 v{t2}, v{vals[3]}, v{vals[4]}, v{vals[5]}")
            a(f"v_max3_f32 v{mx}, v{mx}, v{vals[6]}, v{vals[7]}")
            a(f"v_max3_f32 v{t2}, v{t2}, v{vals[8]}, v{vals[9]}")
            a(f"v_max_f32 v{mx}, v{mx}, v{t2}")
            a(f"v_mov_b32 v{t2}, v{mx}\ns_nop 1\nv_permlane16_swap_b32 v{mx}, v{t2}\ns_nop 0\nv_max_f32 v{mx}, v{mx}, v{t2}")
            a(f"v_mov_b32 v{t2}, v{mx}\ns_nop 1\nv_permlane32_swap_b32 v{mx}, v{t2}\ns_nop 0\nv_max_f32 v{mx}, v{mx}, v{t2}")
            a(f"v_mul_f32 v{mx}, s{sC1}, v{mx}")
            for b_ in pairs:
                a(f"v_pk_fma_f32 {vr(b_,2)}, {vr(b_,2)}, s[{sC1}:{sC1+1}], {vr(mx,2)} op_sel_hi:[1,1,0] neg_lo:[0,0,1] neg_hi:[0,0,1]")
        if SKIPMAX:
            a(f"v_max3_f32 v{mx}, |v{vals[0]}|, |v{vals[1]}|, |v{vals[2]}|")
            a(f"v_max3_f32 v{t2}, |v{vals[3]}|, |v{vals[4]}|, |v{vals[5]}|")
            a(f"v_max3_f32 v{mx}, v{mx}, |v{vals[6]}|, |v{vals[7]}|")
            a(f"v_max3_f32 v{t2}, v{t2}, |v{vals[8]}|, |v{vals[9]}|")
            a(f"v_max_f32 v{mx}, v{mx}, v{t2}")
            a(f"v_cmp_nle_f32 vcc, v{mx}, v{vThr}" if False else f"v_cmp_ngt_f32 vcc, s{sThr}, v{mx}")
            for b_ in pairs[:2]:
                pass
            a(f"s_and_b64 vcc, vcc, s[{sMask}:{sMask+1}]\ns_cbranch_scc1 {lb('L_tmax')}")
            for b_ in pairs:
                a(f"v_pk_mul_f32 {vr(b_,2)}, {vr(b_,2)}, s[{sC1}:{sC1+1}]")
            a.lab(lb("L_tmaxr"))
            def ool_tm():
                a.lab(lb("L_tmax"))
                truemax()
                a(f"s_branch {lb('L_tmaxr')}")
            ool.append(ool_tm)
        else:
            truemax()
        if not SKIPSM:
            for v in vals: a(f"v_exp_f32 v{v}, v{v}")
        pm, px, lr = LD, LD+4, AS+4
        a(f"v_mov_b32 v{pm+1}, 0")
        a(f"v_cvt_pk_bf16_f32 v{pm}, v{sm}, v{sm+1}")
        a(f"v_cvt_pk_bf16_f32 v{px}, v{s1}, v{s1+1}\nv_cvt_pk_bf16_f32 v{px+1}, v{s1+2}, v{s1+3}")
        a(f"v_cvt_pk_bf16_f32 v{px+2}, v{s2}, v{s2+1}\nv_cvt_pk_bf16_f32 v{px+3}, v{s2+2}, v{s2+3}")
        o0, o1 = sm, s1
        probe(a, f"s_waitcnt vmcnt({max(0, 2 + (2 if KXEARLY and not Cfg.NOKX else 0) - (1 if Cfg.NOPUB else 0) - (1 if Cfg.NOFL else 0))})", 59, 60)
        a("s_nop 0")
        a(f"v_mfma_f32_16x16x32_bf16 {vr(lr,4)}, {vr(ones,4)}, {vr(px,4)}, 0")
        a(f"v_mfma_f32_16x16x32_bf16 {vr(o0,4)}, {vr(PB,4)}, {vr(px,4)}, 0")
        a(f"ds_read_b128 v[56:59], v{vResO} offset:8192")
        a(f"v_mfma_f32_16x16x32_bf16 {vr(o1,4)}, {vr(PB+4,4)}, {vr(px,4)}, 0")
        a(f"ds_read_b128 v[60:63], v{vResO} offset:{8192+1024}")
        a(f"v_mfma_f32_16x16x16_bf16 {vr(lr,4)}, {vr(ones,2)}, {vr(pm,2)}, {vr(lr,4)}")
        a(f"v_mfma_f32_16x16x16_bf16 {vr(o0,4)}, {vr(vp,2)}, {vr(pm,2)}, {vr(o0,4)}")
        a(f"v_mfma_f32_16x16x16_bf16 {vr(o1,4)}, {vr(vp+2,2)}, {vr(pm,2)}, {vr(o1,4)}")
        zero(a, 12, 4); zero(a, PB, 4)
        a("s_nop 1")
        a(f"v_rcp_f32 v{AS}, v{lr}")
        zero(a, PB+4, 2)
        for j in range(0, 8, 2):
            a(f"v_pk_mul_f32 {vr(o0+j,2)}, {vr(o0+j,2)}, {vr(AS,2)} op_sel_hi:[1,0]")
        a(f"v_cvt_pk_bf16_f32 v{o0}, v{o0}, v{o0+1}\nv_cvt_pk_bf16_f32 v{o0+1}, v{o0+2}, v{o0+3}")
        a(f"ds_write_b64 v{vXOw}, {vr(o0,2)}")
        a(f"v_cvt_pk_bf16_f32 v{o1}, v{o1}, v{o1+1}\nv_cvt_pk_bf16_f32 v{o1+1}, v{o1+2}, v{o1+3}")
        a(f"ds_write_b64 v{vXOw}, {vr(o1,2)} offset:512")
        zero(a, PB+6, 2); zero(a, 24, 8); zero(a, 64, 8)
        if not KXEARLY: a(f"s_add_u32 m0, s{sW1k}, s{sW1k}\ns_add_u32 m0, m0, {KXB}")
        a("s_waitcnt lgkmcnt(0)\ns_barrier")
        a(f"ds_read_b128 {vr(LD,4)}, v{vHi} offset:{XO-HB}\nds_read_b128 {vr(LD+4,4)}, v{vHi} offset:{XO-HB+1024}")
        if not KXEARLY:
            if not Cfg.NOKX: a(f"buffer_load_dwordx4 v{vL16}, {WSR}, s{sKXo} offen sc1 lds\nbuffer_load_dwordx4 v{vL16}, {WSR}, s{sKXo} offen offset:1024 sc1 lds")
        zero(a, 48, 8)
        if not KXEARLY: a(f"s_add_u32 s{sKXo}, s{sKXo}, {ST}")
        a("s_waitcnt lgkmcnt(0)")
        cyc(a, 55); ev(a, 4)
        WA = [16, 20, 24, 28, 68, 64, 12, 48, 52]
        ROr = [LD+8, 56]
        lq2 = LQ(a); sc2 = Sch(a, lq2); sc2.vs = VSPACE2
        def post_(j):
            d = WA[j]
            a(f"v_pk_add_f32 {vr(d,2)}, {vr(d,2)}, {vr(d+2,2)}\nv_cvt_pk_bf16_f32 v{d}, v{d}, v{d+1}")
            sc2.front([(f"buffer_store_dword v{d}, v{vL4}, {WSR}, s{sPJ+j} offen{sfx}", None)])
        for j in range(9):
            smf(a, WA[j], LD, WM[('O',j,0)])
            sc2.pop(1)
            if (j,1) in RESO_L:
                k = RESO_L.index((j,1))
                lq2.wait([('O',k)])
                smf(a, WA[j], LD+4, ROr[k % 2])
                if k + 2 < 5:
                    d = ROr[k % 2]
                    sc2.fill(f"ds_read_b128 {vr(d,4)}, v{vResO} offset:{(k+2)*8192}", ('O',k+2))
                    sc2.fill(f"ds_read_b128 {vr(d+4,4)}, v{vResO} offset:{(k+2)*8192+1024}", ('O',k+2))
            else:
                smf(a, WA[j], LD+4, WM[('O',j,1)])
            sc2.pop(1)
            if j >= WLAG: post_(j - WLAG)
        sc2.flush()
        if WLAG == 2:
            post_(7); sc2.flush()
            a("s_nop 1")
        else:
            a("s_nop 5")
        post_(8); sc2.flush()
        for _ in range(ADDW): a('s_nop 15')
        cyc(a, 56); ev(a, 5)
        a(f"s_cmp_eq_u32 s{sRT}, -1\ns_cbranch_scc1 {lb('L_nonred')}")
        a(f"ds_read_b128 v[68:71], v{vHi} offset:{SEL-HB}\ns_add_u32 s{sT1}, s{sRd}, 4096")
        if not EARLY: book_salu(a)
        if SIMPLEW:
            a(f"s_cmp_lt_u32 s{sRT}, {LATE}\ns_cbranch_scc1 {lb('L_poll1')}\ns_waitcnt vmcnt({N2})")
        else:
            a(f"s_waitcnt vmcnt({NE})\ns_cmp_lt_u32 s{sRT}, 16\ns_cbranch_scc1 {lb('L_poll1')}\ns_waitcnt vmcnt({N2})\ns_cmp_lt_u32 s{sRT}, {LATE}\ns_cbranch_scc1 {lb('L_poll1')}\ns_waitcnt vmcnt(0)")
        a.lab(lb("L_poll1"))
        loads1()
        if EARLY: book_salu(a)
        a(f"s_add_u32 s5, s{sMemOff}, {CH_MEM}\ns_add_u32 s6, s5, {2*CS}\ns_xor_b32 s4, s{sMemOff}, 0x20000\ns_add_u32 s{sRm0}, s4, {CH_MEM}\ns_add_u32 s{sRm1}, s{sRm0}, {2*CS}")
        zero(a, ACC, 16)
        a(f"v_mov_b32 v{vT+1}, -1")
        a("s_waitcnt lgkmcnt(0)")
        a.lab(lb("L_w1"))
        for j in range(8):
            b = RL + 4*j
            a(f"s_waitcnt vmcnt({7-j})")
            a(f"v_mfma_f32_16x16x32_bf16 v[64:67], {vr(b,4)}, v[68:71], " + ("0" if j == 0 else "v[64:67]"))
            if j == 2: a(f"v_max3_u32 v{vT}, v{RL}, v{RL+4}, v{RL+8}")
            if j == 4: a(f"v_max3_u32 v{vT}, v{RL+12}, v{RL+16}, v{vT}")
            if j == 6: a(f"v_max3_u32 v{vT}, v{RL+20}, v{RL+24}, v{vT}")
        a(f"v_max_u32 v{vT}, v{vT}, v{RL+28}\nv_cmp_eq_u32 vcc, -1, v{vT}\ns_cbranch_vccnz {lb('L_retry1')}")
        ev(a, 6, 31)
        a(f"""
        s_xor_b32 s{sRd}, s{sRd}, s{sRdX}
        s_nop 3
        v_cvt_pk_bf16_f32 v64, v64, v65
        v_cvt_pk_bf16_f32 v65, v66, v67
        buffer_store_dwordx2 v[64:65], v{vMst}, {WSR}, s5 offen{sfx}
        buffer_store_dwordx2 v[64:65], v{vMst}, {WSR}, s6 offen{sfx}
        """)
        a(f"buffer_store_dword v{vT+1}, v{vMst}, {WSR}, s{sRm0} offen{sfx}\nbuffer_store_dword v{vT+1}, v{vMst}, {WSR}, s{sRm1} offen{sfx}")
        first_poll()
        for x in range(2):
            for ins in rq(0, x): a(ins)
        zero(a, ACC+16, 8)
        a(f"s_branch {lb('L_common')}")
        a.lab(lb("L_nonred"))
        book_salu(a)
        a.lab(lb("L_book"))
        zero(a, ACC, 24)
        for x in range(2):
            for ins in rq(0, x): a(ins)
        if DELAY0: a(f"s_sleep {DELAY0}")
        first_poll()
        a(f"s_branch {lb('L_common')}")
        def ool_r1():
            a.lab(lb("L_retry1"))
            if Cfg.STAMPS: a("s_add_u32 s61, s61, 1")
            spin_check(a)
            loads1()
            a(f"s_branch {lb('L_w1')}")
        ool.append(ool_r1)
    emit(False)
    emit(True)
    for f in ool: f()

SKIPMAX = True
POSTFIRST = True
WLAG = 1
PIPE = False
D0 = False
SIMPLEW = False
KXEARLY = False
sThr = 83
BACKOFF = 0
DELAY0 = 14
XP = {}
EARLY = True
CODEPF = True
OPOS = (0,1,2,3,4,5,6,7,8)
THROT = 0
CODEPF2 = False
ADDQ = 0
ADDW = 0
SKIPSM = False
PF2 = False
PROBE = False
PERLOAD = False
NE = 6
N2 = 2
LATE = 24
def chain(a):
    chain_init(a)
    chain_state_init(a)
    a(f"s_cmp_lg_u32 s{sMode}, 0\ns_cbranch_scc1 L_book_s\ns_branch L_book_f")
    chain_loop(a, False)
    chain_loop(a, True)
    a.lab("L_chain_last")
    a(f"""
    s_waitcnt vmcnt(0)
    s_barrier
    v_sub_u32 v{vT}, 0, v{vL16}
    v_mov_b32 v{vT+1}, 64
    buffer_store_dword v{vT+1}, v{vT}, {WSR}, s{sProg} offen sc1
    """)
    stamp(a, 3, 12, 13)
    dbgt(a, 10, 'umax')
    cyc_out(a, 16, ACCS+[S_SPIN], 12, 13)
    ev_dump(a, 10)
    a("s_waitcnt vmcnt(0)")
```

```python
from common import *

sGrp=68; sSl=69; sSeg=70; sAoff=71; sT0=72; sT1=73; sT2=74
vL16=2; vTrA=3
vDm=6; vRed=7; vOutOff=8; vGoff=9
ACC2=12
LAND=36
TMP=76
def B2(ks, nt, KS):
    i = (ks*3+nt)*4
    return 256+i if i < 256 else (512 - KS*12) + (i-256)

def w2_consts(a):
    a(f"""
    v_lshlrev_b32 v{vL16}, 4, v0
    v_lshrrev_b32 v12, 3, v0
    v_and_b32 v13, 7, v0
    v_bfe_u32 v14, v0, 4, 2
    v_lshlrev_b32 v14, 1, v14
    v_xor_b32 v13, v13, v14
    v_lshlrev_b32 v13, 4, v13
    s_movk_i32 s4, 1152
    v_mul_lo_u32 v12, v12, s4
    v_add_u32 v{vDm}, v12, v13
    v_lshrrev_b32 v12, 2, v0          ; 4g + r  (= l>>2)
    v_bfe_u32 v13, v12, 1, 2
    v_lshlrev_b32 v13, 1, v13         ; swz
    v_lshlrev_b32 v12, 7, v12
    v_and_b32 v14, 1, v0
    v_lshlrev_b32 v14, 3, v14
    v_add_u32 v12, v12, v14
    s_mul_i32 s4, s3, 40960
    v_add_u32 v12, s4, v12
    v_bfe_u32 v14, v0, 1, 1
    """)
    for nt in range(3):
        a(f"""
        v_add_u32 v15, {2*nt}, v14
        v_xor_b32 v15, v15, v13
        v_lshlrev_b32 v15, 4, v15
        v_add_u32 v{vTrA+nt}, v12, v15
        """)

def w2_bload(a, KS, wptr, nrows):
    a(f"s_mul_i32 s13, s{sSl}, 96")
    srd(a, SB0, P[wptr], nrows*1152, add="s13")
    a(f"s_sub_u32 s{SB0+2}, s{SB0+2}, s13")
    NU = KS // 2
    NS = 5
    a(f"s_mul_i32 s12, s3, {KS*32*1152}")
    a(f"s_mul_i32 s11, s3, 40960")
    def issue(u):
        for jj in range(8):
            a(f"s_add_u32 m0, s11, {(u % NS)*8192 + jj*1024}")
            a(f"s_add_u32 s4, s12, {(64*u + 8*jj)*1152}")
            a(f"buffer_load_dwordx4 v{vDm}, s[{SB0}:{SB0+3}], s4 offen lds")
    for u in range(min(NS, NU)): issue(u)
    for u in range(NU):
        issued = min(u + NS - 1, NU - 1)
        a(f"s_waitcnt vmcnt({(issued - u)*8})")
        for k2 in range(2):
            ks = 2*u + k2
            for nt in range(3):
                b = B2(ks, nt, KS)
                for x in range(2):
                    a(f"ds_read_b64_tr_b16 {R(b+2*x,2)}, v{vTrA+nt} offset:{(u % NS)*8192 + (32*k2+16*x)*128}")
        a("s_waitcnt lgkmcnt(0)")
        if u + NS < NU: issue(u + NS)

DEEP = False
RED = 0
sTT=75; sK=76; sGB=77
BOFF = 5
def w2_gemm(a, KS, abase, segstride, D, check=False):
    a(f"""
    s_mul_i32 s{sAoff}, s{sSeg}, {segstride}
    s_mul_i32 s4, s3, {KS*2048}
    s_add_u32 s{sAoff}, s{sAoff}, s4
    s_lshl_b32 s4, s{sTT}, 10
    s_add_u32 s{sAoff}, s{sAoff}, s4
    s_add_u32 s{sAoff}, s{sAoff}, {abase}
    """)
    def aload(ks):
        buf = LAND + (ks % D)*4
        if ks % 2 == 0: a(f"s_add_u32 s{sT0}, s{sAoff}, {ks*2048}")
        a(f"buffer_load_dwordx4 {vr(buf,4)}, v{vL16}, s[{SWS}:{SWS+3}], s{sT0} offen offset:{(ks%2)*2048} sc1")
    ool = []
    if check:
        Lp = a.uniq("L_pr")
        a(f"v_and_b32 v{TMP}, 31, v0\nv_lshlrev_b32 v{TMP}, 11, v{TMP}\nv_add_u32 v{TMP}, {63*16}, v{TMP}")
        a.lab(Lp)
        a(f"buffer_load_dword v{TMP+1}, v{TMP}, s[{SWS}:{SWS+3}], s{sAoff} offen sc1\ns_waitcnt vmcnt(0)\nv_cmp_eq_u32 vcc, -1, v{TMP+1}")
        Lq = a.uniq("L_prd")
        a(f"s_cbranch_vccz {Lq}")
        spin_check(a)
        a(f"s_branch {Lp}")
        a.lab(Lq)
    for ks in range(D - 1): aload(ks)
    for ks in range(KS):
        if ks + D - 1 < KS:
            aload(ks + D - 1)
            a(f"s_waitcnt vmcnt({D-1})")
        else:
            a(f"s_waitcnt vmcnt({KS-1-ks})")
        buf = LAND + (ks % D)*4
        if check:
            Lr = a.uniq("L_gr"); Lb = a.uniq("L_gb")
            a(f"v_cmp_eq_u32 vcc, -1, v{buf}\ns_cbranch_vccnz {Lr}")
            a.lab(Lb)
            ool.append((Lr, Lb, ks, buf))
        for nt in range(3):
            acc = ACC2 + nt*4
            c = "0" if ks == 0 else vr(acc,4)
            a(f"v_mfma_f32_16x16x32_bf16 {vr(acc,4)}, {R(B2(ks,nt,KS),4)}, {vr(buf,4)}, {c}")
    if ool:
        Lj = a.uniq("L_gj")
        a(f"s_branch {Lj}")
        for (Lr, Lb, ks, buf) in ool:
            a.lab(Lr)
            spin_check(a)
            a(f"s_add_u32 s6, s{sAoff}, {ks*2048}\nbuffer_load_dwordx4 {vr(buf,4)}, v{vL16}, s[{SWS}:{SWS+3}], s6 offen sc1\ns_waitcnt vmcnt(0)")
            a(f"v_cmp_eq_u32 vcc, -1, v{buf}\ns_cbranch_vccnz {Lr}\ns_branch {Lb}")
        a.lab(Lj)
    a(f"s_mul_i32 s4, s3, 3072\nv_add_u32 v{vRed}, s4, v{vL16}")
    a.nop(8)
    for t in range(3):
        a(f"ds_write_b128 v{vRed}, {vr(ACC2+4*t,4)} offset:{RED + t*1024}")
    a("s_waitcnt lgkmcnt(0)\ns_barrier")
    a(f"s_lshl_b32 s4, s3, 10\nv_add_u32 v{vRed}, s4, v{vL16}")
    for p in range(4):
        a(f"ds_read_b128 {vr(LAND+4*p,4)}, v{vRed} offset:{RED + p*3072}")
    a("s_waitcnt lgkmcnt(0)")
    for r in range(4):
        a(f"v_add_f32 v{LAND+r}, v{LAND+r}, v{LAND+4+r}\nv_add_f32 v{LAND+8+r}, v{LAND+8+r}, v{LAND+12+r}")
    for r in range(4):
        a(f"v_add_f32 v{ACC2+r}, v{LAND+r}, v{LAND+8+r}")
    a("s_barrier")

def task_iter(a, name, body):
    a(f"s_add_u32 s{sGB}, s{sGrp}, {BOFF}\ns_cmp_ge_u32 s{sGB}, 18\ns_cbranch_scc0 {name}_g1\ns_sub_u32 s{sGB}, s{sGB}, 18\n{name}_g1:")
    a(f"s_mov_b32 s{sK}, 0")
    a.lab(f"{name}_loop")
    a(f"""
    s_and_b32 s4, s{sK}, 1
    s_cmp_lt_u32 s{sGrp}, {18-BOFF}
    s_cselect_b32 s5, 0, 1
    s_xor_b32 s{sTT}, s4, s5
    s_lshr_b32 s4, s{sK}, 1
    s_mul_i32 s4, s4, 18
    s_cmp_eq_u32 s{sTT}, 0
    s_cselect_b32 s5, s{sGrp}, s{sGB}
    s_add_u32 s{sSeg}, s4, s5
    s_cmp_ge_u32 s{sSeg}, 64
    s_cbranch_scc1 {name}_next
    """)
    body(a)
    a.lab(f"{name}_next")
    a(f"s_add_u32 s{sK}, s{sK}, 1\ns_cmp_lt_u32 s{sK}, 8\ns_cbranch_scc1 {name}_loop")

def bb_off(a, dst):
    a(f"""
    s_lshl_b32 s4, s{sSeg}, 1
    s_add_u32 s4, s4, s{sTT}
    s_mul_i32 s4, s4, 12
    s_add_u32 s4, s4, s{sSl}
    s_mul_i32 s4, s4, 3072
    s_lshl_b32 s5, s3, 10
    s_add_u32 s4, s4, s5
    s_add_u32 s{dst}, s4, {WS_BB}
    """)

def ffn2_phase(a):
    w2_consts(a)
    w2_bload(a, 36, 'Wd', 4608)
    stamp(a, 3)
    def body(a):
        a(f"s_lshr_b32 s5, s{sSeg}, 1\ns_lshl_b32 s5, s5, 7\ns_add_u32 s{sT1}, s5, {F_H}")
        wg_wait_flag(a, sT1, 36)
        w2_gemm(a, 36, WS_H, 144*2048, D=10)
        bb_off(a, sT1)
        L = a.uniq("L_ffn2_ns")
        a(f"s_cmp_ge_u32 s3, 3\ns_cbranch_scc1 {L}")
        a(f"buffer_store_dwordx4 {vr(ACC2,4)}, v{vL16}, s[{SWS}:{SWS+3}], s{sT1} offen sc1")
        a.lab(L)
    task_iter(a, "L_ffn2", body)
    a("s_waitcnt vmcnt(0)\ns_barrier")

tQ=12
tK=44
tS=76
tKM=100
tVM=116
tT=124
C1 = (128 ** -0.5) * 1.4426950408889634
def t4_task(a, Ldone):
    sF=sT1
    stamp(a, 12, vd=tT, vz=tT+1)
    a(f"""
    s_lshr_b32 s5, s{sSeg}, 1
    s_lshl_b32 s5, s5, 7
    s_add_u32 s{sF}, s5, {F_KV}
    """)
    wave_wait_flag(a, sF, 32, vt=tT)
    a(f"s_add_u32 s{sF}, s5, {F_Q}")
    wave_wait_flag(a, sF, 16, vt=tT)
    a(f"""
    s_lshl_b32 s4, s{sSeg}, 5
    s_add_u32 s4, s4, s15             ; s*32+h
    s_lshl_b32 s{sT0}, s4, 13         ; *8192
    s_add_u32 s{sT2}, s{sT0}, {WS_QX}
    """)
    for i in range(8):
        if i == 4: a(f"s_add_u32 s{sT2}, s{sT2}, 4096")
        a(f"buffer_load_dwordx4 {vr(tQ+4*i,4)}, v{vL16}, s[{SWS}:{SWS+3}], s{sT2} offen offset:{(i%4)*1024} sc1")
    a(f"s_add_u32 s{sT2}, s{sT0}, {WS_KX}")
    for i in range(8):
        if i == 4: a(f"s_add_u32 s{sT2}, s{sT2}, 4096")
        a(f"buffer_load_dwordx4 {vr(tK+4*i,4)}, v{vL16}, s[{SWS}:{SWS+3}], s{sT2} offen offset:{(i%4)*1024} sc1")
    a("s_waitcnt vmcnt(0)")
    for t in range(2):
        for tt in range(2):
            if t > tt: continue
            d = tS + ((1+t)*2+tt)*4
            for ks in range(4):
                c = "0" if ks == 0 else vr(d,4)
                a(f"v_mfma_f32_16x16x32_bf16 {vr(d,4)}, {vr(tK+(t*4+ks)*4,4)}, {vr(tQ+(tt*4+ks)*4,4)}, {c}")
    a(f"s_nop 7\ns_add_u32 s{sT2}, s{sT0}, {WS_VX}")
    for i in range(8):
        if i == 4: a(f"s_add_u32 s{sT2}, s{sT2}, 4096")
        a(f"buffer_load_dwordx4 {vr(tK+4*i,4)}, v{vL16}, s[{SWS}:{SWS+3}], s{sT2} offen offset:{(i%4)*1024} sc1")
    stamp(a, 13, vd=tT, vz=tT+1)
    a(f"s_lshl_b32 s5, s15, 7\ns_add_u32 s{sF}, s5, {F_PROG}\ns_add_u32 s7, s{sSeg}, 1\ns_min_u32 s7, s7, 63\nv_mov_b32 v{tT}, 0")
    Lw = a.uniq("L_pg"); Ld = a.uniq("L_pgd"); Ls = a.uniq("L_pgs")
    a.lab(Lw)
    a(f"buffer_load_dword v{tKM}, v{tT}, s[{SWS}:{SWS+3}], s{sF} offen sc1\ns_waitcnt vmcnt(0)")
    a(f"v_readfirstlane_b32 s4, v{tKM}\ns_nop 1")
    a(f"s_cmp_ge_u32 s4, s7\ns_cbranch_scc1 {Ld}")
    spin_check(a)
    a(f"s_sub_u32 s4, s7, s4\ns_cmp_le_u32 s4, 3\ns_cbranch_scc1 {Ls}\ns_sleep 32\ns_branch {Lw}")
    a.lab(Ls)
    a(f"s_sleep 1\ns_branch {Lw}")
    a.lab(Ld)
    stamp(a, 8, vd=tT, vz=tT+1)
    a(f"""
    s_lshl_b32 s4, s{sSeg}, 5
    s_add_u32 s4, s4, s15
    s_lshl_b32 s5, s4, 12
    s_add_u32 s{sT2}, s5, {WS_KM}
    """)
    Lkm = a.uniq("L_km"); Lkd = a.uniq("L_kmd")
    a.lab(Lkm)
    for w_ in range(4):
        a(f"buffer_load_dwordx4 {vr(tKM+4*w_,4)}, v{vL16}, s[{SWS}:{SWS+3}], s{sT2} offen offset:{w_*1024} sc1")
    a(f"s_cmp_lg_u32 s{sSeg}, 63\ns_cbranch_scc1 {Lkd}\ns_waitcnt vmcnt(0)")
    a(f"v_max3_u32 v{tT}, v{tKM}, v{tKM+4}, v{tKM+8}\nv_max_u32 v{tT}, v{tT}, v{tKM+12}\nv_cmp_eq_u32 vcc, -1, v{tT}\ns_cbranch_vccz {Lkd}")
    spin_check(a)
    a(f"s_branch {Lkm}")
    a.lab(Lkd)
    a(f"""
    s_lshl_b32 s5, s3, 12
    s_add_u32 s5, s5, 32768
    v_and_b32 v{tT}, 15, v0
    v_lshlrev_b32 v{tT}, 5, v{tT}
    v_lshrrev_b32 v{tT+1}, 4, v0
    v_lshlrev_b32 v{tT+1}, 3, v{tT+1}
    v_add3_u32 v{tT}, v{tT}, v{tT+1}, s5
    v_lshrrev_b32 v{tT+1}, 2, v0
    v_lshlrev_b32 v{tT+1}, 5, v{tT+1}
    v_and_b32 v{tT+2}, 3, v0
    v_lshlrev_b32 v{tT+2}, 3, v{tT+2}
    v_add3_u32 v{tT+1}, v{tT+1}, v{tT+2}, s5
    s_waitcnt vmcnt(0)
    """)
    for et in range(8): a(f"v_mov_b32 v{tVM+et}, v{tKM + 4*(et>>1) + 2*(et&1) + 1}")
    for w_ in range(4):
        a(f"ds_write_b64 v{tT}, {vr(tKM+4*w_,2)} offset:{w_*1024}\nds_write_b64 v{tT}, {vr(tKM+4*w_+2,2)} offset:{w_*1024+512}")
    a("s_waitcnt lgkmcnt(0)")
    for ks in range(4):
        for x2 in range(2):
            a(f"ds_read_b64_tr_b16 {vr(tKM+4*ks+2*x2,2)}, v{tT+1} offset:{(32*ks+16*x2)*32}")
    a("s_waitcnt lgkmcnt(0)")
    for tt in range(2):
        d = tS + tt*4
        for ks in range(4):
            c = "0" if ks == 0 else vr(d,4)
            a(f"v_mfma_f32_16x16x32_bf16 {vr(d,4)}, {vr(tKM+ks*4,4)}, {vr(tQ+(tt*4+ks)*4,4)}, {c}")
    a.nop(8)
    a(f"""
    v_lshrrev_b32 v{tT}, 4, v0
    v_lshlrev_b32 v{tT}, 2, v{tT}
    v_and_b32 v{tT+1}, 15, v0
    v_sub_u32 v{tT}, v{tT}, v{tT+1}
    v_mov_b32 v{tT+1}, 0xff800000
    """)
    for tt in range(2):
        d = tS + ((1+tt)*2+tt)*4
        for r in range(4):
            a(f"v_cmp_lt_i32 vcc, {-r}, v{tT}\ns_nop 1\nv_cndmask_b32 v{d+r}, v{d+r}, v{tT+1}, vcc")
    a(f"s_mov_b32 s6, {fb(C1)}")
    for tt in range(2):
        sm = tS + tt*4; s1 = tS + (2+tt)*4; s2 = tS + (4+tt)*4
        vals = [sm, sm+1, s1, s1+1, s1+2, s1+3] + ([s2, s2+1, s2+2, s2+3] if tt == 1 else [])
        mx = tT; t2 = tT+1
        a(f"v_max3_f32 v{mx}, v{vals[0]}, v{vals[1]}, v{vals[2]}")
        rest = vals[3:]
        while len(rest) >= 2:
            a(f"v_max3_f32 v{mx}, v{mx}, v{rest[0]}, v{rest[1]}"); rest = rest[2:]
        if rest: a(f"v_max_f32 v{mx}, v{mx}, v{rest[0]}")
        for sw in ("v_permlane16_swap_b32", "v_permlane32_swap_b32"):
            a(f"v_mov_b32 v{t2}, v{mx}\ns_nop 1\n{sw} v{mx}, v{t2}\ns_nop 1\nv_max_f32 v{mx}, v{mx}, v{t2}")
        a(f"v_mul_f32 v{mx}, s6, v{mx}")
        for v in vals: a(f"v_fma_f32 v{v}, v{v}, s6, -v{mx}")
        for v in vals: a(f"v_exp_f32 v{v}, v{v}")
        a("s_nop 0")
        p = tQ + tt*8
        a(f"v_cvt_pk_bf16_f32 v{p}, v{sm}, v{sm+1}\nv_mov_b32 v{p+1}, 0")
        a(f"v_cvt_pk_bf16_f32 v{p+4}, v{s1}, v{s1+1}\nv_cvt_pk_bf16_f32 v{p+5}, v{s1+2}, v{s1+3}")
        if tt == 1:
            a(f"v_cvt_pk_bf16_f32 v{p+6}, v{s2}, v{s2+1}\nv_cvt_pk_bf16_f32 v{p+7}, v{s2+2}, v{s2+3}")
        else:
            a(f"v_mov_b32 v{p+6}, 0\nv_mov_b32 v{p+7}, 0")
    for j in range(4): a(f"v_mov_b32 v{tKM+j}, 0x3f803f80")
    a("s_waitcnt vmcnt(0)")
    for et in range(8):
        a(f"v_mov_b32 v{tQ+16+2*et}, v{tVM+et}\nv_mov_b32 v{tQ+17+2*et}, 0")
    a("s_nop 1")
    a(f"""
    s_lshl_b32 s4, s{sSeg}, 7          ; s*128
    s_lshl_b32 s5, s15, 2              ; h*4
    s_add_u32 s4, s4, s5
    s_lshl_b32 s4, s4, 11              ; *2048
    s_add_u32 s{sT2}, s4, {WS_OX}
    """)
    for tt in range(2):
        p = tQ + tt*8
        lreg = tKM + 4
        a(f"v_mfma_f32_16x16x32_bf16 {vr(lreg,4)}, {vr(tKM,4)}, {vr(p+4,4)}, 0")
        for half in range(2):
            for e4 in range(4):
                et = 4*half + e4
                d = tS + 4*e4
                a(f"v_mfma_f32_16x16x32_bf16 {vr(d,4)}, {vr(tK+4*et,4)}, {vr(p+4,4)}, 0")
            if half == 0:
                a(f"v_mfma_f32_16x16x16_bf16 {vr(lreg,4)}, {vr(tKM,2)}, {vr(p,2)}, {vr(lreg,4)}")
            for e4 in range(4):
                et = 4*half + e4
                d = tS + 4*e4
                a(f"v_mfma_f32_16x16x16_bf16 {vr(d,4)}, {vr(tQ+16+2*et,2)}, {vr(p,2)}, {vr(d,4)}")
            a.nop(8)
            if half == 0:
                a(f"v_rcp_f32 v{tT}, v{lreg}\ns_nop 0")
            for j in range(16): a(f"v_mul_f32 v{tS+j}, v{tS+j}, v{tT}")
            for k2 in range(2):
                d = tS + 16 + 4*k2
                s = tS + 8*k2
                for j in range(4): a(f"v_cvt_pk_bf16_f32 v{d+j}, v{s+2*j}, v{s+2*j+1}")
                ksp = 2*half + k2
                off = ksp*2048 + tt*1024
                if off >= 4096:
                    a(f"s_add_u32 s{sT1}, s{sT2}, {off & ~4095}")
                    a(f"buffer_store_dwordx4 {vr(d,4)}, v{vL16}, s[{SWS}:{SWS+3}], s{sT1} offen offset:{off & 4095} sc1")
                else:
                    a(f"buffer_store_dwordx4 {vr(d,4)}, v{vL16}, s[{SWS}:{SWS+3}], s{sT2} offen offset:{off} sc1")
            a("s_nop 1")
    a("s_waitcnt vmcnt(0)")
    a(f"s_lshl_b32 s5, s{sSeg}, 7\ns_add_u32 s{sT1}, s5, {F_O}")
    if Cfg.STAMPS:
        a(f"""
        s_memrealtime s[96:97]
        s_lshl_b32 s98, s{sSeg}, 5
        s_add_u32 s98, s98, s15
        s_lshl_b32 s98, s98, 2
        s_add_u32 s98, s98, {0x7400000}
        s_waitcnt lgkmcnt(0)
        v_mov_b32 v{tT}, s96
        v_mov_b32 v{tT+1}, 0
        buffer_store_dword v{tT}, v{tT+1}, s[{SWS}:{SWS+3}], s98 offen
        """)
    wave_signal(a, sT1, tmp=tT)

def t5_phase(a):
    w2_consts(a)
    w2_bload(a, 32, 'Wo', 4096)
    stamp(a, 5)
    srd(a, SOUT, P['out'], 2048*1152)
    a("s_barrier")
    wg_wait_flag(a, str(F_G), 8)
    def body(a):
        a(f"""
        s_cmp_lg_u32 s{sTT}, 0
        s_cbranch_scc1 L_t4_skip
        s_lshl_b32 s15, s{sSl}, 2
        s_add_u32 s15, s15, s3
        s_cmp_ge_u32 s15, 32
        s_cbranch_scc1 L_t4_skip
        """)
        t4_task(a, None)
        a.lab("L_t4_skip")
        stamp(a, 9, vd=76, vz=77)
        a(f"s_cmp_eq_u32 s{sSeg}, 63\ns_cbranch_scc1 L_t5_last")
        a(f"s_lshl_b32 s5, s{sSeg}, 7\ns_add_u32 s{sT1}, s5, {F_O}")
        wg_wait_flag(a, sT1, 32, vt=76)
        stamp(a, 10, vd=76, vz=77)
        w2_gemm(a, 32, WS_OX, 128*2048, D=22)
        a("s_branch L_t5_epi")
        a.lab("L_t5_last")
        a(f"s_mov_b32 s{sT1}, {F_PROG}")
        wg_wait_flag(a, sT1, 63, vt=76, sleep=24)
        stamp(a, 10, vd=76, vz=77)
        w2_gemm(a, 32, WS_OX, 128*2048, D=22, check=True)
        a.lab("L_t5_epi")
        stamp(a, 11, vd=76, vz=77)
        Lsk = a.uniq("L_t5sk")
        a(f"s_cmp_ge_u32 s3, 3\ns_cbranch_scc1 {Lsk}")
        bb_off(a, sT1)
        a(f"""
        buffer_load_dwordx4 {vr(LAND,4)}, v{vL16}, s[{SWS}:{SWS+3}], s{sT1} offen sc1
        s_lshl_b32 s4, s{sSeg}, 5
        s_lshl_b32 s9, s{sTT}, 4
        s_add_u32 s4, s4, s9
        s_lshl_b32 s9, s4, 2
        s_add_u32 s{sT2}, s9, {WS_G}
        v_and_b32 v{TMP}, 15, v0
        v_lshlrev_b32 v{TMP+1}, 2, v{TMP}
        buffer_load_dword v{TMP+2}, v{TMP+1}, s[{SWS}:{SWS+3}], s{sT2} offen sc1
        s_movk_i32 s9, 1152
        v_mul_lo_u32 v{TMP}, v{TMP}, s9
        v_lshrrev_b32 v{TMP+1}, 4, v0
        v_lshlrev_b32 v{TMP+1}, 3, v{TMP+1}
        v_add_u32 v{TMP}, v{TMP}, v{TMP+1}
        s_mul_i32 s4, s4, 1152
        s_mul_i32 s9, s{sSl}, 96
        s_add_u32 s4, s4, s9
        s_lshl_b32 s9, s3, 5
        s_add_u32 s{sT1}, s4, s9
        s_waitcnt vmcnt(0)
        """)
        ac = ACC2
        for r in range(4):
            a(f"v_sub_f32 v{ac+r}, v{ac+r}, v{LAND+r}\nv_fma_f32 v{ac+r}, v{ac+r}, v{TMP+2}, v{LAND+r}")
        a(f"v_cvt_pk_bf16_f32 v{ac}, v{ac}, v{ac+1}\nv_cvt_pk_bf16_f32 v{ac+1}, v{ac+2}, v{ac+3}")
        a(f"buffer_store_dwordx2 {vr(ac,2)}, v{TMP}, s[{SOUT}:{SOUT+3}], s{sT1} offen sc1")
        a.lab(Lsk)
    task_iter(a, "L_t5", body)

def gate_task(a):
    srd(a, SA, P['x'], 2048*1152)
    a(f"""
    s_lshl_b32 s4, s15, 8
    s_lshl_b32 s5, s3, 6
    s_add_u32 s12, s4, s5
    v_add_u32 v2, s12, v0
    s_movk_i32 s4, 1152
    v_mul_lo_u32 v3, v2, s4
    v_mov_b32 v4, 0
    v_mov_b32 v7, 0
    """)
    for grp in range(9):
        a(f"s_load_dwordx16 s[68:83], s[{P['gw']}:{P['gw']+1}], {grp*128}\ns_load_dwordx16 s[84:99], s[{P['gw']}:{P['gw']+1}], {grp*128+64}")
        for c in range(8):
            a(f"buffer_load_dwordx4 {vr(8+4*c,4)}, v3, s[{SA}:{SA+3}], 0 offen offset:{grp*128 + c*16}")
        a("s_waitcnt vmcnt(0) lgkmcnt(0)")
        for c in range(8):
            for j in range(4):
                sg = 68+4*c+j; vx = 8+4*c+j
                a(f"s_lshl_b32 s4, s{sg}, 16\ns_and_b32 s5, s{sg}, 0xffff0000")
                a(f"v_lshlrev_b32 v5, 16, v{vx}\nv_and_b32 v6, 0xffff0000, v{vx}")
                a(f"v_fma_f32 v4, v5, s4, v4\nv_fma_f32 v7, v6, s5, v7")
    a("v_add_f32 v4, v4, v7")
    a(f"""
    v_mul_f32 v4, {fb(-1.4426950408889634)}, v4
    v_exp_f32 v4, v4
    s_nop 0
    v_add_f32 v4, 1.0, v4
    v_rcp_f32 v4, v4
    v_lshlrev_b32 v2, 2, v2
    s_mov_b32 s4, {WS_G}
    s_nop 0
    buffer_store_dword v4, v2, s[{SWS}:{SWS+3}], s4 offen sc1
    s_waitcnt vmcnt(0)
    s_barrier
    """)
    signal_flag(a, str(F_G))
```

```python
import sys
from asmlib import *
from layout import *
from common import *
import w1, w2, chain
from w1 import *

NAME = "gated_mix__memory_aug_recurrent_mem_tr__glu_gated_geglu__prompt"
HDR = open("cdna_kernels/%s.s.ref" % NAME).read().split("; @launch")[0].split("; Override launch")[0]

WPF = [("Wq", 576*8192), ("Wo", 4096*1152)]
def workers(a):
    a.lab('L_wstart')
    a("""
    s_lshr_b32 s15, s2, 3            ; b>>3
    s_and_b32 s4, s2, 7
    s_sub_u32 s4, s4, 1
    s_lshl_b32 s14, s4, 5
    s_add_u32 s14, s14, s15
    """)
    stamp(a, 0)
    if WPF:
        from common import srd, P, SA
        for nm, size in WPF:
            srd(a, SA, P[nm], size)
            per = (size // 224 + 4095) // 4096 * 4096
            a(f"s_mul_i32 s4, s14, {per}\ns_lshl_b32 s5, s3, 10\ns_add_u32 s4, s4, s5\nv_lshlrev_b32 v28, 4, v0")
            for k in range(per // 4096):
                a(f"buffer_load_dword v29, v28, s[{SA}:{SA+3}], s4 offen\ns_add_u32 s4, s4, 4096")
    if chain.CODEPF2:
        Lc = a.uniq("L_cpfw")
        a(f"s_cmp_lg_u32 s3, 3\ns_cbranch_scc1 {Lc}")
        code_prefetch(a, "L_wstart", 65536, vt=28, end="L_chain")
        a.lab(Lc)
    if getattr(Cfg,'WSPIN',False):
        a('s_mov_b32 s70, 0\nL_wspin:\ns_sleep 32\ns_add_u32 s70, s70, 1\ns_cmp_lt_u32 s70, 160\ns_cbranch_scc1 L_wspin\ns_branch L_exit')
    w1_phase(a)
    stamp(a, 2)
    if getattr(Cfg,'W1ONLY',False): a('s_branch L_exit')
    a(f"""
    s_cmp_ge_u32 s14, 216
    s_cbranch_scc1 L_gate
    s_mul_hi_u32 s{w2.sGrp}, s14, 0x15555556      ; wid/12
    s_mul_i32 s4, s{w2.sGrp}, 12
    s_sub_u32 s{w2.sSl}, s14, s4
    """)
    w2.ffn2_phase(a)
    stamp(a, 4)
    w2.t5_phase(a)
    stamp(a, 6)
    a("s_branch L_exit")
    a.lab("L_gate")
    a("s_sub_u32 s15, s14, 216")
    w2.gate_task(a)

def build(parts):
    a = A()
    prologue(a)
    a("s_and_b32 s4, s2, 7\ns_cmp_eq_u32 s4, 0\ns_cbranch_scc1 L_chain")
    if Cfg.NOCOMM or getattr(Cfg,'WEXIT',False): a('s_branch L_exit')
    workers(a)
    a("s_branch L_exit")
    a.lab("L_chain")
    chain.chain(a)
    a.lab("L_exit")
    body = a.text()
    if Cfg.NOCOMM:
        import re
        body = re.sub(r's_cbranch_vccnz (L_\w+)', r's_nop 0', body)
    txt = HDR + f"""; @launch grid=(256,1,1) block=(256,1,1) lds=163840
.amdgcn_target "amdgcn-amd-amdhsa--gfx950"
.text
.globl {NAME}_kernel
.p2align 8
.type {NAME}_kernel,@function
{NAME}_kernel:
{body}  s_endpgm
.section .rodata,"a"
.p2align 6
.amdhsa_kernel {NAME}_kernel
  .amdhsa_next_free_vgpr 512
  .amdhsa_next_free_sgpr 102
  .amdhsa_accum_offset 256
  .amdhsa_group_segment_fixed_size 0
  .amdhsa_kernarg_size 120
  .amdhsa_user_sgpr_count 2
  .amdhsa_user_sgpr_kernarg_segment_ptr 1
  .amdhsa_system_sgpr_workgroup_id_x 1
.end_amdhsa_kernel
"""
    return txt

if __name__ == "__main__":
    if "stamps" in sys.argv: Cfg.STAMPS = True
    if "trace" in sys.argv: Cfg.TRACE = True
    if "nocomm" in sys.argv: Cfg.NOCOMM = True
    for a_ in sys.argv:
        if a_.startswith("late="): chain.LATE = int(a_[5:])
        if a_.startswith("backoff="): chain.BACKOFF = int(a_[8:])
        if a_.startswith("ne="): chain.NE = int(a_[3:])
        if a_.startswith("perload="): chain.PERLOAD = bool(int(a_[8:]))
        if a_.startswith("probe="): chain.PROBE = bool(int(a_[6:]))
        if a_.startswith("n2="): chain.N2 = int(a_[3:])
        if a_.startswith("pf2="): chain.PF2 = bool(int(a_[4:]))
        if a_.startswith("vspace="): chain.VSPACE = int(a_[7:])
        if a_.startswith("addq="): chain.ADDQ = int(a_[5:])
        if a_.startswith("addw="): chain.ADDW = int(a_[5:])
        if a_.startswith("skipsm="): chain.SKIPSM = True
        if a_.startswith("vs2="): chain.VSPACE2 = int(a_[4:])
        if a_.startswith("early="): chain.EARLY = bool(int(a_[6:]))
        if a_.startswith("xp="): chain.XP[a_[3:]] = True
        if a_.startswith("skipmax="): chain.SKIPMAX = bool(int(a_[8:]))
        if a_.startswith("kxearly="): chain.KXEARLY = bool(int(a_[8:]))
        if a_.startswith("simplew="): chain.SIMPLEW = bool(int(a_[8:]))
        if a_.startswith("probes="): chain.PROBES = True
        if a_.startswith("codepf2="): chain.CODEPF2 = bool(int(a_[8:]))
        if a_.startswith("throt="): chain.THROT = int(a_[6:])
        if a_.startswith("opos="): chain.OPOS = tuple(int(x) for x in a_[5:].split(","))
        if a_ == "wpf=0": WPF.clear()
        if a_ == "wpf=2": WPF.append(("Wo", 4096*1152))
        if a_ == "wpf=3": WPF.extend([("Wo", 4096*1152), ("Wk", 576*8192), ("Wv", 576*8192)])
        if a_.startswith("d0="): chain.D0 = bool(int(a_[3:]))
        if a_.startswith("pipe="): chain.PIPE = bool(int(a_[5:]))
        if a_.startswith("wlag="): chain.WLAG = int(a_[5:])
        if a_.startswith("postfirst="): chain.POSTFIRST = bool(int(a_[10:]))
        if a_.startswith("w1sleep="): w1.W1SLEEP = int(a_[8:])
        if a_.startswith("delay0="): chain.DELAY0 = int(a_[7:])
    if "nopub" in sys.argv: Cfg.NOPUB = True
    if "nopf" in sys.argv: Cfg.NOPF = True
    if "nocyc" in sys.argv: Cfg.CYC = False
    if "steplog" in sys.argv: Cfg.STEPLOG = True
    if "nokx" in sys.argv: Cfg.NOKX = True
    if "novx" in sys.argv: Cfg.NOVX = True
    if "nofl" in sys.argv: Cfg.NOFL = True
    if "wexit" in sys.argv: Cfg.WEXIT = True
    if "wspin" in sys.argv: Cfg.WSPIN = True; Cfg.NOWAIT = True
    if "w1only" in sys.argv: Cfg.W1ONLY = True
    if "slow" in sys.argv: Cfg.FORCE_SLOW = True
    out = sys.argv[1] if len(sys.argv) > 1 else "out.s"
    open(out, "w").write(build(None))
    print("wrote", out)
```

```python
from asmlib import *
from layout import *
import struct
def fb(f): return "0x%08x" % struct.unpack("<I", struct.pack("<f", f))[0]

P = dict(x=16, mem0=18, Wq=20, Wk=22, Wv=24, Wo=26, seg=28, xb=30, Wg=32, Wu=34, Wd=36, gw=38, out=40, dbg=42, ws=44)
SWS=48; SA=52; SB0=56; SB1=60; SOUT=64
S_SPIN=47
class Cfg:
    STAMPS = False
    FORCE_SLOW = False
    TRACE = False
    NOCOMM = False
    NOPUB = False
    NOPF = True
    CYC = True
    NOKX = False
    NOVX = False
    NOFL = False
    STEPLOG = False
WS_STAMP = 0x7000000

def srd(a, dst, ptr, size, add=None):
    if add is None:
        a(f"s_mov_b32 s{dst}, s{ptr}\ns_mov_b32 s{dst+1}, s{ptr+1}")
    else:
        a(f"s_add_u32 s{dst}, s{ptr}, {add}\ns_addc_u32 s{dst+1}, s{ptr+1}, 0")
    a(f"s_mov_b32 s{dst+2}, {size}\ns_mov_b32 s{dst+3}, 0x20000")

def stamp(a, i, vd=1, vz=30):
    if not Cfg.STAMPS: return
    L = a.uniq("L_st")
    a(f"""
    s_cmp_lg_u32 s3, 0
    s_cbranch_scc1 {L}
    s_memrealtime s[96:97]
    s_lshl_b32 s98, s2, 8
    s_add_u32 s98, s98, {WS_STAMP + 4*i}
    s_waitcnt lgkmcnt(0)
    v_mov_b32 v{vd}, s96
    v_mov_b32 v{vz}, 0
    s_mov_b64 s[96:97], exec
    s_mov_b64 exec, 1
    buffer_store_dword v{vd}, v{vz}, s[{SWS}:{SWS+3}], s98 offen
    s_mov_b64 exec, s[96:97]
    """)
    a.lab(L)
def cyc(a, acc=None):
    if not Cfg.STAMPS or not Cfg.CYC: return
    a("s_memtime s[94:95]\ns_waitcnt lgkmcnt(0)")
    if acc is not None:
        a(f"s_sub_u32 s93, s94, s89\ns_add_u32 s{acc}, s{acc}, s93")
    a("s_mov_b32 s89, s94")
def cyc_out(a, idx, regs, vd=1, vz=30):
    if not Cfg.STAMPS: return
    L = a.uniq("L_co")
    a(f"s_cmp_lg_u32 s3, 0\ns_cbranch_scc1 {L}\ns_lshl_b32 s98, s2, 8\ns_add_u32 s98, s98, {WS_STAMP + 4*idx}\nv_mov_b32 v{vz}, 0\ns_mov_b64 s[96:97], exec\ns_mov_b64 exec, 1")
    for i, r in enumerate(regs):
        a(f"v_mov_b32 v{vd}, s{r}\nbuffer_store_dword v{vd}, v{vz}, s[{SWS}:{SWS+3}], s98 offen offset:{4*i}\ns_nop 1")
    a("s_mov_b64 exec, s[96:97]")
    a.lab(L)

def prologue(a):
    a("""
    s_cmp_ge_u32 s2, 256
    s_cbranch_scc1 L_exit
    s_load_dwordx16 s[16:31], s[0:1], 0
    s_load_dwordx8 s[32:39], s[0:1], 64
    s_load_dwordx4 s[40:43], s[0:1], 96
    s_load_dwordx2 s[44:45], s[0:1], 112
    v_lshrrev_b32 v1, 6, v0
    v_and_b32 v0, 63, v0
    s_mov_b32 s47, 0
    v_readfirstlane_b32 s3, v1
    s_waitcnt lgkmcnt(0)
    """)
    srd(a, SWS, P['ws'], 0x10000000)

SPIN_MAX = 0x20000
def spin_check(a):
    a(f"s_add_u32 s{S_SPIN}, s{S_SPIN}, 1\ns_cmp_gt_u32 s{S_SPIN}, {SPIN_MAX}\ns_cbranch_scc1 L_exit")

def wave_wait_flag(a, soff, target, vt=28, sleep=True, cmp="ge"):
    if Cfg.NOCOMM or getattr(Cfg,'WEXIT',False): return
    L = a.uniq("L_wf")
    if isinstance(soff, int): so = f"s{soff}"
    else:
        a(f"s_mov_b32 s46, {soff}"); so = "s46"
    a(f"v_mov_b32 v{vt}, 0")
    a.lab(L)
    a(f"buffer_load_dword v{vt+1}, v{vt}, s[{SWS}:{SWS+3}], {so} offen sc1")
    a("s_waitcnt vmcnt(0)")
    a(f"v_readfirstlane_b32 s4, v{vt+1}\ns_nop 1")
    Ld = a.uniq("L_wfd")
    a(f"s_cmp_ge_u32 s4, {target}\ns_cbranch_scc1 {Ld}")
    if sleep: a(f"s_sleep {3 if sleep is True else sleep}")
    spin_check(a)
    a(f"s_branch {L}")
    a.lab(Ld)

def wg_wait_flag(a, soff, target, vt=28, sleep=True):
    L = a.uniq("L_wg")
    a(f"s_cmp_lg_u32 s3, 0\ns_cbranch_scc1 {L}")
    wave_wait_flag(a, soff, target, vt, sleep=sleep)
    a.lab(L)
    a("s_barrier")

def wave_signal(a, soff, tmp=28):
    if isinstance(soff, int): so = f"s{soff}"
    else:
        a(f"s_mov_b32 s46, {soff}"); so = "s46"
    a(f"""
    s_mov_b64 s[8:9], exec
    s_mov_b64 exec, 1
    v_mov_b32 v{tmp}, 0
    v_mov_b32 v{tmp+1}, 1
    buffer_atomic_add v{tmp+1}, v{tmp}, s[{SWS}:{SWS+3}], {so} offen
    s_mov_b64 exec, s[8:9]
    """)
def signal_flag(a, soff, tmp=28):
    L = a.uniq("L_sig")
    a(f"s_cmp_lg_u32 s3, 0\ns_cbranch_scc1 {L}")
    wave_signal(a, soff, tmp)
    a.lab(L)

def init_wait(a, vt=28):
    L = a.uniq("L_iw"); Ld = a.uniq("L_iwd")
    a(f"s_cmp_lg_u32 s3, 0\ns_cbranch_scc1 {Ld}\nv_mov_b32 v{vt}, 0")
    a.lab(L)
    a(f"global_load_dword v{vt+1}, v{vt}, s[{P['dbg']}:{P['dbg']+1}] offset:16 sc1\ns_waitcnt vmcnt(0)\nv_readfirstlane_b32 s4, v{vt+1}\ns_nop 1\ns_cmp_ge_u32 s4, 32\ns_cbranch_scc1 {Ld}\ns_sleep 4")
    spin_check(a)
    a(f"s_branch {L}")
    a.lab(Ld)

def ev(a, e, val=30, sstep=70):
    if not Cfg.TRACE: return
    L = a.uniq("L_ev")
    a(f"""
    s_cmp_lg_u32 s{sstep}, {val}
    s_cbranch_scc1 {L}
    s_memrealtime s[94:95]
    s_waitcnt lgkmcnt(0)
    s_mov_b32 s{52+e}, s94
    """)
    a.lab(L)
def ev_dump(a, n, sh=68, vd=12, vz=13):
    if not Cfg.TRACE: return
    a(f"""
    s_lshl_b32 s7, s{sh}, 2
    s_add_u32 s7, s7, s3
    s_lshl_b32 s7, s7, 6
    s_add_u32 s7, s7, {0x7200000}
    v_mov_b32 v{vz}, 0
    s_mov_b64 exec, 1
    """)
    for e in range(n):
        a(f"v_mov_b32 v{vd}, s{52+e}\nbuffer_store_dword v{vd}, v{vz}, s[{SWS}:{SWS+3}], s7 offen offset:{4*e}\ns_nop 1")
    a("s_mov_b64 exec, -1")

def code_prefetch(a, label, nbytes, vt=12, end="L_exit"):
    L = a.uniq("L_pc")
    a(f"s_getpc_b64 s[10:11]")
    a.lab(L)
    a(f"""
    s_add_u32 s10, s10, {label}-{L}
    s_addc_u32 s11, s11, 0
    v_lshlrev_b32 v{vt}, 7, v0
    """) if False else None
    a(f"""
    s_add_u32 s10, s10, ({label}-{L})&0xffffffff
    s_addc_u32 s11, s11, (({label}-{L})>>32)&0xffffffff
    v_lshlrev_b32 v{vt}, 7, v0
    """)
    n = (nbytes + 8191)//8192
    for i in range(n):
        a(f"v_min_u32 v{vt+2}, {end}-{label}, v{vt}")
        a(f"global_load_dword v{vt+1}, v{vt+2}, s[10:11]")
        if i + 1 < n: a(f"v_add_u32 v{vt}, 8192, v{vt}")

def dbgt(a, idx, mode="store", cond_wg=None, vd=12):
    if not getattr(Cfg, 'DBGT', False): return
    L = a.uniq("L_dt")
    a(f"s_cmp_lg_u32 s3, 0\ns_cbranch_scc1 {L}")
    if cond_wg is not None: a(f"s_cmp_lg_u32 s2, {cond_wg}\ns_cbranch_scc1 {L}")
    a(f"""
    s_memrealtime s[96:97]
    s_load_dwordx2 s[98:99], s[0:1], 104
    s_waitcnt lgkmcnt(0)
    v_mov_b32 v{vd}, s96
    v_mov_b32 v{vd+1}, {4*idx}
    s_mov_b64 s[96:97], exec
    s_mov_b64 exec, 1
    """)
    if mode == "store": a(f"global_store_dword v{vd+1}, v{vd}, s[98:99]")
    else: a(f"global_atomic_umax v{vd+1}, v{vd}, s[98:99]")
    a("s_mov_b64 exec, s[96:97]")
    a.lab(L)
```

```python
import sys
from asmlib import *
from layout import *
from common import *
import w1, w2, chain
from w1 import *

NAME = "gated_mix__memory_aug_recurrent_mem_tr__glu_gated_geglu__prompt"
HDR = open("cdna_kernels/%s.s.ref" % NAME).read().split("; @launch")[0].split("; Override launch")[0]

WPF = [("Wq", 576*8192), ("Wo", 4096*1152)]
def workers(a):
    a.lab('L_wstart')
    a("""
    s_lshr_b32 s15, s2, 3            ; b>>3
    s_and_b32 s4, s2, 7
    s_sub_u32 s4, s4, 1
    s_lshl_b32 s14, s4, 5
    s_add_u32 s14, s14, s15
    """)
    stamp(a, 0)
    dbgt(a, 11, cond_wg=1, vd=28)
    if WPF:
        from common import srd, P, SA
        for nm, size in WPF:
            srd(a, SA, P[nm], size)
            per = (size // 224 + 4095) // 4096 * 4096
            a(f"s_mul_i32 s4, s14, {per}\ns_lshl_b32 s5, s3, 10\ns_add_u32 s4, s4, s5\nv_lshlrev_b32 v28, 4, v0")
            for k in range(per // 4096):
                a(f"buffer_load_dword v29, v28, s[{SA}:{SA+3}], s4 offen\ns_add_u32 s4, s4, 4096")
    if chain.CODEPF2:
        Lc = a.uniq("L_cpfw")
        a(f"s_cmp_lg_u32 s3, 3\ns_cbranch_scc1 {Lc}")
        code_prefetch(a, "L_wstart", 65536, vt=28, end="L_chain")
        a.lab(Lc)
    if getattr(Cfg,'WSPIN',False):
        a('s_mov_b32 s70, 0\nL_wspin:\ns_sleep 32\ns_add_u32 s70, s70, 1\ns_cmp_lt_u32 s70, 160\ns_cbranch_scc1 L_wspin\ns_branch L_exit')
    w1_phase(a)
    stamp(a, 2)
    dbgt(a, 12, 'umax', vd=28)
    if getattr(Cfg,'W1ONLY',False): a('s_branch L_exit')
    a(f"""
    s_cmp_ge_u32 s14, 216
    s_cbranch_scc1 L_gate
    s_mul_hi_u32 s{w2.sGrp}, s14, 0x15555556      ; wid/12
    s_mul_i32 s4, s{w2.sGrp}, 12
    s_sub_u32 s{w2.sSl}, s14, s4
    """)
    w2.ffn2_phase(a)
    stamp(a, 4)
    w2.t5_phase(a)
    stamp(a, 6)
    dbgt(a, 13, 'umax', vd=28)
    a("s_branch L_exit")
    a.lab("L_gate")
    a("s_sub_u32 s15, s14, 216")
    w2.gate_task(a)

def build(parts):
    a = A()
    prologue(a)
    if getattr(Cfg, 'ALTMAP', False):
        a("s_and_b32 s4, s2, 31\ns_lshl_b32 s4, s4, 3\ns_lshr_b32 s5, s2, 5\ns_or_b32 s2, s4, s5")
    a("s_and_b32 s4, s2, 7\ns_cmp_eq_u32 s4, 0\ns_cbranch_scc1 L_chain")
    if Cfg.NOCOMM or getattr(Cfg,'WEXIT',False): a('s_branch L_exit')
    workers(a)
    a("s_branch L_exit")
    a.lab("L_chain")
    chain.chain(a)
    a.lab("L_exit")
    body = a.text()
    if Cfg.NOCOMM:
        import re
        body = re.sub(r's_cbranch_vccnz (L_\w+)', r's_nop 0', body)
    txt = HDR + f"""; @launch grid=(256,1,1) block=(256,1,1) lds=163840
.amdgcn_target "amdgcn-amd-amdhsa--gfx950"
.text
.globl {NAME}_kernel
.p2align 8
.type {NAME}_kernel,@function
{NAME}_kernel:
{body}  s_endpgm
.section .rodata,"a"
.p2align 6
.amdhsa_kernel {NAME}_kernel
  .amdhsa_next_free_vgpr 512
  .amdhsa_next_free_sgpr 102
  .amdhsa_accum_offset 256
  .amdhsa_group_segment_fixed_size 0
  .amdhsa_kernarg_size 120
  .amdhsa_user_sgpr_count 2
  .amdhsa_user_sgpr_kernarg_segment_ptr 1
  .amdhsa_system_sgpr_workgroup_id_x 1
.end_amdhsa_kernel
"""
    return txt

if __name__ == "__main__":
    if "stamps" in sys.argv: Cfg.STAMPS = True
    if "trace" in sys.argv: Cfg.TRACE = True
    if "nocomm" in sys.argv: Cfg.NOCOMM = True
    for a_ in sys.argv:
        if a_.startswith("late="): chain.LATE = int(a_[5:])
        if a_.startswith("backoff="): chain.BACKOFF = int(a_[8:])
        if a_.startswith("ne="): chain.NE = int(a_[3:])
        if a_.startswith("perload="): chain.PERLOAD = bool(int(a_[8:]))
        if a_.startswith("probe="): chain.PROBE = bool(int(a_[6:]))
        if a_.startswith("n2="): chain.N2 = int(a_[3:])
        if a_.startswith("pf2="): chain.PF2 = bool(int(a_[4:]))
        if a_.startswith("vspace="): chain.VSPACE = int(a_[7:])
        if a_.startswith("addq="): chain.ADDQ = int(a_[5:])
        if a_.startswith("addw="): chain.ADDW = int(a_[5:])
        if a_.startswith("skipsm="): chain.SKIPSM = True
        if a_.startswith("vs2="): chain.VSPACE2 = int(a_[4:])
        if a_.startswith("early="): chain.EARLY = bool(int(a_[6:]))
        if a_.startswith("xp="): chain.XP[a_[3:]] = True
        if a_.startswith("skipmax="): chain.SKIPMAX = bool(int(a_[8:]))
        if a_.startswith("kxearly="): chain.KXEARLY = bool(int(a_[8:]))
        if a_.startswith("simplew="): chain.SIMPLEW = bool(int(a_[8:]))
        if a_.startswith("probes="): chain.PROBES = True
        if a_.startswith("codepf2="): chain.CODEPF2 = bool(int(a_[8:]))
        if a_.startswith("throt="): chain.THROT = int(a_[6:])
        if a_.startswith("opos="): chain.OPOS = tuple(int(x) for x in a_[5:].split(","))
        if a_ == "wpf=0": WPF.clear()
        if a_ == "wpf=2": WPF.append(("Wo", 4096*1152))
        if a_ == "wpf=3": WPF.extend([("Wo", 4096*1152), ("Wk", 576*8192), ("Wv", 576*8192)])
        if a_.startswith("d0="): chain.D0 = bool(int(a_[3:]))
        if a_.startswith("pipe="): chain.PIPE = bool(int(a_[5:]))
        if a_.startswith("wlag="): chain.WLAG = int(a_[5:])
        if a_.startswith("postfirst="): chain.POSTFIRST = bool(int(a_[10:]))
        if a_.startswith("w1sleep="): w1.W1SLEEP = int(a_[8:])
        if a_.startswith("delay0="): chain.DELAY0 = int(a_[7:])
    if "nopub" in sys.argv: Cfg.NOPUB = True
    if "nopf" in sys.argv: Cfg.NOPF = True
    if "nocyc" in sys.argv: Cfg.CYC = False
    if "steplog" in sys.argv: Cfg.STEPLOG = True
    if "nokx" in sys.argv: Cfg.NOKX = True
    if "novx" in sys.argv: Cfg.NOVX = True
    if "nofl" in sys.argv: Cfg.NOFL = True
    if "wexit" in sys.argv: Cfg.WEXIT = True
    if "wspin" in sys.argv: Cfg.WSPIN = True; Cfg.NOWAIT = True
    if "w1only" in sys.argv: Cfg.W1ONLY = True
    if "dbgt" in sys.argv: Cfg.DBGT = True
    if "altmap" in sys.argv: Cfg.ALTMAP = True
    if "slow" in sys.argv: Cfg.FORCE_SLOW = True
    out = sys.argv[1] if len(sys.argv) > 1 else "out.s"
    open(out, "w").write(build(None))
    print("wrote", out)
```

```python
from common import *

SLOT = 16384
RESO = 98304
MEMB = 139264
XQ   = MEMB + 9216
XO   = XQ + 4096
KXB  = XO + 2048
SEL  = KXB + 8192
assert SEL + 1024 == 163840
MEMSTRIDE = 65536
CS = 9472
OOB = 0x10000000
sH=68; sMode=69; sStep=70; sT0=71; sT1=72; sT2=73; sFirst=74; sRT=75; sHoff=76
sMask=84
sLo8=86
sC1=78
sRd=16; sRdX=17; sPst=18; sPstX=19; sMemOff=20; sM0=21; sM1=22; sM2=23; sKXo=24; sVXo=25; sPFo=26; sPub=27; sFlo=28; sProg=29; sW1k=30; sRa=41; sRb=42; sRm0=43; sRm1=31; sMB=77; sRaX=86; sRbX=87; sFlc=80; sReady=81; sPF2=82; sProgL=28; sMZ=26
vFlag=0; vL16=1; vIdx=2; vResA=3; vResB=4; vResO=5; vTrX=6; vXQw=7; vXOw=8; vL4=9; vMst=10; vHi=11
vT=12
PB=16
AS=24
LD=32
ACC=48
HB=131072
WBASE=72
C1 = (128 ** -0.5) * 1.4426950408889634

RESQ_L = [('Q',0),('K',2),('V',3),('Q',5),('K',6),('V',8)]
RESO_L = [(1,1),(3,1),(5,1),(7,1),(8,1)]
def build_wmap():
    ops = []
    for c in range(9):
        for M in 'QKV':
            if (M,c) in RESQ_L: continue
            for x in range(2): ops.append((M,c,x))
    for j in range(9):
        for c2 in range(2):
            if (j,c2) in RESO_L: continue
            ops.append(('O',j,c2))
    assert len(ops) == 55, len(ops)
    return {o: WBASE + 8*i for i,o in enumerate(ops)}
WM = build_wmap()

def chain_init(a):
    a(f"""
    s_lshr_b32 s{sH}, s2, 3
    s_xor_b32 s{sH}, s{sH}, {XP.get('hx', 0) and 2 or 0}
    v_lshlrev_b32 v{vL16}, 4, v0
    v_lshlrev_b32 v{vL4}, 2, v0
    """)
    stamp(a, 0, 12, 13)
    dbgt(a, 8, cond_wg=0)
    if CODEPF2:
        Lc = a.uniq("L_cpf0")
        a(f"s_cmp_lg_u32 s3, 2\ns_cbranch_scc1 {Lc}")
        code_prefetch(a, "L_chain", 32768, vt=28)
        a.lab(Lc)
    a(f"""
    v_mov_b32 v12, 0
    v_mov_b32 v13, 0
    v_mov_b32 v14, 0
    v_mov_b32 v15, 0
    v_mov_b32 v16, -1
    v_mov_b32 v17, -1
    v_mov_b32 v18, -1
    v_mov_b32 v19, -1
    s_lshl_b32 s4, s3, 10
    v_add_u32 v20, s4, v{vL16}
    s_mul_i32 s5, s{sH}, 800
    v_cmp_gt_u32 vcc, 800, v20
    s_and_saveexec_b64 s[8:9], vcc
    s_cbranch_execz L_ci_nf
    buffer_store_dwordx4 v[12:15], v20, s[{SWS}:{SWS+3}], s5 offen sc1
    L_ci_nf:
    s_mov_b64 exec, s[8:9]
    s_mul_i32 s5, s{sH}, 18432
    s_add_u32 s5, s5, {CH_PART}
    """)
    for i in range(4):
        a(f"buffer_store_dwordx4 v[16:19], v20, s[{SWS}:{SWS+3}], s5 offen sc1\ns_add_u32 s5, s5, 4096")
    a(f"""
    v_cmp_gt_u32 vcc, 2048, v20
    s_and_saveexec_b64 s[8:9], vcc
    s_cbranch_execz L_ci_np
    buffer_store_dwordx4 v[16:19], v20, s[{SWS}:{SWS+3}], s5 offen sc1
    L_ci_np:
    s_mov_b64 exec, s[8:9]
    s_lshl_b32 s5, s{sH}, 2
    s_add_u32 s5, s5, s3                 ; wi = h*4+w
    s_cmp_ge_u32 s5, 108
    s_cbranch_scc1 L_ci_nm2
    s_mul_hi_u32 s6, s5, 0x1c71c71d      ; wi/9
    s_mul_i32 s7, s6, 9
    s_sub_u32 s7, s5, s7                 ; chunk
    s_lshr_b32 s5, s6, 2
    s_add_u32 s5, s5, 1                  ; idx
    s_lshl_b32 s5, s5, 16
    s_and_b32 s6, s6, 3
    s_mul_i32 s6, s6, {CS}
    s_add_u32 s5, s5, s6
    s_lshl_b32 s7, s7, 10
    s_add_u32 s5, s5, s7
    s_add_u32 s5, s5, {CH_MEM}
    buffer_store_dwordx4 v[16:19], v{vL16}, s[{SWS}:{SWS+3}], s5 offen sc1
    L_ci_nm2:
    """)
    a(f"""
    s_lshl_b32 s5, s{sH}, 12
    s_lshl_b32 s6, s3, 10
    s_add_u32 s5, s5, s6
    s_add_u32 s5, s5, {WS_KM + 63*32*4096}
    buffer_store_dwordx4 v[16:19], v{vL16}, s[{SWS}:{SWS+3}], s5 offen sc1
    """)
    a(f"""
    s_lshl_b32 s5, s{sH}, 13
    s_lshl_b32 s6, s3, 11
    s_add_u32 s5, s5, s6
    s_add_u32 s5, s5, {WS_OX + 63*128*2048}
    buffer_store_dwordx4 v[16:19], v{vL16}, s[{SWS}:{SWS+3}], s5 offen sc1
    buffer_store_dwordx4 v[16:19], v{vL16}, s[{SWS}:{SWS+3}], s5 offen offset:1024 sc1
    """)
    srd(a, SA, P['mem0'], 8*1152)
    a(f"""
    s_cmp_ge_u32 s{sH}, 9
    s_cbranch_scc1 L_ci_m0e
    v_bfe_u32 v12, v0, 2, 2
    v_lshlrev_b32 v12, 1, v12
    v_and_b32 v13, 1, v0
    v_add_u32 v12, v12, v13
    s_movk_i32 s4, 1152
    v_mul_lo_u32 v12, v12, s4
    v_bfe_u32 v13, v0, 1, 1
    v_lshlrev_b32 v13, 6, v13
    v_add_u32 v12, v12, v13
    v_lshrrev_b32 v13, 5, v0
    v_lshlrev_b32 v13, 5, v13
    v_add_u32 v12, v12, v13
    v_bfe_u32 v13, v0, 4, 1
    v_lshlrev_b32 v13, 2, v13
    v_add_u32 v12, v12, v13
    s_lshl_b32 s4, s{sH}, 7
    """)
    for ea in range(8):
        off = (4*(ea&3) + (ea>>2))*2
        a(f"buffer_load_ushort v{32 + ea}, v12, s[{SA}:{SA+3}], s4 offen offset:{off}")
    a("s_waitcnt vmcnt(0)")
    for j in range(4): a(f"v_lshl_or_b32 v{24+j}, v{33+2*j}, 16, v{32+2*j}")
    a(f"""
    s_lshl_b32 s4, s{sH}, 10
    s_mul_i32 s5, s3, {CS}
    s_add_u32 s4, s4, s5
    s_add_u32 s4, s4, {CH_MEM}
    buffer_store_dwordx4 v[24:27], v{vL16}, s[{SWS}:{SWS+3}], s4 offen sc1
    s_nop 1
    L_ci_m0e:
    """)
    a(f"""
    v_lshrrev_b32 v12, 4, v0
    v_and_b32 v13, 1, v12
    s_lshr_b32 s4, s3, 1
    s_lshl_b32 s4, s4, 2
    v_or_b32 v13, s4, v13
    v_lshlrev_b32 v14, 1, v13
    v_and_b32 v21, 15, v0
    v_xor_b32 v22, v21, v14
    v_lshlrev_b32 v22, 4, v22
    v_lshlrev_b32 v12, 13, v12
    v_add_u32 v24, v12, v22
    v_xor_b32 v14, 4, v14
    v_xor_b32 v22, v21, v14
    v_lshlrev_b32 v22, 4, v22
    v_add_u32 v25, v12, v22
    v_lshrrev_b32 v12, 3, v0
    s_movk_i32 s4, 1152
    v_mul_lo_u32 v12, v12, s4
    v_lshrrev_b32 v13, 5, v0
    s_and_b32 s4, s3, 1
    s_lshl_b32 s4, s4, 1
    v_or_b32 v13, s4, v13
    v_lshlrev_b32 v13, 1, v13
    v_and_b32 v21, 7, v0
    v_xor_b32 v21, v21, v13
    v_lshlrev_b32 v21, 4, v21
    v_add_u32 v26, v12, v21
    v_lshrrev_b32 v12, 4, v0            ; gb
    v_bfe_u32 v13, v0, 2, 2             ; r
    v_lshrrev_b32 v14, 1, v13
    v_lshlrev_b32 v14, 5, v14
    v_and_b32 v21, 1, v13
    v_lshlrev_b32 v21, 2, v21
    v_add3_u32 v14, v14, v21, v12
    v_lshlrev_b32 v14, 8, v14
    v_and_b32 v21, 1, v0
    v_lshlrev_b32 v21, 3, v21
    v_add_u32 v14, v14, v21
    v_and_b32 v21, 1, v12
    v_lshlrev_b32 v21, 1, v21
    v_lshlrev_b32 v22, 2, v13
    v_add_u32 v21, v21, v22
    v_bfe_u32 v22, v0, 1, 1
    s_lshl_b32 s4, s3, 2
    v_add_u32 v22, s4, v22
    v_xor_b32 v23, v22, v21
    v_lshlrev_b32 v23, 4, v23
    v_add_u32 v28, v14, v23
    v_add_u32 v22, 2, v22
    v_xor_b32 v23, v22, v21
    v_lshlrev_b32 v23, 4, v23
    v_add_u32 v29, v14, v23
    v_lshrrev_b32 v14, 1, v13
    v_lshlrev_b32 v21, 5, v14
    v_lshrrev_b32 v22, 1, v12
    v_lshlrev_b32 v22, 3, v22
    v_add_u32 v21, v21, v22
    v_and_b32 v22, 1, v12
    v_lshlrev_b32 v23, 2, v22
    v_add_u32 v21, v21, v23
    v_and_b32 v23, 1, v13
    v_add_u32 v21, v21, v23
    v_lshlrev_b32 v21, 7, v21
    v_lshlrev_b32 v14, 1, v14
    v_or_b32 v22, v22, v14
    v_lshlrev_b32 v22, 1, v22
    v_bfe_u32 v23, v0, 1, 1
    s_lshl_b32 s4, s3, 1
    v_add_u32 v23, s4, v23
    v_xor_b32 v23, v23, v22
    v_lshlrev_b32 v23, 4, v23
    v_and_b32 v22, 1, v0
    v_lshlrev_b32 v22, 3, v22
    v_add3_u32 v27, v21, v23, v22
    """)
    srd(a, SA,  P['Wq'], 576*8192)
    srd(a, SB0, P['Wk'], 576*8192)
    srd(a, SB1, P['Wv'], 576*8192)
    srd(a, SOUT, P['Wo'], 4096*1152)
    SR = {'Q':SA, 'K':SB0, 'V':SB1, 'O':SOUT}
    regq = [(M,c) for c in range(9) for M in 'QKV' if (M,c) not in RESQ_L]
    ou = [('O',j) for j in range(9)]
    units = []
    qi = oi = 0
    for n_ in range(30):
        if n_ in OPOS: units.append(ou[oi]); oi += 1
        else: units.append(regq[qi]); qi += 1
    assert qi == 21 and oi == 9
    units += RESQ_L
    assert len(units) == 36
    a(f"""
    s_lshl_b32 s{sHoff}, s{sH}, 8
    s_mul_i32 s6, s3, {16*8192}
    s_add_u32 s6, s6, s{sHoff}
    s_mul_i32 s7, s{sH}, 147456
    s_mul_i32 s4, s3, {32*1152}
    s_add_u32 s7, s7, s4
    s_lshl_b32 s12, s3, 12
    """)
    NS = 10
    slot_of = lambda i: (i % NS) * SLOT
    def issue(i):
        M, c = units[i]
        for jj in range(4):
            a(f"s_add_u32 m0, s12, {slot_of(i) + jj*1024}")
            if M != 'O':
                a(f"s_add_u32 s4, s6, {(64*c + 4*jj)*8192}")
                a(f"buffer_load_dwordx4 v{24 + (jj&1)}, s[{SR[M]}:{SR[M]+3}], s4 offen lds")
            else:
                a(f"s_add_u32 s4, s7, {8*jj*1152 + c*128}")
                a(f"buffer_load_dwordx4 v26, s[{SR[M]}:{SR[M]+3}], s4 offen lds")
    a(f"s_and_b32 s13, s{sH}, 3")
    for i in range(NS): issue(i)
    a("s_waitcnt vmcnt(40)\ns_barrier")
    if CODEPF:
        Lc = a.uniq("L_cpf")
        a(f"s_cmp_lg_u32 s3, 3\ns_cbranch_scc1 {Lc}")
        code_prefetch(a, "L_common_f", 8192, vt=12)
        a.lab(Lc)
    a(f"""
    s_cmp_lg_u32 s3, 0
    s_cbranch_scc1 L_ci_hs
    s_getreg_b32 s4, hwreg(HW_REG_XCC_ID)
    s_and_b32 s4, s4, 7
    s_mul_i32 s4, s4, 7
    s_mov_b64 s[10:11], 1
    s_lshl_b64 s[10:11], s[10:11], s4
    s_mov_b64 s[8:9], exec
    s_mov_b64 exec, 1
    v_mov_b32 v12, 0
    v_mov_b32 v14, s10
    v_mov_b32 v15, s11
    v_mov_b32 v13, 1
    global_atomic_add_x2 v12, v[14:15], s[{P['dbg']}:{P['dbg']+1}]
    global_atomic_add v12, v13, s[{P['dbg']}:{P['dbg']+1}] offset:16
    s_mov_b64 exec, s[8:9]
    L_ci_hs:
    """)
    TO = 32
    a(f"""
    s_lshl_b32 s4, s3, 12
    v_add_u32 v{vResA}, s4, v{vL16}
    v_add_u32 v{vResB}, 0x10000, v{vResA}
    s_lshl_b32 s4, s3, 11
    s_add_u32 s4, s4, {RESO}
    v_add_u32 v{vResO}, s4, v{vL16}
    """)
    for i in range(36):
        M, c = units[i]
        issued = min(max(i + NS - 2, NS - 1), 35)
        a(f"s_waitcnt vmcnt({min((issued - i)*4, 63)}) lgkmcnt(0)")
        if THROT and (issued - i) > THROT and i < 27:
            Lt = a.uniq("L_thr")
            a(f"s_cmp_eq_u32 s13, 1\ns_cbranch_scc1 {Lt}\ns_waitcnt vmcnt({(issued - i - THROT)*4})")
            a.lab(Lt)
        a("s_barrier")
        if i > 0 and i - 1 + NS <= 35: issue(i - 1 + NS)
        if i == 33:
            a(f"""
            v_mov_b32 v12, 0
            global_load_dwordx2 v[14:15], v12, s[{P['dbg']}:{P['dbg']+1}] sc1
            """)
        base = slot_of(i)
        if i >= 30:
            if i == 30:
                for k in range(5):
                    a(f"ds_write_b128 v{vResO}, {vr(TO+8*k,4)} offset:{k*8192}\nds_write_b128 v{vResO}, {vr(TO+8*k+4,4)} offset:{k*8192+1024}")
                a("s_waitcnt lgkmcnt(0)")
            for x in range(2):
                a(f"v_add_u32 v30, {base}, v{28+x}")
                for j in range(4):
                    a(f"ds_read_b64_tr_b16 {vr(TO+8*x+2*j,2)}, v30 offset:{j*2048}")
            a("s_waitcnt lgkmcnt(0)\ns_barrier")
            rb, off = (vResA, base) if base < 65536 else (vResB, base - 65536)
            for x in range(2):
                a(f"ds_write_b128 v{rb}, {vr(TO+8*x,4)} offset:{off + x*2048}\nds_write_b128 v{rb}, {vr(TO+8*x+4,4)} offset:{off + x*2048 + 1024}")
            continue
        if M != 'O':
            for x in range(2):
                dst = WM[(M,c,x)]
                a(f"v_add_u32 v30, {base}, v{28+x}")
                for j in range(4):
                    a(f"ds_read_b64_tr_b16 {R(dst+2*j,2)}, v30 offset:{j*2048}")
        else:
            a(f"v_add_u32 v30, {base}, v27")
            for c2 in range(2):
                dst = WM[('O',c,c2)] if (c,c2) not in RESO_L else TO + 8*RESO_L.index((c,c2))
                for j in range(4):
                    a(f"ds_read_b64_tr_b16 {R(dst+2*j,2)}, v30 offset:{(64*c2 + 16*(j>>1) + 2*(j&1))*128}")
    a("s_waitcnt vmcnt(0) lgkmcnt(0)\ns_barrier")
    a(f"""
    v_readfirstlane_b32 s8, v14
    v_readfirstlane_b32 s9, v15
    """)
    stamp(a, 1, 12, 13)
    a(f"""
    v_mov_b32 v12, 0
    s_mov_b32 s4, s8
    s_mov_b32 s5, s9
    s_branch L_ci_w2
    L_ci_w:
    global_load_dwordx2 v[14:15], v12, s[{P['dbg']}:{P['dbg']+1}] sc1
    s_waitcnt vmcnt(0)
    v_readfirstlane_b32 s4, v14
    v_readfirstlane_b32 s5, v15
    L_ci_w2:
    s_mov_b32 s6, 0
    s_mov_b32 s7, 0
    """)
    for k in range(8):
        a(f"s_and_b32 s10, s4, 127\ns_add_u32 s6, s6, s10\ns_max_u32 s7, s7, s10\ns_lshr_b64 s[4:5], s[4:5], 7")
    a(f"""
    s_cmp_ge_u32 s6, 32
    s_cbranch_scc1 L_ci_go
    s_sleep 2
    """)
    spin_check(a)
    a(f"""
    s_branch L_ci_w
    L_ci_go:
    s_cmp_ge_u32 s7, 32
    s_cselect_b32 s{sMode}, 0, 1
    """)
    a(f"""
    v_lshlrev_b32 v71, 3, v{vL16}
    v_and_b32 v71, 0xf80, v71
    s_mov_b32 s4, {F_KV}
    buffer_load_dword v71, v71, s[{SWS}:{SWS+3}], s4 offen sc1
    """)
    a(f"""
    v_bfe_u32 v12, v0, 1, 1
    v_mov_b32 v{vIdx}, 0x4444
    v_mov_b32 v13, 0xeeee
    v_cmp_eq_u32 vcc, 1, v12
    s_nop 1
    v_cndmask_b32 v{vIdx}, v{vIdx}, v13, vcc
    v_lshrrev_b32 v12, 2, v0
    v_lshlrev_b32 v12, 5, v12
    v_and_b32 v13, 3, v0
    v_lshlrev_b32 v13, 3, v13
    v_add_u32 v12, v12, v13
    v_add_u32 v{vTrX}, {XQ}, v12
    v_and_b32 v12, 15, v0
    s_lshl_b32 s4, s3, 5
    v_add_u32 v12, s4, v12
    v_lshlrev_b32 v12, 5, v12
    v_lshrrev_b32 v13, 4, v0
    v_lshlrev_b32 v13, 3, v13
    v_add_u32 v12, v12, v13
    v_add_u32 v{vXQw}, {XQ}, v12
    v_bfe_u32 v12, v0, 2, 2
    v_lshlrev_b32 v12, 2, v12
    v_and_b32 v13, 1, v0
    s_and_b32 s4, s3, 1
    s_lshl_b32 s4, s4, 1
    v_add3_u32 v12, v12, v13, s4
    v_lshrrev_b32 v13, 5, v0
    v_lshlrev_b32 v13, 4, v13
    v_add_u32 v12, v12, v13
    v_lshlrev_b32 v12, 4, v12
    v_bfe_u32 v13, v0, 4, 1
    v_lshlrev_b32 v13, 3, v13
    v_add_u32 v12, v12, v13
    s_lshr_b32 s4, s3, 1
    s_lshl_b32 s4, s4, 10
    s_add_u32 s4, s4, {XO}
    v_add_u32 v{vXOw}, s4, v12
    v_lshlrev_b32 v12, 3, v0
    v_add_u32 v12, {MEMB}, v12
    v_bfe_u32 v13, v0, 1, 1
    v_cmp_eq_u32 vcc, 0, v13
    s_nop 1
    v_cndmask_b32 v{vXOw}, v{vXOw}, v12, vcc
    s_mov_b32 s{sMask}, 0xcccccccc
    s_mov_b32 s{sMask+1}, 0xcccccccc
    s_mov_b32 s{sC1}, {fb(C1)}
    s_mov_b32 s{sRT}, -1
    s_cmp_eq_u32 s3, 0
    s_cselect_b32 s{sRT}, s{sH}, s{sRT}
    s_add_u32 s4, s{sH}, 32
    s_cmp_lt_u32 s{sH}, 4
    s_cselect_b32 s4, s4, -1
    s_cmp_eq_u32 s3, 1
    s_cselect_b32 s{sRT}, s4, s{sRT}
    """)
    a(f"""
    s_lshr_b32 s4, s{sRT}, 2
    s_lshl_b32 s4, s4, 10
    s_and_b32 s5, s{sRT}, 1
    s_lshl_b32 s5, s5, 9
    s_add_u32 s4, s4, s5
    s_bfe_u32 s5, s{sRT}, 0x10001
    s_lshl_b32 s5, s5, 5                ; 2*half*16
    s_add_u32 s4, s4, s5
    v_bfe_u32 v12, v0, 2, 1
    v_lshlrev_b32 v12, 8, v12
    v_lshrrev_b32 v13, 4, v0
    v_lshlrev_b32 v13, 6, v13
    v_add_u32 v12, v12, v13
    v_and_b32 v13, 1, v0
    v_lshlrev_b32 v13, 4, v13           ; (e'&1)*16
    v_add_u32 v12, v12, v13
    v_bfe_u32 v13, v0, 1, 1
    v_lshlrev_b32 v13, 3, v13
    v_add_u32 v12, v12, v13
    v_add_u32 v{vMst}, s4, v12
    v_bfe_u32 v13, v0, 3, 1
    v_mul_u32_u24 v13, {CS}, v13
    v_add_u32 v{vMst}, v{vMst}, v13
    v_and_b32 v12, 7, v0
    v_lshrrev_b32 v13, 1, v12
    v_and_b32 v16, 1, v12
    v_lshlrev_b32 v16, 4, v16
    v_mov_b32 v17, 0x3f80
    v_lshlrev_b32 v17, v16, v17
    """)
    for j in range(4):
        a(f"v_cmp_eq_u32 vcc, {j}, v13\ns_nop 1\nv_cndmask_b32 v{20+j}, 0, v17, vcc")
    a(f"v_add_u32 v16, {SEL}, v{vL16}\nds_write_b128 v16, v[20:23]")
    a("s_waitcnt lgkmcnt(0)")
    if Cfg.FORCE_SLOW: a(f"s_mov_b32 s{sMode}, 1")

def zero(a, base, n):
    for i in range(0, n, 2): a(f"v_mov_b64 {vr(base+i,2)}, 0")
def smf(a, acc, A, B):
    a(f"v_smfmac_f32_16x16x64_bf16 {vr(acc,4)}, {vr(A,4)}, {R(B,8)}, v{vIdx}")

class LQ:
    def __init__(s, a): s.a = a; s.p = []
    def add(s, tag, n=1): s.p.extend([tag]*n)
    def wait(s, tags):
        idx = [i for i,t in enumerate(s.p) if t in tags]
        if not idx: return
        last = max(idx); n = len(s.p) - 1 - last
        s.a(f"s_waitcnt lgkmcnt({min(n,15)})"); del s.p[:last+1]

VSPACE = 4
VSPACE2 = 2
class Sch:
    def __init__(s, a, lq): s.a = a; s.lq = lq; s.f = []; s.since = 99; s.vs = VSPACE; s.nvm = 0
    def fill(s, instr, tag=None): s.f.append((instr, tag))
    def front(s, lst):
        k = 0
        while k < len(s.f) and (s.f[k][1] == 'W' or (isinstance(s.f[k][1], tuple) and s.f[k][1][0] == 'A')): k += 1
        s.f[k:k] = lst
    def pop(s, n=1, force=False):
        for _ in range(n):
            if not s.f: return
            k = 0
            s.since += 1
            if not force and s.vs:
                k = None
                for q, (ins, tag) in enumerate(s.f):
                    if ins.startswith("buffer_"):
                        if s.since >= s.vs and not any(x[0].startswith("buffer_") for x in s.f[:q]): k = q; break
                    else:
                        k = q; break
                if k is None: return
            ins, tag = s.f.pop(k)
            if ins.startswith("buffer_"): s.since = 0; s.nvm += 1
            s.a(ins)
            if tag is not None: s.lq.add(tag)
    def flush(s): s.pop(len(s.f), force=True)

sPJ = 32
WSR = f"s[{SWS}:{SWS+3}]"
ST = 32*8192
res_at = {c: M for (M,c) in RESQ_L}
res_list = sorted(res_at)
def rq(c, x):
    slot = RESQ_L.index((res_at[c],c)) * SLOT
    rb, off = (vResA, slot) if slot < 65536 else (vResB, slot - 65536)
    return [f"ds_read_b128 {vr(LD+8*x+4*q,4)}, v{rb} offset:{off + x*2048 + q*1024}" for q in range(2)]
ACCS = [52,53,54,55,56,57,58,61,62,63,59,60]

def chain_state_init(a):
    a(f"""
    s_mov_b32 s{sStep}, -1
    v_add_u32 v{vHi}, {HB}, v{vL16}
    s_lshl_b32 s{sW1k}, s3, 10
    s_lshl_b32 s4, s{sH}, 13
    s_lshl_b32 s5, s3, 11
    s_add_u32 s4, s4, s5
    s_add_u32 s{sKXo}, s4, {WS_KX}
    s_add_u32 s{sVXo}, s4, {WS_VX - ST}
    s_lshl_b32 s4, s{sH}, 12
    s_add_u32 s4, s4, s{sW1k}
    s_add_u32 s{sPub}, s4, {WS_KM}
    s_lshl_b32 s4, s{sH}, 7
    s_add_u32 s{sProg}, s4, {F_PROG}
    s_mov_b32 s{sProgL}, s{sProg}
    s_cmp_eq_u32 s3, 3
    s_cselect_b32 s{sProg}, s{sProg}, {OOB}
    s_lshl_b32 s4, s3, 13
    s_add_u32 s4, s4, s{sHoff}
    s_add_u32 s{sPst}, s4, {CH_PART + PART_SZ}
    s_add_u32 s5, s4, {CH_PART}
    s_xor_b32 s{sPstX}, s{sPst}, s5
    s_lshl_b32 s4, s{sRT}, 13
    s_add_u32 s{sRd}, s4, {CH_PART}
    s_add_u32 s5, s4, {CH_PART + PART_SZ}
    s_xor_b32 s{sRdX}, s{sRd}, s5
    s_mov_b32 s{sMemOff}, {-65536 & 0x3ffff}
    s_and_b32 s4, s{sH}, 3
    s_mul_i32 s4, s4, {CS}
    s_add_u32 s{sMB}, s4, {CH_MEM}
    s_lshl_b32 s4, s{sH}, 13
    s_lshl_b32 s5, s3, 11
    s_add_u32 s4, s4, s5
    s_add_u32 s{sRa}, s4, {CH_PART}
    s_add_u32 s5, s4, {CH_PART + PART_SZ}
    s_xor_b32 s{sRaX}, s{sRa}, s5
    s_add_u32 s{sRb}, s{sRa}, {32*8192}
    s_add_u32 s5, s5, {32*8192}
    s_xor_b32 s{sRbX}, s{sRb}, s5
    s_cmp_lt_u32 s{sH}, 4
    s_cselect_b32 s{sRb}, s{sRb}, {OOB}
    s_cselect_b32 s{sRbX}, s{sRbX}, 0
    s_mov_b32 s{sC1+1}, s{sC1}
    s_mov_b32 s{sThr}, {fb(60.0/C1)}
    """)
    a(f"s_mov_b32 s{sFlc}, 0")
    Lkv = a.uniq("L_kv0"); Lkd = a.uniq("L_kv0d")
    a(f"""
    s_waitcnt vmcnt(0)
    v_cmp_le_u32 vcc, 32, v71
    s_nop 1
    s_not_b32 s4, vcc_lo
    s_ff1_i32_b32 s4, s4
    s_cmp_eq_u32 s4, -1
    s_cselect_b32 s{sReady}, 32, s4
    s_cmp_gt_u32 s{sReady}, 0
    s_cbranch_scc1 {Lkd}
    """)
    a.lab(Lkv)
    kv_refresh(a, sFlc, 12)
    a.lab(Lkd)
    a(f"""
    s_add_u32 m0, s{sW1k}, s{sW1k}
    s_add_u32 m0, m0, {KXB}
    s_nop 0
    buffer_load_dwordx4 v{vL16}, {WSR}, s{sKXo} offen sc1 lds
    buffer_load_dwordx4 v{vL16}, {WSR}, s{sKXo} offen offset:1024 sc1 lds
    s_add_u32 s{sKXo}, s{sKXo}, {ST}
    """)
    book_salu(a)
    stamp(a, 2, 12, 13)
    dbgt(a, 9, 'umax')
    if Cfg.STAMPS: a("\n".join(f"s_mov_b32 s{r}, 0" for r in ACCS))
    cyc(a)

def book_salu(a):
    a(f"""
    s_add_u32 s{sMemOff}, s{sMemOff}, 65536
    s_and_b32 s{sMemOff}, s{sMemOff}, 0x3ffff
    s_add_u32 s{sT0}, s{sMemOff}, s{sMB}
    s_add_u32 s{sM0}, s{sT0}, s{sW1k}
    s_mov_b32 s{sMZ}, s{sT0}
    s_add_u32 s{sStep}, s{sStep}, 1
    s_add_u32 s{sM1}, s{sM0}, 4096
    s_lshr_b32 s4, s{sW1k}, 2
    s_add_u32 s{sM2}, s{sT0}, s4
    s_add_u32 s{sM2}, s{sM2}, 8192
    s_add_u32 s{sT2}, s4, {MEMB + 8192}
    s_xor_b32 s{sPst}, s{sPst}, s{sPstX}
    s_mov_b32 s{sPJ}, s{sPst}
    """)
    for j in range(1, 9): a(f"s_add_u32 s{sPJ+j}, s{sPst}, {j*4*8192}")
    a(f"""
    s_xor_b32 s{sRa}, s{sRa}, s{sRaX}
    s_xor_b32 s{sRb}, s{sRb}, s{sRbX}
    s_add_u32 s{sVXo}, s{sVXo}, {ST}
    s_add_u32 s4, s{sStep}, 1
    s_lshr_b32 s4, s4, 1
    s_min_u32 s{sFlc}, s4, 31
    """)

def kv_refresh(a, target_sgpr, vt):
    if Cfg.NOCOMM or getattr(Cfg,'WEXIT',False) or getattr(Cfg,'NOWAIT',False):
        a(f"s_mov_b32 s{sReady}, 32"); return
    L = a.uniq("L_kvr"); Ld = a.uniq("L_kvd")
    a.lab(L)
    a(f"""
    v_lshlrev_b32 v{vt}, 3, v{vL16}
    v_and_b32 v{vt}, 0xf80, v{vt}
    s_mov_b32 s4, {F_KV}
    buffer_load_dword v{vt}, v{vt}, {WSR}, s4 offen sc1
    s_waitcnt vmcnt(0)
    v_cmp_le_u32 vcc, 32, v{vt}
    s_nop 1
    s_not_b32 s4, vcc_lo
    s_ff1_i32_b32 s4, s4
    s_cmp_eq_u32 s4, -1
    s_cselect_b32 s{sReady}, 32, s4
    s_cmp_gt_u32 s{sReady}, s{target_sgpr}
    s_cbranch_scc1 {Ld}
    s_sleep 4
    """)
    spin_check(a)
    a(f"s_branch {L}")
    a.lab(Ld)

def probe(a, instr, sacc, smax):
    if Cfg.STAMPS and Cfg.CYC and PROBES:
        a("s_memtime s[90:91]\ns_waitcnt lgkmcnt(0)")
        a(instr)
        a(f"s_memtime s[92:93]\ns_waitcnt lgkmcnt(0)\ns_sub_u32 s92, s92, s90\ns_add_u32 s{sacc}, s{sacc}, s92\ns_max_u32 s{smax}, s{smax}, s92")
    else:
        a(instr)
PROBES = False

def chain_loop(a, slow):
    T0 = "s" if slow else "f"
    sfx = " sc1" if slow else ""
    q0,q1,k0,k1,v0_,v1_ = ACC, ACC+4, ACC+8, ACC+12, ACC+16, ACC+20
    accs = {('Q',0):q0,('Q',1):q1,('K',0):k0,('K',1):k1,('V',0):v0_,('V',1):v1_}
    RL = 16
    def loads1():
        for j in range(8):
            a(f"buffer_load_dwordx4 {vr(RL+4*j,4)}, v{vL16}, {WSR}, s{sRd if j < 4 else sT1} offen offset:{(j&3)*1024} sc1")
    def aread_i(c): return f"ds_read_b128 {vr(AS+4*(c&1),4)}, v{vHi} offset:{MEMB - HB + c*1024}"
    ool = []
    def first_poll():
        if D0: a(f"buffer_load_dwordx4 {vr(AS,4)}, v{vL16}, {WSR}, s{sMZ} offen sc1\nbuffer_load_dwordx4 {vr(AS+4,4)}, v{vL16}, {WSR}, s{sM0} offen sc1")
        else: a(f"buffer_load_dwordx4 {vr(AS,4)}, v{vL16}, {WSR}, s{sM0} offen sc1")

    def emit(final):
        T = T0 + ("z" if final else "")
        def lb(n): return f"{n}_{T}"
        a.lab(lb("L_common"))
        if not final:
            cyc(a, 57); ev(a, 7, 31)
            a(f"s_cmp_eq_u32 s{sStep}, 63\ns_cbranch_scc1 L_common_{T0}z")
        a(f"""
        v_add_u32 v{vT+2}, s{sW1k}, v{vHi}
        v_add_u32 v{vT+3}, s{sT2}, v{vL4}
        v_mov_b32 v{vT+1}, -1
        s_cmp_ge_u32 s{sFlc}, s{sReady}
        s_cbranch_scc1 {lb('L_flslow')}
        """)
        a.lab(lb("L_fl_ok"))
        def chk(reg, fail):
            a(f"v_cmp_eq_u32 vcc, -1, v{reg}\ns_cbranch_vccnz {fail}")
        def chk2(r0, r1, fail):
            a(f"v_max_u32 v{vT}, v{r0}, v{r1}\nv_cmp_eq_u32 vcc, -1, v{vT}\ns_cbranch_vccnz {fail}")
        def okpath(reg):
            if not final: ev(a, 8, 31)
            a(f"ds_write_b128 v{vT+2}, {vr(reg,4)} offset:{MEMB-HB}")
            a(f"buffer_load_dwordx4 {vr(PB,4)}, v{vL16}, {WSR}, s{sM1} offen sc1\nbuffer_load_dword v{PB+4}, v{vL4}, {WSR}, s{sM2} offen sc1")
        def ldX(): a(f"buffer_load_dwordx4 {vr(AS,4)}, v{vL16}, {WSR}, s{sMZ} offen sc1\nbuffer_load_dwordx4 {vr(AS+4,4)}, v{vL16}, {WSR}, s{sM0} offen sc1")
        def ldY(): a(f"buffer_load_dwordx4 {vr(PB,4)}, v{vL16}, {WSR}, s{sMZ} offen sc1\nbuffer_load_dwordx4 {vr(PB+4,4)}, v{vL16}, {WSR}, s{sM0} offen sc1")
        if D0:
            ldY()
            a.lab(lb("L_pA0"))
            a("s_waitcnt vmcnt(2)")
            chk2(AS, AS+4, lb("L_pA0f"))
            if not final: ev(a, 8, 31)
            a(f"ds_write_b128 v{vT+2}, {vr(AS+4,4)} offset:{MEMB-HB}")
            a.lab(lb("L_pAdone"))
            a(f"buffer_load_dwordx4 {vr(PB,4)}, v{vL16}, {WSR}, s{sM1} offen sc1\nbuffer_load_dword v{PB+4}, v{vL4}, {WSR}, s{sM2} offen sc1")
            if not final:
                cyc(a, 58); ev(a, 9, 31)
        elif not PIPE:
            a.lab(lb("L_pA0"))
            a("s_waitcnt vmcnt(0)")
            chk(AS, lb("L_pA0f"))
            okpath(AS)
            a.lab(lb("L_pAdone"))
            a("s_waitcnt lgkmcnt(0)\ns_barrier")
            if not final:
                cyc(a, 58); ev(a, 9, 31)
        if not D0 and PIPE:
            a(f"buffer_load_dwordx4 {vr(AS+4,4)}, v{vL16}, {WSR}, s{sM0} offen sc1")
            a.lab(lb("L_pA0"))
            a("s_waitcnt vmcnt(1)")
            chk(AS, lb("L_pA0f"))
            okpath(AS)
            a.lab(lb("L_pAdone"))
            a("s_waitcnt vmcnt(2) lgkmcnt(0)\ns_barrier")
            if not final:
                cyc(a, 58); ev(a, 9, 31)
        def ool_poll():
            a.lab(lb("L_pA0f"))
            if Cfg.STAMPS: a("s_add_u32 s62, s62, 1")
            spin_check(a)
            if D0:
                ldX()
                a("s_waitcnt vmcnt(2)")
                chk2(PB, PB+4, lb("L_pA1f"))
                a(f"ds_write_b128 v{vT+2}, {vr(PB+4,4)} offset:{MEMB-HB}")
                a(f"v_mov_b64 {vr(AS,2)}, {vr(PB,2)}\nv_mov_b64 {vr(AS+2,2)}, {vr(PB+2,2)}")
                a(f"s_nop 0\ns_branch {lb('L_pAdone')}")
                a.lab(lb("L_pA1f"))
                if Cfg.STAMPS: a("s_add_u32 s62, s62, 1")
                ldY()
                a(f"s_branch {lb('L_pA0')}")
            elif not PIPE:
                if BACKOFF: a(f"s_sleep {BACKOFF}")
                a(f"buffer_load_dwordx4 {vr(AS,4)}, v{vL16}, {WSR}, s{sM0} offen sc1")
                a(f"s_branch {lb('L_pA0')}")
            else:
                a(f"buffer_load_dwordx4 {vr(AS,4)}, v{vL16}, {WSR}, s{sM0} offen sc1")
                a("s_waitcnt vmcnt(1)")
                chk(AS+4, lb("L_pA1f"))
                okpath(AS+4)
                a(f"s_branch {lb('L_pAdone')}")
                a.lab(lb("L_pA1f"))
                if Cfg.STAMPS: a("s_add_u32 s62, s62, 1")
                a(f"buffer_load_dwordx4 {vr(AS+4,4)}, v{vL16}, {WSR}, s{sM0} offen sc1")
                a(f"s_branch {lb('L_pA0')}")
            a.lab(lb("L_retryB"))
            if Cfg.STAMPS: a("s_add_u32 s63, s63, 1")
            spin_check(a)
            a(f"buffer_load_dwordx4 {vr(PB,4)}, v{vL16}, {WSR}, s{sM1} offen sc1\nbuffer_load_dword v{PB+4}, v{vL4}, {WSR}, s{sM2} offen sc1\ns_waitcnt vmcnt(0)\ns_branch {lb('L_chkB')}")
            a.lab(lb("L_flslow"))
            kv_refresh(a, sFlc, PB+6)
            a(f"s_branch {lb('L_fl_ok')}")
        ool.append(ool_poll)
        if not final:
            cyc(a); ev(a, 0)
            if Cfg.STEPLOG:
                L = a.uniq("L_sl")
                a(f"""
                s_cmp_lg_u32 s3, 3
                s_cbranch_scc1 {L}
                s_memrealtime s[94:95]
                s_memtime s[96:97]
                s_lshl_b32 s7, s{sH}, 10
                s_lshl_b32 s6, s{sStep}, 3
                s_add_u32 s7, s7, s6
                s_add_u32 s7, s7, {0x7300000}
                s_waitcnt lgkmcnt(0)
                v_mov_b32 v{PB+6}, s94
                v_mov_b32 v{PB+7}, s96
                v_mov_b32 v{vT}, 0
                buffer_store_dwordx2 {vr(PB+6,2)}, v{vT}, {WSR}, s7 offen
                """)
                a.lab(L)
        lq = LQ(a); sch = Sch(a, lq)
        if D0:
            lq.add('W0')
        else:
            a(aread_i(0)); lq.add(('A',0))
            a(aread_i(1)); lq.add(('A',1))
        nre = 4 if not final else 0
        def add_rearm():
            if not final:
                for sr_ in (sRa, sRb):
                    for q in range(2):
                        sch.fill(f"buffer_store_dword v{vT+1}, v{vL16}, {WSR}, s{sr_} offen offset:{q*1024}{sfx}")
        if not D0: add_rearm()
        else: a("s_waitcnt lgkmcnt(1)")
        mats = 'KV' if final else 'QKV'
        for c in range(9):
            A = AS + 4*(c&1)
            base = [(M,x) for M in mats for x in range(2)]
            if c in res_at and c != 8 and res_at[c] in mats:
                Mr = res_at[c]
                others = [o for o in base if o[0] != Mr]
                if len(others) == 4: order = [others[0], (Mr,0), others[1], others[2], (Mr,1), others[3]]
                else: order = [others[0], (Mr,0), others[1], (Mr,1)]
            else:
                order = base
            if c >= 7 and not final: order = [('Q',0),('K',0),('Q',1),('K',1)]
            if c >= 7 and final: order = [('K',0),('K',1)]
            if 1 <= c < 8: sch.front([(aread_i(c+1), ('A',c+1))])
            last = len(order) - 1
            for n_, (M,x) in enumerate(order):
                isres = (c in res_at and M == res_at[c])
                lq.wait([('A',c)] + ([('R',c,x)] if isres else []))
                B = (LD + 8*x) if isres else WM[(M,c,x)]
                smf(a, accs[(M,x)], A, B)
                if isres:
                    nx = [r for r in res_list if r > c and res_at[r] in mats]
                    if nx:
                        ins = rq(nx[0], x)
                        sch.front([(ins[0], ('R',nx[0],x)), (ins[1], ('R',nx[0],x))])
                if D0 and c == 0 and n_ == (len(order) // 2 - 1):
                    lq.wait(['W0'])
                    a(f"s_waitcnt vmcnt({2 + sch.nvm})\ns_barrier")
                    a(aread_i(1)); lq.add(('A',1))
                    add_rearm()
                elif c == 1 and n_ == last:
                    sch.flush()
                    a(f"s_waitcnt vmcnt({nre})")
                    a.lab(lb("L_chkB"))
                    a(f"v_max_u32 v{PB+6}, v{PB}, v{PB+4}\nv_cmp_eq_u32 vcc, -1, v{PB+6}\ns_cbranch_vccnz {lb('L_retryB')}")
                    if not final: ev(a, 1)
                    sch.front([(f"ds_write_b128 v{vT+2}, {vr(PB,4)} offset:{MEMB-HB+4096}", 'W'), (f"ds_write_b32 v{vT+3}, v{PB+4}", 'W')])
                elif c == 2 and n_ == last:
                    sch.flush()
                    lq.wait(['W'])
                    a("s_barrier")
                    if not final:
                        if not Cfg.NOVX:
                            sch.fill(f"buffer_load_dwordx4 {vr(PB,4)}, v{vL16}, {WSR}, s{sVXo} offen sc1")
                            sch.fill(f"buffer_load_dwordx4 {vr(PB+4,4)}, v{vL16}, {WSR}, s{sVXo} offen offset:1024 sc1")
                    a(f"v_sub_u32 v{vT+2}, 0, v{vL16}\nv_mov_b32 v{vT+3}, s{sStep}")
                    if not Cfg.NOFL: sch.fill(f"buffer_store_dword v{vT+3}, v{vT+2}, {WSR}, s{sProg} offen sc1")
                else:
                    sch.pop(1)
                if final and c == 0 and n_ == last and 'Q' == res_at[0]:
                    nx = [r for r in res_list if res_at[r] in mats]
                    for x2 in range(2):
                        ins = rq(nx[0], x2)
                        sch.front([(ins[0], ('R',nx[0],x2)), (ins[1], ('R',nx[0],x2))])
        sch.flush()
        if not final:
            cyc(a, 52); ev(a, 2)
            for _ in range(ADDQ): a('s_nop 15')
        A7, A8 = AS+4, AS
        if final or not POSTFIRST:
            smf(a, v0_, A7, WM[('V',7,0)]); smf(a, v1_, A7, WM[('V',7,1)])
            a("s_nop 1")
        vp = v0_
        if final:
            lq.wait([('R',8,0),('R',8,1)])
            smf(a, v0_, A8, LD); smf(a, v1_, A8, LD+8)
            a.nop(8)
            a(f"v_pk_add_f32 {vr(k0,2)}, {vr(k0,2)}, {vr(k0+2,2)}\nv_pk_add_f32 {vr(k1,2)}, {vr(k1,2)}, {vr(k1+2,2)}")
            a(f"v_cvt_pk_bf16_f32 v{k0}, v{k0}, v{k0+1}\nv_cvt_pk_bf16_f32 v{k0+2}, v{k1}, v{k1+1}")
            a(f"v_pk_add_f32 {vr(v0_,2)}, {vr(v0_,2)}, {vr(v0_+2,2)}\nv_pk_add_f32 {vr(v1_,2)}, {vr(v1_,2)}, {vr(v1_+2,2)}")
            a(f"v_cvt_pk_bf16_f32 v{k0+1}, v{v0_}, v{v0_+1}\nv_cvt_pk_bf16_f32 v{k0+3}, v{v1_}, v{v1_+1}")
            a(f"buffer_store_dwordx4 {vr(k0,4)}, v{vL16}, {WSR}, s{sPub} offen sc1")
            a("s_branch L_chain_last")
            return
        a(f"v_pk_add_f32 {vr(q0,2)}, {vr(q0,2)}, {vr(q0+2,2)}\nv_pk_add_f32 {vr(k0,2)}, {vr(k0,2)}, {vr(k0+2,2)}")
        a(f"v_cvt_pk_bf16_f32 v{k0}, v{k0}, v{k0+1}\nv_cvt_pk_bf16_f32 v{k0+1}, v{q0}, v{q0+1}")
        a(f"ds_write_b64 v{vXQw}, {vr(k0,2)}")
        a(f"v_pk_add_f32 {vr(q1,2)}, {vr(q1,2)}, {vr(q1+2,2)}\nv_pk_add_f32 {vr(k1,2)}, {vr(k1,2)}, {vr(k1+2,2)}")
        a(f"v_cvt_pk_bf16_f32 v{k0+2}, v{k1}, v{k1+1}\nv_cvt_pk_bf16_f32 v{k0+3}, v{q1}, v{q1+1}")
        a(f"ds_write_b64 v{vXQw}, {vr(k0+2,2)} offset:512")
        lq.add('XW', 2)
        if POSTFIRST:
            smf(a, v0_, A7, WM[('V',7,0)]); smf(a, v1_, A7, WM[('V',7,1)])
        lq.wait([('R',8,0),('R',8,1)])
        smf(a, v0_, A8, LD)
        smf(a, v1_, A8, LD+8)
        a("s_waitcnt lgkmcnt(0)\ns_barrier")
        sm, s1, s2 = q0, q1, k1
        KL = [24, 28, 12]
        for ks in range(4):
            for x2 in range(2):
                a(f"ds_read_b64_tr_b16 {vr(LD+4*ks+2*x2,2)}, v{vTrX} offset:{(32*ks+16*x2)*32}")
        def kxread(i): return f"ds_read_b128 {vr(KL[i%3],4)}, v{vHi} offset:{KXB - HB + i*1024}"
        for i in range(3): a(kxread(i))
        a(f"v_pk_add_f32 {vr(v0_,2)}, {vr(v0_,2)}, {vr(v0_+2,2)}\nv_pk_add_f32 {vr(v1_,2)}, {vr(v1_,2)}, {vr(v1_+2,2)}")
        a(f"v_cvt_pk_bf16_f32 v{k0+1}, v{v0_}, v{v0_+1}\nv_cvt_pk_bf16_f32 v{k0+3}, v{v1_}, v{v1_+1}")
        a(f"v_cvt_pk_bf16_f32 v{vp}, v{v0_}, v{v0_+1}\nv_cvt_pk_bf16_f32 v{vp+2}, v{v1_}, v{v1_+1}\nv_mov_b32 v{vp+1}, 0\nv_mov_b32 v{vp+3}, 0")
        cyc(a, 53)
        a("s_waitcnt lgkmcnt(3)")
        ones = v1_
        for ks in range(4):
            c = "0" if ks == 0 else vr(sm,4)
            a(f"v_mfma_f32_16x16x32_bf16 {vr(sm,4)}, {vr(LD+4*ks,4)}, {vr(LD+4*ks,4)}, {c}")
            a(f"v_mov_b32 v{ones+ks}, 0x3f803f80")
            if ks == 1 and not Cfg.NOPUB: a(f"buffer_store_dwordx4 {vr(k0,4)}, v{vL16}, {WSR}, s{sPub} offen sc1")
        for i in range(8):
            t, ks = i >> 2, i & 3
            d = s1 if t == 0 else s2
            a(f"s_waitcnt lgkmcnt({min(2, 7 - i)})")
            c = "0" if ks == 0 else vr(d,4)
            a(f"v_mfma_f32_16x16x32_bf16 {vr(d,4)}, {vr(KL[i%3],4)}, {vr(LD+4*ks,4)}, {c}")
            if i + 3 < 8: a(kxread(i + 3))
            if i == 6: a(f"s_add_u32 s{sPub}, s{sPub}, {32*4096}")
        a(f"ds_read_b128 {vr(LD+8,4)}, v{vResO} offset:0\nds_read_b128 {vr(LD+12,4)}, v{vResO} offset:1024")
        if KXEARLY:
            a(f"s_add_u32 m0, s{sW1k}, s{sW1k}\ns_add_u32 m0, m0, {KXB}\ns_barrier")
            if not Cfg.NOKX: a(f"buffer_load_dwordx4 v{vL16}, {WSR}, s{sKXo} offen sc1 lds\nbuffer_load_dwordx4 v{vL16}, {WSR}, s{sKXo} offen offset:1024 sc1 lds")
            a(f"s_add_u32 s{sKXo}, s{sKXo}, {ST}")
        else:
            a.nop(5)
        cyc(a, 54); ev(a, 3)
        vals = [sm, sm+1, s1, s1+1, s1+2, s1+3, s2, s2+1, s2+2, s2+3]
        mx, t2 = AS, AS+1
        pairs = (sm, s1, s1+2, s2, s2+2)
        def truemax():
            a(f"v_max3_f32 v{mx}, v{vals[0]}, v{vals[1]}, v{vals[2]}")
            a(f"v_max3_f32 v{t2}, v{vals[3]}, v{vals[4]}, v{vals[5]}")
            a(f"v_max3_f32 v{mx}, v{mx}, v{vals[6]}, v{vals[7]}")
            a(f"v_max3_f32 v{t2}, v{t2}, v{vals[8]}, v{vals[9]}")
            a(f"v_max_f32 v{mx}, v{mx}, v{t2}")
            a(f"v_mov_b32 v{t2}, v{mx}\ns_nop 1\nv_permlane16_swap_b32 v{mx}, v{t2}\ns_nop 0\nv_max_f32 v{mx}, v{mx}, v{t2}")
            a(f"v_mov_b32 v{t2}, v{mx}\ns_nop 1\nv_permlane32_swap_b32 v{mx}, v{t2}\ns_nop 0\nv_max_f32 v{mx}, v{mx}, v{t2}")
            a(f"v_mul_f32 v{mx}, s{sC1}, v{mx}")
            for b_ in pairs:
                a(f"v_pk_fma_f32 {vr(b_,2)}, {vr(b_,2)}, s[{sC1}:{sC1+1}], {vr(mx,2)} op_sel_hi:[1,1,0] neg_lo:[0,0,1] neg_hi:[0,0,1]")
        if SKIPMAX:
            a(f"v_max3_f32 v{mx}, |v{vals[0]}|, |v{vals[1]}|, |v{vals[2]}|")
            a(f"v_max3_f32 v{t2}, |v{vals[3]}|, |v{vals[4]}|, |v{vals[5]}|")
            a(f"v_max3_f32 v{mx}, v{mx}, |v{vals[6]}|, |v{vals[7]}|")
            a(f"v_max3_f32 v{t2}, v{t2}, |v{vals[8]}|, |v{vals[9]}|")
            a(f"v_max_f32 v{mx}, v{mx}, v{t2}")
            a(f"v_cmp_nle_f32 vcc, v{mx}, v{vThr}" if False else f"v_cmp_ngt_f32 vcc, s{sThr}, v{mx}")
            for b_ in pairs[:2]:
                pass
            a(f"s_and_b64 vcc, vcc, s[{sMask}:{sMask+1}]\ns_cbranch_scc1 {lb('L_tmax')}")
            for b_ in pairs:
                a(f"v_pk_mul_f32 {vr(b_,2)}, {vr(b_,2)}, s[{sC1}:{sC1+1}]")
            a.lab(lb("L_tmaxr"))
            def ool_tm():
                a.lab(lb("L_tmax"))
                truemax()
                a(f"s_branch {lb('L_tmaxr')}")
            ool.append(ool_tm)
        else:
            truemax()
        if not SKIPSM:
            for v in vals: a(f"v_exp_f32 v{v}, v{v}")
        pm, px, lr = LD, LD+4, AS+4
        a(f"v_mov_b32 v{pm+1}, 0")
        a(f"v_cvt_pk_bf16_f32 v{pm}, v{sm}, v{sm+1}")
        a(f"v_cvt_pk_bf16_f32 v{px}, v{s1}, v{s1+1}\nv_cvt_pk_bf16_f32 v{px+1}, v{s1+2}, v{s1+3}")
        a(f"v_cvt_pk_bf16_f32 v{px+2}, v{s2}, v{s2+1}\nv_cvt_pk_bf16_f32 v{px+3}, v{s2+2}, v{s2+3}")
        o0, o1 = sm, s1
        probe(a, f"s_waitcnt vmcnt({max(0, 2 + (2 if KXEARLY and not Cfg.NOKX else 0) - (1 if Cfg.NOPUB else 0) - (1 if Cfg.NOFL else 0))})", 59, 60)
        a("s_nop 0")
        a(f"v_mfma_f32_16x16x32_bf16 {vr(lr,4)}, {vr(ones,4)}, {vr(px,4)}, 0")
        a(f"v_mfma_f32_16x16x32_bf16 {vr(o0,4)}, {vr(PB,4)}, {vr(px,4)}, 0")
        a(f"ds_read_b128 v[56:59], v{vResO} offset:8192")
        a(f"v_mfma_f32_16x16x32_bf16 {vr(o1,4)}, {vr(PB+4,4)}, {vr(px,4)}, 0")
        a(f"ds_read_b128 v[60:63], v{vResO} offset:{8192+1024}")
        a(f"v_mfma_f32_16x16x16_bf16 {vr(lr,4)}, {vr(ones,2)}, {vr(pm,2)}, {vr(lr,4)}")
        a(f"v_mfma_f32_16x16x16_bf16 {vr(o0,4)}, {vr(vp,2)}, {vr(pm,2)}, {vr(o0,4)}")
        a(f"v_mfma_f32_16x16x16_bf16 {vr(o1,4)}, {vr(vp+2,2)}, {vr(pm,2)}, {vr(o1,4)}")
        zero(a, 12, 4); zero(a, PB, 4)
        a("s_nop 1")
        a(f"v_rcp_f32 v{AS}, v{lr}")
        zero(a, PB+4, 2)
        for j in range(0, 8, 2):
            a(f"v_pk_mul_f32 {vr(o0+j,2)}, {vr(o0+j,2)}, {vr(AS,2)} op_sel_hi:[1,0]")
        a(f"v_cvt_pk_bf16_f32 v{o0}, v{o0}, v{o0+1}\nv_cvt_pk_bf16_f32 v{o0+1}, v{o0+2}, v{o0+3}")
        a(f"ds_write_b64 v{vXOw}, {vr(o0,2)}")
        a(f"v_cvt_pk_bf16_f32 v{o1}, v{o1}, v{o1+1}\nv_cvt_pk_bf16_f32 v{o1+1}, v{o1+2}, v{o1+3}")
        a(f"ds_write_b64 v{vXOw}, {vr(o1,2)} offset:512")
        zero(a, PB+6, 2); zero(a, 24, 8); zero(a, 64, 8)
        if not KXEARLY: a(f"s_add_u32 m0, s{sW1k}, s{sW1k}\ns_add_u32 m0, m0, {KXB}")
        a("s_waitcnt lgkmcnt(0)\ns_barrier")
        a(f"ds_read_b128 {vr(LD,4)}, v{vHi} offset:{XO-HB}\nds_read_b128 {vr(LD+4,4)}, v{vHi} offset:{XO-HB+1024}")
        if not KXEARLY:
            if not Cfg.NOKX: a(f"buffer_load_dwordx4 v{vL16}, {WSR}, s{sKXo} offen sc1 lds\nbuffer_load_dwordx4 v{vL16}, {WSR}, s{sKXo} offen offset:1024 sc1 lds")
        zero(a, 48, 8)
        if not KXEARLY: a(f"s_add_u32 s{sKXo}, s{sKXo}, {ST}")
        a("s_waitcnt lgkmcnt(0)")
        cyc(a, 55); ev(a, 4)
        WA = [16, 20, 24, 28, 68, 64, 12, 48, 52]
        ROr = [LD+8, 56]
        lq2 = LQ(a); sc2 = Sch(a, lq2); sc2.vs = VSPACE2
        def post_(j):
            d = WA[j]
            a(f"v_pk_add_f32 {vr(d,2)}, {vr(d,2)}, {vr(d+2,2)}\nv_cvt_pk_bf16_f32 v{d}, v{d}, v{d+1}")
            sc2.front([(f"buffer_store_dword v{d}, v{vL4}, {WSR}, s{sPJ+j} offen{sfx}", None)])
        for j in range(9):
            smf(a, WA[j], LD, WM[('O',j,0)])
            sc2.pop(1)
            if (j,1) in RESO_L:
                k = RESO_L.index((j,1))
                lq2.wait([('O',k)])
                smf(a, WA[j], LD+4, ROr[k % 2])
                if k + 2 < 5:
                    d = ROr[k % 2]
                    sc2.fill(f"ds_read_b128 {vr(d,4)}, v{vResO} offset:{(k+2)*8192}", ('O',k+2))
                    sc2.fill(f"ds_read_b128 {vr(d+4,4)}, v{vResO} offset:{(k+2)*8192+1024}", ('O',k+2))
            else:
                smf(a, WA[j], LD+4, WM[('O',j,1)])
            sc2.pop(1)
            if j >= WLAG: post_(j - WLAG)
        sc2.flush()
        if WLAG == 2:
            post_(7); sc2.flush()
            a("s_nop 1")
        else:
            a("s_nop 5")
        post_(8); sc2.flush()
        for _ in range(ADDW): a('s_nop 15')
        cyc(a, 56); ev(a, 5)
        a(f"s_cmp_eq_u32 s{sRT}, -1\ns_cbranch_scc1 {lb('L_nonred')}")
        a(f"ds_read_b128 v[68:71], v{vHi} offset:{SEL-HB}\ns_add_u32 s{sT1}, s{sRd}, 4096")
        if not EARLY: book_salu(a)
        if SIMPLEW:
            a(f"s_cmp_lt_u32 s{sRT}, {LATE}\ns_cbranch_scc1 {lb('L_poll1')}\ns_waitcnt vmcnt({N2})")
        else:
            a(f"s_waitcnt vmcnt({NE})\ns_cmp_lt_u32 s{sRT}, 16\ns_cbranch_scc1 {lb('L_poll1')}\ns_waitcnt vmcnt({N2})\ns_cmp_lt_u32 s{sRT}, {LATE}\ns_cbranch_scc1 {lb('L_poll1')}\ns_waitcnt vmcnt(0)")
        a.lab(lb("L_poll1"))
        loads1()
        if EARLY: book_salu(a)
        a(f"s_add_u32 s5, s{sMemOff}, {CH_MEM}\ns_add_u32 s6, s5, {2*CS}\ns_xor_b32 s4, s{sMemOff}, 0x20000\ns_add_u32 s{sRm0}, s4, {CH_MEM}\ns_add_u32 s{sRm1}, s{sRm0}, {2*CS}")
        zero(a, ACC, 16)
        a(f"v_mov_b32 v{vT+1}, -1")
        a("s_waitcnt lgkmcnt(0)")
        a.lab(lb("L_w1"))
        for j in range(8):
            b = RL + 4*j
            a(f"s_waitcnt vmcnt({7-j})")
            a(f"v_mfma_f32_16x16x32_bf16 v[64:67], {vr(b,4)}, v[68:71], " + ("0" if j == 0 else "v[64:67]"))
            if j == 2: a(f"v_max3_u32 v{vT}, v{RL}, v{RL+4}, v{RL+8}")
            if j == 4: a(f"v_max3_u32 v{vT}, v{RL+12}, v{RL+16}, v{vT}")
            if j == 6: a(f"v_max3_u32 v{vT}, v{RL+20}, v{RL+24}, v{vT}")
        a(f"v_max_u32 v{vT}, v{vT}, v{RL+28}\nv_cmp_eq_u32 vcc, -1, v{vT}\ns_cbranch_vccnz {lb('L_retry1')}")
        ev(a, 6, 31)
        a(f"""
        s_xor_b32 s{sRd}, s{sRd}, s{sRdX}
        s_nop 3
        v_cvt_pk_bf16_f32 v64, v64, v65
        v_cvt_pk_bf16_f32 v65, v66, v67
        buffer_store_dwordx2 v[64:65], v{vMst}, {WSR}, s5 offen{sfx}
        buffer_store_dwordx2 v[64:65], v{vMst}, {WSR}, s6 offen{sfx}
        """)
        a(f"buffer_store_dword v{vT+1}, v{vMst}, {WSR}, s{sRm0} offen{sfx}\nbuffer_store_dword v{vT+1}, v{vMst}, {WSR}, s{sRm1} offen{sfx}")
        first_poll()
        for x in range(2):
            for ins in rq(0, x): a(ins)
        zero(a, ACC+16, 8)
        a(f"s_branch {lb('L_common')}")
        a.lab(lb("L_nonred"))
        book_salu(a)
        a.lab(lb("L_book"))
        zero(a, ACC, 24)
        for x in range(2):
            for ins in rq(0, x): a(ins)
        first_poll()
        if DELAY0:
            Lb = a.uniq("L_bk")
            a(f"s_waitcnt vmcnt(0)\nv_cmp_eq_u32 vcc, -1, v{AS}\ns_cbranch_vccz {Lb}\ns_sleep {DELAY0}")
            first_poll()
            a.lab(Lb)
        a(f"s_branch {lb('L_common')}")
        def ool_r1():
            a.lab(lb("L_retry1"))
            if Cfg.STAMPS: a("s_add_u32 s61, s61, 1")
            spin_check(a)
            loads1()
            a(f"s_branch {lb('L_w1')}")
        ool.append(ool_r1)
    emit(False)
    emit(True)
    for f in ool: f()

SKIPMAX = True
POSTFIRST = True
WLAG = 1
PIPE = False
D0 = False
SIMPLEW = False
KXEARLY = False
sThr = 83
BACKOFF = 0
DELAY0 = 0
XP = {}
EARLY = True
CODEPF = True
OPOS = (0,1,2,3,4,5,6,7,8)
THROT = 0
CODEPF2 = False
ADDQ = 0
ADDW = 0
SKIPSM = False
PF2 = False
PROBE = False
PERLOAD = False
NE = 6
N2 = 2
LATE = 24
def chain(a):
    chain_init(a)
    chain_state_init(a)
    a(f"s_cmp_lg_u32 s{sMode}, 0\ns_cbranch_scc1 L_book_s\ns_branch L_book_f")
    chain_loop(a, False)
    chain_loop(a, True)
    a.lab("L_chain_last")
    a(f"""
    s_waitcnt vmcnt(0)
    s_barrier
    v_sub_u32 v{vT}, 0, v{vL16}
    v_mov_b32 v{vT+1}, 64
    buffer_store_dword v{vT+1}, v{vT}, {WSR}, s{sProg} offen sc1
    """)
    stamp(a, 3, 12, 13)
    dbgt(a, 10, 'umax')
    cyc_out(a, 16, ACCS+[S_SPIN], 12, 13)
    ev_dump(a, 10)
    a("s_waitcnt vmcnt(0)")
```
